```python
import torch

def _softmax(x, axis=-1):
    return torch.softmax(x, dim=axis)
def _gelu(x):
    return torch.nn.functional.gelu(x, approximate="tanh")
def _silu(x):
    return torch.nn.functional.silu(x)
def _sigmoid(x):
    return torch.sigmoid(x)
def _layernorm(x, axis=-1, eps=1e-5):
    m = x.mean(dim=axis, keepdim=True)
    v = x.var(dim=axis, keepdim=True, unbiased=False)
    return (x - m) / torch.sqrt(v + eps)
def _scatter_add(tgt, idx, src, axis=0):
    return tgt.clone().index_add_(axis, idx, src)
def _segment_sum(src, seg, n):
    out = torch.zeros((n,) + src.shape[1:], dtype=src.dtype)
    return out.index_add_(0, seg, src)
def _pad(x, pw):
    flat = tuple(v for pair in reversed(pw) for v in pair)
    return torch.nn.functional.pad(x, flat)

kernel_name = 'gated_mix__spectral_fnet__sliding_local_dilated__prompt'

def setup_inputs():

    _w = (lambda a: (lambda t: t.to(torch.bfloat16) if t.is_floating_point() else t)(torch.as_tensor(a)))
    def _A_setup():
        B, S, D = 1, 2048, 640
        ns = torch.arange(S)[:, None] * torch.arange(S)[None, :]
        nd = torch.arange(D)[:, None] * torch.arange(D)[None, :]
        Ws_re = torch.cos(-2.0 * torch.pi * ns / S).to(float)
        Ws_im = torch.sin(-2.0 * torch.pi * ns / S).to(float)
        Wd_re = torch.cos(-2.0 * torch.pi * nd / D).to(float)
        Wd_im = torch.sin(-2.0 * torch.pi * nd / D).to(float)
        return {
            "x": _w((lambda *s: torch.randn(*s, dtype=torch.bfloat16) * 0.05)(B, S, D)),
            "dft_seq_re": _w(Ws_re),
            "dft_seq_im": _w(Ws_im),
            "dft_hid_re": _w(Wd_re),
            "dft_hid_im": _w(Wd_im),
        }
    _A_in = _A_setup()

    def _B_setup():
        B, S, D = 1, 2048, 640
        return {
            "x": _w((lambda *s: torch.randn(*s, dtype=torch.bfloat16) * 0.05)(B, S, D)),
            "wqkv": _w((lambda *s: torch.randn(*s, dtype=torch.bfloat16) * 1.6)(D, 3 * D)),
            "wo": _w((lambda *s: torch.randn(*s, dtype=torch.bfloat16) * 0.2)(D, D)),
        }
    _B_in = _B_setup()

    return {
        "A_x": _A_in["x"],
        "A_dft_seq_re": _A_in["dft_seq_re"],
        "A_dft_seq_im": _A_in["dft_seq_im"],
        "A_dft_hid_re": _A_in["dft_hid_re"],
        "A_dft_hid_im": _A_in["dft_hid_im"],
        "B_x": _B_in["x"],
        "B_wqkv": _B_in["wqkv"],
        "B_wo": _B_in["wo"],
        "gate_w": _w((lambda *s: torch.randn(*s, dtype=torch.bfloat16) * 0.05)(640) * 16.0),
    }

def reference(A_x, A_dft_seq_re, A_dft_seq_im, A_dft_hid_re, A_dft_hid_im, B_x, B_wqkv, B_wo, gate_w):
    def _A_ref(x, dft_seq_re, dft_seq_im, dft_hid_re, dft_hid_im):
        a = torch.einsum("bsd,ed->bse", x, dft_hid_re)
        b = torch.einsum("bsd,ed->bse", x, dft_hid_im)
        y = torch.einsum("ts,bse->bte", dft_seq_re, a) - torch.einsum("ts,bse->bte", dft_seq_im, b)
        return y

    def _B_ref(x, wqkv, wo):
        B, S, D = x.shape
        H = 32; Dh = D // H
        W, dil = 8, 2
        qkv = (lambda x, *d: x.permute(*d))((x @ wqkv).reshape(B, S, 3, H, Dh), 2, 0, 3, 1, 4)
        q, k, v = qkv[0], qkv[1], qkv[2]
        scale = Dh ** -0.5
        pos = torch.arange(S)
        off = torch.arange(W) * dil
        idx = pos[:, None] - off[None, :]
        mask = idx >= 0
        idx_c = torch.where(mask, idx, 0).reshape(-1)
        kg = k[:, :, idx_c, :].reshape(B, H, S, W, Dh)
        vg = v[:, :, idx_c, :].reshape(B, H, S, W, Dh)
        logits = torch.einsum("bhsd,bhswd->bhsw", q, kg) * scale
        logits = torch.where(mask[None, None, :, :], logits, -1e9)
        attn = _softmax(logits, axis=-1)
        o = torch.einsum("bhsw,bhswd->bhsd", attn, vg)
        return (lambda x, *d: x.permute(*d))(o, 0, 2, 1, 3).reshape(B, S, D) @ wo

    x = A_x
    g = _sigmoid((x * gate_w).sum(-1, keepdims=True))
    a = _A_ref(x, A_dft_seq_re, A_dft_seq_im, A_dft_hid_re, A_dft_hid_im)
    b = _B_ref(x, B_wqkv, B_wo)
    return g * a + (1 - g) * b
```

```python
import re

def _expand(tok):
    tok = tok.strip()
    tok = tok.lstrip('-')
    m = re.fullmatch(r'abs\((.*)\)', tok)
    if m: tok = m.group(1)
    tok = tok.strip('|')
    m = re.fullmatch(r'([vas])(\d+)', tok)
    if m: return [(m.group(1), int(m.group(2)))]
    m = re.fullmatch(r'([vas])\[(\d+):(\d+)\]', tok)
    if m: return [(m.group(1), i) for i in range(int(m.group(2)), int(m.group(3))+1)]
    if tok == 'vcc': return [('s', 106), ('s', 107)]
    if tok == 'vcc_lo': return [('s', 106)]
    if tok == 'vcc_hi': return [('s', 107)]
    if tok == 'm0': return [('s', 124)]
    if tok == 'exec': return [('s', 126), ('s', 127)]
    if tok == 'exec_lo': return [('s', 126)]
    if tok == 'exec_hi': return [('s', 127)]
    return []

TRANS = re.compile(r'v_(exp|log|rcp|rsq|sqrt|sin|cos)_f(16|32)')

class Ins:
    def __init__(self, text):
        self.text = text
        t = text.split(';')[0].strip()
        parts = t.split(None, 1)
        self.op = parts[0]
        rest = parts[1] if len(parts) > 1 else ''
        ops = [o.strip() for o in rest.split(',')] if rest else []
        self.mods = ''
        if ops:
            l = ops[-1].split(None, 1)
            ops[-1] = l[0] if l else ''
            self.mods = l[1] if len(l) > 1 else ''
        self.ops = ops
        op = self.op
        self.is_mfma = op.startswith('v_mfma')
        self.is_valu = op.startswith('v_') and not self.is_mfma
        self.is_trans = bool(TRANS.match(op))
        self.is_perml = op.startswith('v_permlane')
        self.is_dpp = 'dpp' in op or 'row_' in self.mods or 'quad_perm' in self.mods
        self.is_rdlane = op.startswith('v_readfirstlane') or op.startswith('v_readlane')
        self.is_ds = op.startswith('ds_')
        self.is_vmem = op.startswith('buffer_') or op.startswith('global_')
        self.is_salu = op.startswith('s_')
        self.is_ldsdma = self.is_vmem and (' lds' in (' ' + self.mods) or 'load_lds' in op)
        self.dst = set(); self.src = set()
        self.srcA = self.srcB = self.srcC = set()
        E = _expand
        if self.is_mfma:
            self.dst = set(E(ops[0])); self.srcA = set(E(ops[1])); self.srcB = set(E(ops[2])); self.srcC = set(E(ops[3]))
            self.src = self.srcA | self.srcB | self.srcC
            self.passes = 8 if '32x32' in op else 4
        elif self.is_valu:
            if self.is_perml and 'swap' in op:
                self.dst = set(E(ops[0])) | set(E(ops[1])); self.src = set(self.dst)
            else:
                self.dst = set(E(ops[0]))
                k = 1
                if re.match(r'v_(add|sub|subrev|addc|subb|subbrev)_co', op) or op.startswith('v_div_scale') or op.startswith('v_mad_u64'):
                    self.dst |= set(E(ops[1])); k = 2
                for o in ops[k:]: self.src |= set(E(o))
                if re.match(r'v_(fmac|mac|dot2c|pk_fmac|writelane)', op): self.src |= set(E(ops[0]))
                if op.startswith('v_cmpx'): self.dst |= set(E('exec'))
        elif self.is_ds:
            if 'read' in op or 'bpermute' in op or 'swizzle' in op or 'permute' in op:
                self.dst = set(E(ops[0]))
                for o in ops[1:]: self.src |= set(E(o))
            else:
                for o in ops: self.src |= set(E(o))
        elif self.is_vmem:
            if 'load' in op and not self.is_ldsdma:
                self.dst = set(E(ops[0]))
                for o in ops[1:]: self.src |= set(E(o))
            else:
                for o in ops: self.src |= set(E(o))
                if self.is_ldsdma: self.src |= set(E('m0'))
        elif self.is_salu:
            if op.startswith('s_cmp') or op.startswith('s_cbranch') or op in ('s_branch','s_barrier','s_waitcnt','s_nop','s_endpgm','s_setprio','s_sleep'):
                for o in ops: self.src |= set(E(o))
            else:
                if ops: self.dst = set(E(ops[0]))
                for o in ops[1:]: self.src |= set(E(o))
                if 'saveexec' in op: self.dst |= set(E('exec'))
        self.wide_store_data = set()
        if self.is_vmem and 'store' in op and ('x3' in op or 'x4' in op):
            self.wide_store_data = set(E(ops[0])) if op.startswith('buffer_') else set(E(ops[1]))
    def states(self):
        if self.op == 's_nop': return int(self.ops[0], 0) + 1
        return 1

def vregs(s): return {r for r in s if r[0] in 'va'}
def sregs(s): return {r for r in s if r[0] == 's'}

def need(p, c):
    n = 0
    if p.is_mfma:
        P = p.passes
        if c.is_mfma:
            if p.dst & (c.srcA | c.srcB): n = max(n, P + 4)
            if p.dst & c.srcC:
                if not (p.dst == c.srcC and p.passes == c.passes): n = max(n, P + 2)
            if (p.dst & c.dst) and not (p.dst == c.srcC): n = max(n, P + 2)
        elif c.is_valu or c.is_ds or c.is_vmem:
            if p.dst & (c.src | c.dst): n = max(n, P + 4)
        if c.is_valu and (p.srcC & c.dst): n = max(n, P - 1)
        if (c.is_ds or c.is_vmem) and (p.srcC & c.dst): n = max(n, P - 1)
    elif p.is_valu:
        pv = vregs(p.dst); ps = sregs(p.dst)
        if c.is_mfma:
            if pv & c.src: n = max(n, 2)
            if ('s', 126) in ps: n = max(n, 4)
        if c.is_valu:
            if p.is_trans and not c.is_trans and (pv & c.src): n = max(n, 1)
            if p.is_trans and c.is_trans and (pv & c.src): n = max(n, 1)
            if (c.is_perml or c.is_dpp) and (pv & c.src): n = max(n, 2)
            if c.is_rdlane and (pv & c.src): n = max(n, 1)
            if ps & c.src: n = max(n, 4 if c.is_rdlane or 'writelane' in c.op else 2)
            if ('s', 126) in ps and (c.is_dpp or c.is_perml or c.is_rdlane): n = max(n, 5)
            if ('op_sel' in p.mods or 'sdwa' in p.op) and (pv & (c.src | c.dst)): n = max(n, 1)
        if c.is_vmem and (ps & c.src): n = max(n, 5)
        if c.is_salu and (ps & c.src): n = max(n, 1)
    elif p.is_salu:
        if ('s', 124) in p.dst and c.is_ldsdma: n = max(n, 1)
    if p.wide_store_data and (p.wide_store_data & c.dst): n = max(n, 2)
    return n

class Asm:
    def __init__(self):
        self.items = []
    def __call__(self, text):
        for line in text.strip().split('\n'):
            line = line.strip()
            if not line or line.startswith(';'): continue
            if line.endswith(':'): self.items.append(('l', line[:-1]))
            elif line.startswith('.'): self.items.append(('r', line))
            else: self.items.append(('i', Ins(line)))
    def label(self, n): self.items.append(('l', n))
    def raw(self, t): self.items.append(('r', t))
    def pad(self, verbose=False):
        total = 0
        i = 0
        it = self.items
        def maps():
            jumps = {}
            for k, x in enumerate(it):
                if x[0] == 'i' and (x[1].op.startswith('s_cbranch') or x[1].op == 's_branch'):
                    jumps.setdefault(x[1].ops[0], []).append(k)
            return jumps
        jumps = maps()
        while i < len(it):
            x = it[i]
            if x[0] != 'i' or x[1].op == 's_nop':
                i += 1; continue
            c = x[1]
            worst = 0
            stack = [(i - 1, 0, False)]
            seen = {}
            while stack:
                j, d, viajump = stack.pop()
                while j >= 0 and d < 13:
                    if seen.get(j, 99) <= d: break
                    y = it[j]
                    if y[0] == 'i' and y[1].op in ('s_branch', 's_endpgm') and not viajump:
                        break
                    seen[j] = d
                    viajump = False
                    if y[0] == 'l':
                        for src in jumps.get(y[1], []): stack.append((src, d, True))
                    elif y[0] == 'i':
                        p = y[1]
                        nn = need(p, c) - d
                        if nn > worst: worst = nn
                        d += p.states()
                    j -= 1
            if worst > 0:
                it.insert(i, ('i', Ins(f's_nop {worst-1}')))
                total += worst
                if verbose: print(f'pad {worst} before: {c.text}')
                jumps = maps()
                i += 1
            i += 1
        return total
    def text(self):
        out = []
        for k, x in self.items:
            if k == 'i': out.append('    ' + x.text)
            elif k == 'l': out.append(x + ':')
            else: out.append(x)
        return '\n'.join(out) + '\n'

class RegAlloc:
    def __init__(self, kind, start, limit):
        self.kind = kind; self.next = start; self.limit = limit; self.hi = start
    def alloc(self, n=1, align=1):
        b = (self.next + align - 1) // align * align
        self.next = b + n
        assert self.next <= self.limit, f'out of {self.kind} regs'
        self.hi = max(self.hi, self.next)
        return b

def vr(b, n=1): return f'v{b}' if n == 1 else f'v[{b}:{b+n-1}]'
def sr(b, n=1): return f's{b}' if n == 1 else f's[{b}:{b+n-1}]'
def ar(b, n=1): return f'a{b}' if n == 1 else f'a[{b}:{b+n-1}]'
```

```python
import sys
from asmlib import *
NAME = "gated_mix__spectral_fnet__sliding_local_dilated__prompt"
STAMP = '--stamp' in sys.argv
OUT = [x for x in sys.argv[1:] if x.endswith('.s')]
OUT = OUT[0] if OUT else f"cdna_kernels/{NAME}.s"

WS_O = 0
WS_G = 0x280000
GP = 328
WS_GATE = 0x510000
WS_END = 0x520000
WS_STAMP = 0x800000
OOB = 0x80000000
MF = 'v_mfma_f32_16x16x32_bf16'

S_X, S_SRE, S_SIM, S_HRE, S_HIM, S_BX, S_WQKV, S_WO = 4, 6, 8, 10, 12, 14, 16, 18
S_GATE, S_OUT, S_DBG, S_WS = 20, 22, 24, 26
R_A, R_B, R_WS, R_C, R_D = 28, 32, 36, 40, 44
S_ST = 80

def srd(a, r, p, n):
    a(f"""s_mov_b32 s{r}, s{p}
s_mov_b32 s{r+1}, s{p+1}
s_mov_b32 s{r+2}, {n}
s_mov_b32 s{r+3}, 0x20000""")

def stamp(a, i):
    if STAMP:
        a(f"s_memrealtime s[{S_ST+2*i}:{S_ST+2*i+1}]")

def stamp_flush(a, kidx, vtmp):
    if not STAMP: return
    a(f"""s_waitcnt vmcnt(0) lgkmcnt(0)
s_memrealtime s[{S_ST+14}:{S_ST+15}]
s_mov_b32 s{R_D}, s{S_WS}
s_mov_b32 s{R_D+1}, s{S_WS+1}
s_mov_b32 s{R_D+2}, 0x1000000
s_mov_b32 s{R_D+3}, 0x20000
s_lshl_b32 s70, s2, 2
s_add_u32 s70, s70, s3
s_lshl_b32 s70, s70, 5
s_add_u32 s70, s70, {WS_STAMP + kidx*0x10000}
s_waitcnt lgkmcnt(0)
v_mov_b32 v{vtmp}, 0
""")
    for i in range(8):
        a(f"v_mov_b32 v{vtmp+1}, s{S_ST+2*i}")
        a(f"buffer_store_dword v{vtmp+1}, v{vtmp}, s[{R_D}:{R_D+3}], s70 offen offset:{4*i}")
    a("s_waitcnt vmcnt(0)")

def interleave(a, mfmas, fillers, start=0, per=1):
    f = list(fillers)
    for i, m in enumerate(mfmas):
        a(m)
        if i >= start:
            for _ in range(per):
                if f: a(f.pop(0))
    for x in f: a(x)

def prologue_common(a, exit_label):
    a(f"""s_cmp_ge_u32 s2, 256
s_cbranch_scc1 {exit_label}
s_load_dwordx16 s[4:19], s[0:1], 0
s_load_dwordx8 s[20:27], s[0:1], 64""")
    if STAMP:
        for i in range(8): a(f"s_mov_b64 s[{S_ST+2*i}:{S_ST+2*i+1}], 0")
    stamp(a, 0)
    a("""v_lshrrev_b32 v1, 6, v0
v_and_b32 v0, 63, v0
v_readfirstlane_b32 s3, v1""")

def k1():
    a = Asm()
    prologue_common(a, 'K1_END')
    sP, sCP, sSL = 48, 49, 50
    a(f"""s_and_b32 s{sP}, s2, 1
s_lshr_b32 s{sCP}, s2, 1
s_and_b32 s{sCP}, s{sCP}, 3
s_lshr_b32 s{sSL}, s2, 3
s_cmp_ge_u32 s{sSL}, 24
s_cbranch_scc1 K1_DFT""")
    hi1 = k1_qkv(a, sP, sCP, sSL)
    a.label('K1_DFT')
    hi2 = k1_dft(a, sP, sCP, sSL)
    a.label('K1_END')
    a('s_endpgm')
    return a, max(hi1, hi2)

def k1_qkv(a, sP, sCP, sSL):
    V = RegAlloc('v', 2, 256)
    SLOT = 45056
    sHG, sI, sJ0, sXo, sWo, sRd, sWr, sC, sM0X, sM0W, sT, sT2 = range(51, 63)
    vM, vG, vT, vT2, vT3 = [V.alloc() for _ in range(5)]
    vXo = V.alloc(3); vWo = V.alloc(8)
    vXb0, vXb1, vWb, vDb = [V.alloc() for _ in range(4)]
    vXa0, vXa1, vWa, vDa = [V.alloc() for _ in range(4)]
    acc = V.alloc(96, 4)
    F = [V.alloc(40, 4), V.alloc(40, 4)]
    cI = V.alloc(4, 4); cOne = V.alloc(4, 4); cBo = V.alloc(4, 4); cBp = V.alloc(4, 4); cMk = V.alloc(2, 2)
    vOC, vOD = V.alloc(), V.alloc()
    def A(rt, t): return acc + 16*rt + 4*t
    a(f"""s_lshl_b32 s{sHG}, s{sCP}, 1
s_and_b32 s{sT}, s{sSL}, 1
s_add_u32 s{sHG}, s{sHG}, s{sT}
s_lshr_b32 s{sI}, s{sSL}, 1
s_mul_i32 s{sJ0}, s{sI}, 85
s_lshl_b32 s{sXo}, s{sJ0}, 1
s_add_u32 s{sXo}, s{sXo}, s{sP}
s_mul_i32 s{sXo}, s{sXo}, 1280
s_mul_i32 s{sWo}, s{sHG}, 160
s_mul_i32 s{sM0X}, s3, 3072
s_lshl_b32 s{sM0W}, s3, 13
s_add_u32 s{sM0W}, s{sM0W}, 12288
s_mul_i32 s{sT}, s3, 24
v_lshrrev_b32 v{vT}, 3, v0
v_add_u32 v{vT}, s{sT}, v{vT}
v_and_b32 v{vT2}, 7, v0""")
    for j in range(3):
        a(f"""v_add_u32 v{vT3}, {8*j}, v{vT}
v_mul_u32_u24 v{vXo+j}, 2560, v{vT3}
v_bfe_u32 v{vT3}, v{vT3}, 1, 3
v_xor_b32 v{vT3}, v{vT3}, v{vT2}
v_lshl_add_u32 v{vXo+j}, v{vT3}, 4, v{vXo+j}""")
        if j: a(f"v_subrev_u32 v{vXo+j}, {1024*j}, v{vXo+j}")
    assert all((q*2185) >> 16 == q//30 for q in range(512))
    assert all((q*26) >> 8 == q//10 for q in range(30))
    a(f"s_mul_i32 s{sT}, s3, {16*3840}")
    for j in range(8):
        a(f"""v_add_u32 v{vT}, {64*j}, v0
v_mul_u32_u24 v{vT2}, 2185, v{vT}
v_lshrrev_b32 v{vT2}, 16, v{vT2}
v_mul_u32_u24 v{vT3}, 30, v{vT2}
v_sub_u32 v{vT}, v{vT}, v{vT3}
v_mul_u32_u24 v{vT3}, 26, v{vT}
v_lshrrev_b32 v{vT3}, 8, v{vT3}
v_mul_u32_u24 v{vT3}, 1120, v{vT3}
v_lshl_add_u32 v{vT}, v{vT}, 4, v{vT3}
v_and_b32 v{vT3}, 3, v{vT2}
v_and_b32 v{vM}, 4, v{vT2}
v_lshl_add_u32 v{vT3}, v{vM}, 1, v{vT3}
v_and_b32 v{vM}, 8, v{vT2}
v_lshrrev_b32 v{vM}, 1, v{vM}
v_add_u32 v{vT3}, v{vT3}, v{vM}
v_mul_u32_u24 v{vT3}, 3840, v{vT3}
v_add3_u32 v{vWo+j}, v{vT}, v{vT3}, s{sT}""")
        if j & 3: a(f"v_subrev_u32 v{vWo+j}, {1024*(j&3)}, v{vWo+j}")
    a(f"""v_mov_b32 v{vT}, {OOB}
v_cmp_gt_u32 vcc, 32, v0
v_cndmask_b32 v{vWo+7}, v{vT}, v{vWo+7}, vcc
s_waitcnt lgkmcnt(0)""")
    srd(a, R_A, S_X, 2621440); srd(a, R_B, S_WQKV, 2457600); srd(a, R_WS, S_WS, WS_END)
    def dma(slotreg):
        g = []
        for j in range(3):
            pre = f"s_add_u32 m0, s{slotreg}, s{sM0X}\n" if j == 0 else ""
            g.append(pre + f"buffer_load_dwordx4 v{vXo+j}, s[{R_A}:{R_A+3}], s{sXo} offen offset:{1024*j} lds")
        for j in range(8):
            pre = ""
            if j == 0: pre = f"s_add_u32 m0, s{slotreg}, s{sM0W}\n"
            if j == 4: pre = f"s_add_u32 m0, m0, 4096\n"
            g.append(pre + f"buffer_load_dwordx4 v{vWo+j}, s[{R_B}:{R_B+3}], s{sWo} offen offset:{1024*(j&3)} lds")
        g[-1] += f"\ns_add_u32 s{sXo}, s{sXo}, 128\ns_add_u32 s{sWo}, s{sWo}, {64*3840}"
        return g
    for c in range(3):
        a(f"s_mov_b32 s{sWr}, {c*SLOT}")
        for x in dma(sWr): a(x)
    stamp(a, 1)
    a(f"""v_and_b32 v{vM}, 15, v0
v_lshrrev_b32 v{vG}, 4, v0
v_bfe_u32 v{vT}, v{vM}, 1, 3
v_xor_b32 v{vT}, v{vT}, v{vG}
v_lshlrev_b32 v{vT}, 4, v{vT}
v_lshl_add_u32 v{vXb0}, v{vM}, 7, v{vT}
v_xor_b32 v{vXb1}, 64, v{vXb0}
v_bfe_u32 v{vT}, v0, 2, 3
v_mul_u32_u24 v{vT}, 480, v{vT}
v_lshrrev_b32 v{vT2}, 5, v0
v_lshl_add_u32 v{vT}, v{vT2}, 13, v{vT}
s_mul_i32 s{sT}, s3, 40
s_add_u32 s{sT}, s{sT}, 12288
v_add_u32 v{vT}, s{sT}, v{vT}
v_and_b32 v{vT2}, 3, v0
v_lshl_add_u32 v{vWb}, v{vT2}, 3, v{vT}
v_min_u32 v{vT2}, 2, v{vT2}
v_mul_u32_u24 v{vT2}, 160, v{vT2}
v_add3_u32 v{vDb}, v{vT}, v{vT2}, 32
v_mov_b32 v{vXa0}, v{vXb0}
v_mov_b32 v{vXa1}, v{vXb1}
v_mov_b32 v{vWa}, v{vWb}
v_mov_b32 v{vDa}, v{vDb}""")
    for i in range(96): a(f"v_mov_b32 v{acc+i}, 0")
    a(f"""v_lshlrev_b32 v{vT}, 2, v{vG}
v_sub_u32 v{vT}, v{vM}, v{vT}
v_mov_b32 v{vT3}, 0xff800000
v_mov_b32 v{cI}, 0
v_mov_b32 v{cI+1}, 0""")
    for r in range(4):
        a(f"""v_subrev_u32 v{vT2}, {r}, v{vT}
v_cmp_gt_u32 vcc, 8, v{vT2}
v_cndmask_b32 v{cBo+r}, v{vT3}, v{cI}, vcc
v_cmp_gt_i32 vcc, -8, v{vT2}
v_cndmask_b32 v{cBp+r}, v{vT3}, v{cI}, vcc
v_mov_b32 v{cOne+r}, 0x3f803f80""")
    for pr in range(2):
        a(f"""v_mov_b32 v{vT2}, 0xffff
v_cmp_le_i32 vcc, {2*pr}, v{vT}
v_cndmask_b32 v{cMk+pr}, 0, v{vT2}, vcc
v_mov_b32 v{vT2}, 0xffff0000
v_cmp_le_i32 vcc, {2*pr+1}, v{vT}
v_cndmask_b32 v{vT2}, 0, v{vT2}, vcc
v_or_b32 v{cMk+pr}, v{cMk+pr}, v{vT2}
v_mov_b32 v{vT2}, 0x3f80
v_cmp_eq_u32 vcc, {2*pr}, v{vT}
v_cndmask_b32 v{cI+2+pr}, 0, v{vT2}, vcc
v_mov_b32 v{vT2}, 0x3f800000
v_cmp_eq_u32 vcc, {2*pr+1}, v{vT}
v_cndmask_b32 v{cI+2+pr}, v{cI+2+pr}, v{vT2}, vcc""")
    a(f"""s_lshl_b32 s{sT}, s{sHG}, 2
s_add_u32 s{sT}, s{sT}, s3
s_mul_i32 s{sT}, s{sT}, 5
s_lshl_b32 s{sT2}, s{sJ0}, 1
s_add_u32 s{sT2}, s{sT2}, s{sP}
s_mul_i32 s{sT2}, s{sT2}, 1280
v_mul_u32_u24 v{vT3}, 2560, v{vM}
v_add_u32 v{vT3}, s{sT2}, v{vT3}""")
    for dst, isD in ((vOC, 0), (vOD, 1)):
        if isD: a(f"s_add_u32 s{sT}, s{sT}, 4\nv_mov_b32 v{vT}, s{sT}")
        else: a(f"v_add_u32 v{vT}, s{sT}, v{vG}")
        a(f"""v_lshrrev_b32 v{vT2}, 3, v{vT}
v_lshl_add_u32 v{dst}, v{vT2}, 6, v{vT3}
v_and_b32 v{vT2}, 3, v{vT}
v_lshl_add_u32 v{dst}, v{vT2}, 4, v{dst}
v_and_b32 v{vT2}, 4, v{vT}
v_lshl_add_u32 v{dst}, v{vT2}, 1, v{dst}""")
    a(f"""v_mov_b32 v{vT}, {OOB}
v_cmp_le_u32 vcc, 48, v0
v_cndmask_b32 v{vOD}, v{vT}, v{vOD}, vcc""")

    def reads(fs, s):
        b = F[fs]; r = []
        for t, (reg, off) in enumerate(((vWa, 0), (vWa, 160), (vDa, 0), (vWa, 320))):
            for h in range(2):
                r.append(f"ds_read_b64_tr_b16 {vr(b+24+4*t+2*h,2)}, v{reg} offset:{s*16384+h*3840+off}")
        for rt in range(6):
            r.append(f"ds_read_b128 {vr(b+4*rt,4)}, v{vXa1 if s else vXa0} offset:{2048*rt}")
        return r
    def mfmas(fs):
        b = F[fs]; m = []
        for rt in range(6):
            x = vr(b+4*rt, 4)
            for t in range(4):
                w = vr(b+24+4*t, 4); c = vr(A(rt, t), 4)
                m.append(f"{MF} {c}, {w}, {x}, {c}" if t < 3 else f"{MF} {c}, {x}, {w}, {c}")
        return m
    def chunk(do_dma, vm, last):
        a("s_waitcnt lgkmcnt(0)")
        interleave(a, mfmas(0), reads(1, 1))
        if last:
            a("s_waitcnt lgkmcnt(0)")
            for x in mfmas(1): a(x)
            return
        a(f"""s_mov_b32 s{sWr}, s{sRd}
s_add_u32 s{sRd}, s{sRd}, {SLOT}
s_cmp_eq_u32 s{sRd}, {3*SLOT}
s_cselect_b32 s{sRd}, 0, s{sRd}
v_add_u32 v{vXa0}, s{sRd}, v{vXb0}
v_add_u32 v{vXa1}, s{sRd}, v{vXb1}
v_add_u32 v{vWa}, s{sRd}, v{vWb}
v_add_u32 v{vDa}, s{sRd}, v{vDb}
s_waitcnt vmcnt({vm}) lgkmcnt(0)
s_barrier""")
        fl = reads(0, 0)
        if do_dma:
            d = dma(sWr); fl2 = []
            for i in range(max(len(fl), len(d))):
                if i < len(fl): fl2.append(fl[i])
                if i < len(d): fl2.append(d[i])
            fl = fl2
        interleave(a, mfmas(1), fl)
    a(f"""s_mov_b32 s{sRd}, 0
s_mov_b32 s{sC}, 0
s_waitcnt vmcnt(22)
s_barrier""")
    stamp(a, 2)
    for x in reads(0, 0): a(x)
    a.label('Q_LOOP')
    chunk(True, 11, False)
    a(f"""s_add_u32 s{sC}, s{sC}, 1
s_cmp_lt_u32 s{sC}, 7
s_cbranch_scc1 Q_LOOP""")
    chunk(False, 11, False)
    chunk(False, 0, False)
    chunk(False, 0, True)
    stamp(a, 3)
    Kf = F[0]; Qf = F[1]; Vp = F[0] + 24; V4 = F[1] + 24
    def pk(d, s): return f"v_cvt_pk_bf16_f32 v{d}, v{s}, v{s+1}\nv_cvt_pk_bf16_f32 v{d+1}, v{s+2}, v{s+3}"
    for z in (Vp, Vp+1, V4, V4+1): a(f"v_mov_b32 v{z}, 0")
    for rt in range(6):
        a(f"v_mov_b32 v{Qf+4*rt+2}, 0\nv_mov_b32 v{Qf+4*rt+3}, 0")
    for rt in range(6):
        a(pk(Kf+4*rt, A(rt, 1))); a(pk(Kf+4*rt+2, A(rt, 2)))
        a(pk(Qf+4*rt, A(rt, 0))); a(pk(Vp+2+2*rt, A(rt, 3)))
    for rt in range(6):
        a(f"{MF} {vr(A(rt,3),4)}, {vr(Kf+4*rt,4)}, {vr(cI,4)}, 0")
    a("s_mov_b32 s64, -1\ns_mov_b32 s65, 0")
    for rt in range(6):
        for q in range(2):
            a(f"v_permlane16_swap_b32 v{Qf+4*rt+2+q}, v{Kf+4*rt+2+q}")
    for rt in range(6):
        for q in range(2):
            a(f"v_cndmask_b32 v{Qf+4*rt+2+q}, 0, v{Qf+4*rt+2+q}, s[64:65]")
    for rt in range(6):
        a(f"{MF} {vr(A(rt,0),4)}, {vr(Kf+4*rt,4)}, {vr(Qf+4*rt,4)}, {vr(cBo,4)}")
        if rt: a(f"{MF} {vr(A(rt,1),4)}, {vr(Kf+4*rt-4,4)}, {vr(Qf+4*rt,4)}, {vr(cBp,4)}")
    for rt in range(6): a(pk(V4+2+2*rt, A(rt, 3)))
    CSC = 20**-0.5 * 1.4426950408889634
    import struct
    a(f"s_mov_b32 s{sT}, {struct.unpack('<I', struct.pack('<f', CSC))[0]:#x}")
    for rt in range(1, 6):
        for r in range(4): a(f"v_max_f32 v{A(rt,0)+r}, v{A(rt,0)+r}, v{A(rt,1)+r}")
    for rt in range(6):
        s = A(rt, 0); m = A(rt, 2)
        a(f"v_max3_f32 v{m}, v{s}, v{s+1}, v{s+2}\nv_max_f32 v{m}, v{m}, v{s+3}")
    for sw in ('v_permlane32_swap_b32', 'v_permlane16_swap_b32'):
        for rt in range(6): a(f"v_mov_b32 v{A(rt,2)+1}, v{A(rt,2)}")
        for rt in range(6): a(f"{sw} v{A(rt,2)}, v{A(rt,2)+1}")
        for rt in range(6): a(f"v_max_f32 v{A(rt,2)}, v{A(rt,2)}, v{A(rt,2)+1}")
    for rt in range(6): a(f"v_mul_f32 v{A(rt,2)}, s{sT}, v{A(rt,2)}")
    for rt in range(6):
        for r in range(4): a(f"v_fma_f32 v{A(rt,0)+r}, v{A(rt,0)+r}, s{sT}, -v{A(rt,2)}")
    for rt in range(6):
        for r in range(4): a(f"v_exp_f32 v{A(rt,0)+r}, v{A(rt,0)+r}")
    for rt in range(6): a(pk(Qf+4*rt, A(rt, 0)))
    for rt in range(6):
        for q in range(2): a(f"v_and_b32 v{Qf+4*rt+2+q}, v{cMk+q}, v{Qf+4*rt+q}")
    for rt in range(6):
        for q in range(2): a(f"v_xor_b32 v{Qf+4*rt+q}, v{Qf+4*rt+2+q}, v{Qf+4*rt+q}")
    for rt in range(6):
        p = vr(Qf+4*rt, 4)
        a(f"{MF} {vr(A(rt,2),4)}, {vr(cOne,4)}, {p}, 0")
        a(f"{MF} {vr(A(rt,0),4)}, {vr(Vp+2*rt,4)}, {p}, 0")
        a(f"{MF} {vr(A(rt,1),4)}, {vr(V4+2*rt,4)}, {p}, 0")
    vOC0, vOD0, vOC5, vOD5 = vXb0, vXb1, vWb, vDb
    a(f"""s_cmp_eq_u32 s{sI}, 0
s_cselect_b32 s{sT2}, 0, 7
v_mov_b32 v{vT}, {OOB}
v_cmp_le_u32 vcc, s{sT2}, v{vM}
v_cndmask_b32 v{vOC0}, v{vT}, v{vOC}, vcc
v_cndmask_b32 v{vOD0}, v{vT}, v{vOD}, vcc
s_cmp_eq_u32 s{sI}, 11
s_cselect_b32 s{sT2}, 9, 12
v_cmp_gt_u32 vcc, s{sT2}, v{vM}
v_cndmask_b32 v{vOC5}, v{vT}, v{vOC}, vcc
v_cndmask_b32 v{vOD5}, v{vT}, v{vOD}, vcc""")
    for rt in range(6): a(f"v_rcp_f32 v{A(rt,2)}, v{A(rt,2)}")
    for rt in range(6):
        for r in range(8): a(f"v_mul_f32 v{A(rt,0)+r}, v{A(rt,2)}, v{A(rt,0)+r}")
        a(pk(A(rt, 3), A(rt, 0))); a(pk(A(rt, 3)+2, A(rt, 1)))
        oc, od = (vOC0, vOD0) if rt == 0 else (vOC5, vOD5) if rt == 5 else (vOC, vOD)
        a(f"""s_mov_b32 s{sT2}, {rt*40960}
buffer_store_dwordx2 {vr(A(rt,3),2)}, v{oc}, s[{R_WS}:{R_WS+3}], s{sT2} offen
buffer_store_dwordx2 {vr(A(rt,3)+2,2)}, v{od}, s[{R_WS}:{R_WS+3}], s{sT2} offen""")
    stamp(a, 4)
    stamp_flush(a, 0, vT)
    a("s_endpgm")
    return V.hi

def k1_dft(a, sP, sCP, sSL):
    V = RegAlloc('v', 2, 256)
    SLOT = 36864; NS = 4; EXTRA = NS*SLOT
    sA, sN2, sKo, sRd, sWr, sC, sM0X, sM0C, sT, sT2 = range(51, 61)
    vM, vG, vT, vT2, vT3 = [V.alloc() for _ in range(5)]
    vXo = V.alloc(4); vCo = V.alloc(5)
    vXb0, vXb1, vCb0, vCb1 = [V.alloc() for _ in range(4)]
    vXa0, vXa1, vCa0, vCa1, vEa = [V.alloc() for _ in range(5)]
    acc = V.alloc(88, 4)
    F = [V.alloc(52, 4), V.alloc(52, 4)]
    fRe = V.alloc(4, 4); fIm = V.alloc(4, 4)
    def A(ct, rt): return acc + 8*ct + 4*rt
    a(f"""s_sub_u32 s{sA}, s{sSL}, 24
s_lshl_b32 s{sN2}, s{sA}, 3
s_lshl_b32 s{sT}, s3, 1
s_add_u32 s{sN2}, s{sN2}, s{sT}
s_add_u32 s{sN2}, s{sN2}, s{sP}
s_lshl_b32 s{sM0X}, s3, 12
s_mul_i32 s{sM0C}, s3, 5120
s_add_u32 s{sM0C}, s{sM0C}, 16384
s_mov_b32 s{sKo}, 0
v_lshrrev_b32 v{vT}, 3, v0
v_and_b32 v{vT2}, 7, v0
s_mul_i32 s{sT}, s{sN2}, 1280""")
    for j in range(4):
        a(f"""v_add_u32 v{vT3}, {8*j}, v{vT}
v_mul_u32_u24 v{vXo+j}, {64*1280}, v{vT3}
v_bfe_u32 v{vT3}, v{vT3}, 1, 3
v_xor_b32 v{vT3}, v{vT3}, v{vT2}
v_lshl_add_u32 v{vXo+j}, v{vT3}, 4, v{vXo+j}
v_add_u32 v{vXo+j}, s{sT}, v{vXo+j}""")
        if j: a(f"v_subrev_u32 v{vXo+j}, {1024*j}, v{vXo+j}")
    a(f"""s_and_b32 s{sT}, s3, 1
s_mul_i32 s{sT}, s{sT}, 40
s_mul_i32 s{sT2}, s{sCP}, {80*1280}
v_add_u32 v{vT}, s{sT}, v{vT}""")
    for j in range(5):
        a(f"""v_add_u32 v{vT3}, {8*j}, v{vT}
v_mul_u32_u24 v{vCo+j}, 1280, v{vT3}
v_bfe_u32 v{vT3}, v{vT3}, 1, 3
v_xor_b32 v{vT3}, v{vT3}, v{vT2}
v_lshl_add_u32 v{vCo+j}, v{vT3}, 4, v{vCo+j}
v_add_u32 v{vCo+j}, s{sT2}, v{vCo+j}""")
        if j & 3: a(f"v_subrev_u32 v{vCo+j}, {1024*(j&3)}, v{vCo+j}")
    a("s_waitcnt lgkmcnt(0)")
    srd(a, R_A, S_X, 2621440); srd(a, R_WS, S_WS, WS_END)
    a(f"""s_cmp_lt_u32 s3, 2
s_cselect_b32 s{R_B}, s{S_HRE}, s{S_HIM}
s_cselect_b32 s{R_B+1}, s{S_HRE+1}, s{S_HIM+1}
s_mov_b32 s{R_B+2}, 819200
s_mov_b32 s{R_B+3}, 0x20000""")
    a(f"""s_cmp_lt_u32 s3, 2
s_cselect_b32 s{R_C}, s{S_HRE}, s{S_GATE}
s_cselect_b32 s{R_C+1}, s{S_HRE+1}, s{S_GATE+1}
s_mov_b32 s{R_C+3}, 0x20000
s_cselect_b32 s{sT}, {320*1280}, 0
s_add_u32 s{R_C+2}, s{sT}, 1280
s_and_b32 s{sT2}, s3, 1
s_lshl_b32 s{sT2}, s{sT2}, 10
s_add_u32 s{sT}, s{sT}, s{sT2}
s_lshl_b32 s{sT2}, s3, 10
s_add_u32 m0, s{sT2}, {EXTRA}
v_lshlrev_b32 v{vT3}, 4, v0
buffer_load_dwordx4 v{vT3}, s[{R_C}:{R_C+3}], s{sT} offen lds""")
    def dma(slotreg):
        g = []
        for j in range(4):
            pre = f"s_add_u32 m0, s{slotreg}, s{sM0X}\n" if j == 0 else ""
            g.append(pre + f"buffer_load_dwordx4 v{vXo+j}, s[{R_A}:{R_A+3}], s{sKo} offen offset:{1024*j} lds")
        for j in range(5):
            pre = ""
            if j == 0: pre = f"s_add_u32 m0, s{slotreg}, s{sM0C}\n"
            if j == 4: pre = f"s_add_u32 m0, m0, 4096\n"
            g.append(pre + f"buffer_load_dwordx4 v{vCo+j}, s[{R_B}:{R_B+3}], s{sKo} offen offset:{1024*(j&3)} lds")
        g[-1] += f"\ns_add_u32 s{sKo}, s{sKo}, 128"
        return g
    a(f"""v_and_b32 v{vM}, 15, v0
v_lshrrev_b32 v{vG}, 4, v0
v_lshrrev_b32 v{vT}, 1, v{vM}
s_lshl_b32 s{sT}, s3, 3
v_add_u32 v{vT}, s{sT}, v{vT}
v_lshlrev_b32 v{vT}, 18, v{vT}
v_lshl_add_u32 v{vT}, v{vG}, 3, v{vT}""")
    srd(a, R_C, S_SRE, 8388608); srd(a, R_D, S_SIM, 8388608)
    a(f"""buffer_load_dwordx2 {vr(fRe,2)}, v{vT}, s[{R_C}:{R_C+3}], 0 offen
buffer_load_dwordx2 {vr(fRe+2,2)}, v{vT}, s[{R_C}:{R_C+3}], 0 offen offset:32
buffer_load_dwordx2 {vr(fIm,2)}, v{vT}, s[{R_D}:{R_D+3}], 0 offen
buffer_load_dwordx2 {vr(fIm+2,2)}, v{vT}, s[{R_D}:{R_D+3}], 0 offen offset:32""")
    for c in range(NS):
        a(f"s_mov_b32 s{sWr}, {c*SLOT}")
        for x in dma(sWr): a(x)
    stamp(a, 1)
    a(f"""v_bfe_u32 v{vT}, v{vM}, 1, 3
v_xor_b32 v{vT}, v{vT}, v{vG}
v_lshlrev_b32 v{vT}, 4, v{vT}
v_lshl_add_u32 v{vT}, v{vM}, 7, v{vT}
v_add_u32 v{vXb0}, s{sM0X}, v{vT}
v_xor_b32 v{vXb1}, 64, v{vXb0}
v_add_u32 v{vCb0}, 16384, v{vT}
v_xor_b32 v{vCb1}, 64, v{vCb0}
v_and_b32 v{vT}, 1, v0
v_lshlrev_b32 v{vT}, 11, v{vT}
v_lshl_add_u32 v{vT}, v{vG}, 4, v{vT}
v_add_u32 v{vEa}, {EXTRA}, v{vT}
v_mov_b32 v{vXa0}, v{vXb0}
v_mov_b32 v{vXa1}, v{vXb1}
v_mov_b32 v{vCa0}, v{vCb0}
v_mov_b32 v{vCa1}, v{vCb1}""")
    for i in range(88): a(f"v_mov_b32 v{acc+i}, 0")
    def reads(fs, s):
        b = F[fs]; r = []
        for rt in range(2):
            r.append(f"ds_read_b128 {vr(b+4*rt,4)}, v{vXa1 if s else vXa0} offset:{2048*rt}")
        for ct in range(10):
            r.append(f"ds_read_b128 {vr(b+8+4*ct,4)}, v{vCa1 if s else vCa0} offset:{2048*ct}")
        r.append(f"ds_read_b128 {vr(b+48,4)}, v{vEa} offset:{64*s}")
        return r
    def mfmas(fs):
        b = F[fs]; m = []
        for ct in range(11):
            for rt in range(2):
                c = vr(A(ct, rt), 4)
                m.append(f"{MF} {c}, {vr(b+4*rt,4)}, {vr(b+8+4*ct,4)}, {c}")
        return m
    def chunk(do_dma, vm, last):
        a("s_waitcnt lgkmcnt(0)")
        interleave(a, mfmas(0), reads(1, 1))
        if last:
            a("s_waitcnt lgkmcnt(0)\ns_barrier")
            for x in mfmas(1): a(x)
            return
        a(f"""s_mov_b32 s{sWr}, s{sRd}
s_add_u32 s{sRd}, s{sRd}, {SLOT}
s_cmp_eq_u32 s{sRd}, {NS*SLOT}
s_cselect_b32 s{sRd}, 0, s{sRd}
v_add_u32 v{vXa0}, s{sRd}, v{vXb0}
v_add_u32 v{vXa1}, s{sRd}, v{vXb1}
v_add_u32 v{vCa0}, s{sRd}, v{vCb0}
v_add_u32 v{vCa1}, s{sRd}, v{vCb1}
v_add_u32 v{vEa}, 128, v{vEa}
s_waitcnt vmcnt({vm}) lgkmcnt(0)
s_barrier""")
        fl = reads(0, 0)
        if do_dma:
            d = dma(sWr); fl2 = []
            for i in range(max(len(fl), len(d))):
                if i < len(fl): fl2.append(fl[i])
                if i < len(d): fl2.append(d[i])
            fl = fl2
        interleave(a, mfmas(1), fl)
    a(f"""s_mov_b32 s{sRd}, 0
s_mov_b32 s{sC}, 0
s_waitcnt vmcnt(27)
s_barrier""")
    stamp(a, 2)
    for x in reads(0, 0): a(x)
    a.label('D_LOOP')
    chunk(True, 18, False)
    a(f"""s_add_u32 s{sC}, s{sC}, 1
s_cmp_lt_u32 s{sC}, 6
s_cbranch_scc1 D_LOOP""")
    chunk(False, 18, False)
    chunk(False, 9, False)
    chunk(False, 0, False)
    chunk(False, 0, True)
    stamp(a, 3)
    def pk(d, s): return f"v_cvt_pk_bf16_f32 v{d}, v{s}, v{s+1}\nv_cvt_pk_bf16_f32 v{d+1}, v{s+2}, v{s+3}"
    A1, A2 = F[1], F[1] + 4
    a(f"""v_and_b32 v{vT}, 1, v0
v_cmp_eq_u32 vcc, 1, v{vT}
s_mul_i32 s{sT}, s3, {11*1024}
v_lshlrev_b32 v{vT2}, 4, v0
v_add_u32 v{vT3}, s{sT}, v{vT2}""")
    U = F[0]
    for ct in range(11):
        a(pk(U+4*ct, A(ct, 0))); a(pk(U+4*ct+2, A(ct, 1)))
        a(f"ds_write_b128 v{vT3}, {vr(U+4*ct,4)} offset:{1024*ct}")
    for q in range(4):
        a(f"""v_cndmask_b32 v{A1+q}, v{fRe+q}, v{fIm+q}, vcc
v_xor_b32 v{fIm+q}, 0x80008000, v{fIm+q}
v_cndmask_b32 v{A2+q}, v{fIm+q}, v{fRe+q}, vcc""")
    a(f"""s_cmp_eq_u32 s{sCP}, 0
s_cselect_b32 s{sT}, 1, 99
v_cmp_eq_u32 vcc, s{sT}, v{vM}
v_lshlrev_b32 v{vT}, 10, v{vG}
v_mov_b32 v{vXa0}, {OOB}
v_cndmask_b32 v{vT}, v{vXa0}, v{vT}, vcc
s_lshl_b32 s{sT}, s{sN2}, 2
s_add_u32 s{sT}, s{sT}, {WS_GATE}
s_add_u32 s{sT2}, s{sT}, 4096""")
    for rt in range(2):
        for i in range(4):
            a(f"buffer_store_dword v{A(10,rt)+i}, v{vT}, s[{R_WS}:{R_WS+3}], s{sT+rt} offen offset:{256*i}")
    vGo, vGe = vXa1, vCa0
    a(f"""s_lshl_b32 s{sT}, s3, 7
s_lshl_b32 s{sT2}, s{sA}, 1
s_add_u32 s{sT}, s{sT}, s{sT2}
s_add_u32 s{sT}, s{sT}, s{sP}
s_mul_i32 s{sT}, s{sT}, {GP*16}
s_add_u32 s{sT}, s{sT}, {WS_G}
v_mul_u32_u24 v{vGe}, {32*GP*16}, v{vG}
v_add_u32 v{vGe}, s{sT}, v{vGe}
s_mul_i32 s{sT2}, s{sCP}, 1280
v_lshl_add_u32 v{vGo}, v{vM}, 4, v{vGe}
v_add_u32 v{vGo}, s{sT2}, v{vGo}
v_add_u32 v{vGe}, {320*16}, v{vGe}
s_cmp_eq_u32 s{sCP}, 0
s_cselect_b32 s{sT}, 0, 99
v_cmp_eq_u32 vcc, s{sT}, v{vM}
v_cndmask_b32 v{vGe}, v{vXa0}, v{vGe}, vcc
s_mov_b32 s{sT}, 0
s_mov_b32 s{sT2}, {16*GP*16}
s_waitcnt lgkmcnt(0)
s_barrier""")
    UB = [F[0], F[1] + 8]
    def rd(ct):
        b = UB[ct & 1]; r = []
        for w in range(4):
            if ct < 5:
                r.append(f"ds_read_b128 {vr(b+8*w,4)}, v{vT2} offset:{w*11264+1024*ct}")
                r.append(f"ds_read_b128 {vr(b+8*w+4,4)}, v{vT2} offset:{w*11264+1024*(ct+5)}")
            else:
                r.append(f"ds_read_b128 {vr(b+8*w,4)}, v{vT2} offset:{w*11264+1024*10}")
        return r
    def fin(ct):
        d = acc + 24*(ct % 3); o = d + 16
        for w in range(4):
            a(f"v_cvt_pk_bf16_f32 v{o+w}, v{d+4*w}, v{d+4*w+1}\nv_cvt_pk_bf16_f32 v{o+4+w}, v{d+4*w+2}, v{d+4*w+3}")
        vo, off = (vGo, 256*ct) if ct < 5 else (vGe, 0)
        a(f"buffer_store_dwordx4 {vr(o,4)}, v{vo}, s[{R_WS}:{R_WS+3}], s{sT} offen offset:{off}")
        a(f"buffer_store_dwordx4 {vr(o+4,4)}, v{vo}, s[{R_WS}:{R_WS+3}], s{sT2} offen offset:{off}")
    for x in rd(0): a(x)
    for ct in range(6):
        a("s_waitcnt lgkmcnt(0)")
        if ct < 5:
            for x in rd(ct+1): a(x)
        b = UB[ct & 1]; d = acc + 24*(ct % 3)
        for w in range(4): a(f"{MF} {vr(d+4*w,4)}, {vr(A1,4)}, {vr(b+8*w,4)}, 0")
        if ct < 5:
            for w in range(4): a(f"{MF} {vr(d+4*w,4)}, {vr(A2,4)}, {vr(b+8*w+4,4)}, {vr(d+4*w,4)}")
        if ct: fin(ct-1)
    fin(5)
    stamp(a, 4)
    stamp_flush(a, 0, vT)
    return V.hi

def k2():
    a = Asm()
    prologue_common(a, 'K2_END')
    V = RegAlloc('v', 2, 256)
    sC, sK1, sKs, sT, sT2, sSg, sU = range(48, 55)
    vM, vG, vT, vT2, vT3, vRow, vOo, vTw, vGl, vWa0, vWa1, vGa, vOut = [V.alloc() for _ in range(13)]
    vWo = V.alloc(5); vGo = V.alloc(5)
    fO = V.alloc(80, 4); tRe = V.alloc(8, 4); tIm = V.alloc(8, 4); fT = V.alloc(16, 4)
    accB = V.alloc(20, 4); accY = V.alloc(20, 4)
    FW = [V.alloc(20, 4), V.alloc(20, 4)]
    GBASE = 102400
    a(f"""s_lshr_b32 s{sC}, s2, 3
s_lshr_b32 s{sT}, s{sC}, 3
s_and_b32 s{sC}, s{sC}, 7
s_and_b32 s{sT2}, s2, 7
s_lshl_b32 s{sT2}, s{sT2}, 1
s_lshr_b32 s{sK1}, s{sT}, 1
s_add_u32 s{sK1}, s{sK1}, s{sT2}
s_sub_u32 s{sT2}, 32, s{sK1}
s_cmp_eq_u32 s{sK1}, 0
s_cselect_b32 s{sT2}, 16, s{sT2}
s_bitcmp1_b32 s{sT}, 0
s_cselect_b32 s{sK1}, s{sT2}, s{sK1}
s_sub_u32 s{sKs}, 32, s{sK1}
s_and_b32 s{sKs}, s{sKs}, 31
s_cmp_lt_u32 s{sC}, 4
s_cselect_b32 s{sKs}, s{sK1}, s{sKs}
s_cselect_b32 s{sSg}, 0x80008000, 0
v_and_b32 v{vM}, 15, v0
v_lshrrev_b32 v{vG}, 4, v0
s_lshl_b32 s{sT}, s3, 9
s_add_u32 s{sT}, s{sT}, s{sK1}
v_lshlrev_b32 v{vRow}, 5, v{vM}
v_add_u32 v{vRow}, s{sT}, v{vRow}
v_mul_u32_u24 v{vOut}, 1280, v{vRow}
v_lshl_add_u32 v{vOo}, v{vG}, 4, v{vOut}
v_lshlrev_b32 v{vTw}, 12, v{vRow}
v_lshl_add_u32 v{vTw}, v{vG}, 5, v{vTw}
v_lshlrev_b32 v{vRow}, 2, v{vRow}""")
    assert all((q*6554) >> 16 == q//10 for q in range(320))
    assert all((q*820) >> 16 == q//80 for q in range(320))
    GB = 4096
    for j in range(5):
        a(f"""v_add_u32 v{vT}, {64*j}, v0
v_mul_u32_u24 v{vT2}, 6554, v{vT}
v_lshrrev_b32 v{vT2}, 16, v{vT2}
v_mul_u32_u24 v{vT2}, 1120, v{vT2}
v_lshl_add_u32 v{vWo+j}, v{vT}, 4, v{vT2}""")
        if j & 3: a(f"v_subrev_u32 v{vWo+j}, {1024*(j&3)}, v{vWo+j}")
    a(f"""s_mul_i32 s{sT}, s{sC}, 80
s_sub_u32 s{sT2}, 640, s{sT}
s_cmp_lt_u32 s{sC}, 4
s_cselect_b32 s{sT}, s{sT}, s{sT2}
s_cselect_b32 s{sT2}, 16, -16
s_lshl_b32 s{sU}, s{sKs}, 2
s_add_u32 s{sU}, s{sU}, s3
s_mul_i32 s{sU}, s{sU}, {4*GP}
s_add_u32 s{sT}, s{sT}, s{sU}
s_lshl_b32 s{sT}, s{sT}, 4
s_add_u32 s{sT}, s{sT}, {WS_G}""")
    for j in range(5):
        a(f"""v_add_u32 v{vT}, {64*j}, v0
v_mul_u32_u24 v{vT2}, 820, v{vT}
v_lshrrev_b32 v{vT2}, 16, v{vT2}
v_mul_u32_u24 v{vT3}, 80, v{vT2}
v_sub_u32 v{vT}, v{vT}, v{vT3}
v_mul_i32_i24 v{vT}, s{sT2}, v{vT}
v_mul_u32_u24 v{vT2}, {GP*16}, v{vT2}
v_add3_u32 v{vGo+j}, v{vT}, v{vT2}, s{sT}""")
        if j & 3: a(f"v_subrev_u32 v{vGo+j}, {1024*(j&3)}, v{vGo+j}")
    a("s_waitcnt lgkmcnt(0)")
    srd(a, R_A, S_WO, 819200); srd(a, R_WS, S_WS, WS_END); srd(a, R_B, S_SRE, 8388608); srd(a, R_C, S_SIM, 8388608)
    a(f"""s_mul_i32 s{sU}, s3, {32*1280}
s_mul_i32 s{sT}, s{sC}, 160
s_add_u32 s{sU}, s{sU}, s{sT}
s_mul_i32 s{sT2}, s3, 5120""")
    for r in range(5):
        for j in range(5):
            if j == 0: a(f"s_add_u32 m0, s{sT2}, {r*20480}")
            if j == 4: a("s_add_u32 m0, m0, 4096")
            a(f"buffer_load_dwordx4 v{vWo+j}, s[{R_A}:{R_A+3}], s{sU} offen offset:{1024*(j&3)} lds")
        a(f"s_add_u32 s{sU}, s{sU}, {128*1280}")
        for u in range(4*r, 4*r+4):
            a(f"buffer_load_dwordx4 {vr(fO+4*u,4)}, v{vOo}, s[{R_WS}:{R_WS+3}], 0 offen offset:{64*u}")
    for j in range(5):
        if j == 0: a(f"s_add_u32 m0, s{sT2}, {GBASE}")
        if j == 4: a("s_add_u32 m0, m0, 4096")
        a(f"buffer_load_dwordx4 v{vGo+j}, s[{R_WS}:{R_WS+3}], 0 offen offset:{1024*(j&3)} lds")
    a(f"""buffer_load_dwordx4 {vr(tRe,4)}, v{vTw}, s[{R_B}:{R_B+3}], 0 offen
buffer_load_dwordx4 {vr(tRe+4,4)}, v{vTw}, s[{R_B}:{R_B+3}], 0 offen offset:16
buffer_load_dwordx4 {vr(tIm,4)}, v{vTw}, s[{R_C}:{R_C+3}], 0 offen
buffer_load_dwordx4 {vr(tIm+4,4)}, v{vTw}, s[{R_C}:{R_C+3}], 0 offen offset:16
s_mov_b32 s{sT2}, {WS_GATE}
buffer_load_dword v{vGl}, v{vRow}, s[{R_WS}:{R_WS+3}], s{sT2} offen""")
    stamp(a, 1)
    srd(a, R_A, S_OUT, 2621440)
    a(f"""v_lshrrev_b32 v{vT}, 2, v0
v_mul_u32_u24 v{vT}, 160, v{vT}
v_and_b32 v{vT2}, 3, v0
v_lshl_add_u32 v{vWa0}, v{vT2}, 3, v{vT}
v_add_u32 v{vWa1}, 51200, v{vWa0}
v_mul_u32_u24 v{vGa}, 5120, v{vG}
v_lshl_add_u32 v{vGa}, v{vM}, 4, v{vGa}
v_add_u32 v{vGa}, {GBASE}, v{vGa}
v_lshl_add_u32 v{vOut}, v{vG}, 3, v{vOut}
v_add_u32 v{vOut}, s{sT}, v{vOut}""")
    def reads(u):
        b = FW[u & 1]; r = []
        if u < 20:
            reg, base = (vWa0, u*5120) if u < 10 else (vWa1, (u-10)*5120)
            for ct in range(5):
                for h in range(2):
                    r.append(f"ds_read_b64_tr_b16 {vr(b+4*ct+2*h,2)}, v{reg} offset:{base+h*2560+32*ct}")
        else:
            for ct in range(5):
                r.append(f"ds_read_b128 {vr(b+4*ct,4)}, v{vGa} offset:{(u-20)*1280+256*ct}")
        return r
    def mfmas(u):
        b = FW[u & 1]; m = []
        for ct in range(5):
            if u < 20:
                c = vr(accB+4*ct, 4); B = vr(fO+4*u, 4)
            else:
                c = vr(accY+4*ct, 4); B = vr(fT+4*(u-20), 4)
            m.append(f"{MF} {c}, {vr(b+4*ct,4)}, {B}, {'0' if u in (0,20) else c}")
        return m
    def gate_wait(u):
        r = u // 4
        left = (4-r)*9 + 10 if r < 5 else 0
        a(f"s_waitcnt vmcnt({left})\ns_barrier")
    gate_wait(0)
    stamp(a, 2)
    for x in reads(0): a(x)
    for u in range(24):
        if u+1 < 24 and (u+1) % 4 == 0:
            gate_wait(u+1)
            if u+1 == 20:
                a(f"s_mov_b32 s{sT}, 0x05040100\ns_mov_b32 s{sT2}, 0x07060302")
                for q in range(8): a(f"v_xor_b32 v{tIm+q}, s{sSg}, v{tIm+q}")
                for uu in range(4):
                    for w in range(4):
                        src = 4*(uu >> 1) + w
                        a(f"v_perm_b32 v{fT+4*uu+w}, v{tIm+src}, v{tRe+src}, s{sT + (uu & 1)}")
                a(f"""v_mul_f32 v{vGl}, 0xbfb8aa3b, v{vGl}
v_exp_f32 v{vGl}, v{vGl}
v_add_f32 v{vGl}, 1.0, v{vGl}
v_rcp_f32 v{vGl}, v{vGl}""")
        a("s_waitcnt lgkmcnt(0)")
        interleave(a, mfmas(u), reads(u+1) if u+1 < 24 else [], per=2)
    stamp(a, 3)
    for ct in range(5):
        for r in range(4):
            a(f"v_sub_f32 v{accY+4*ct+r}, v{accY+4*ct+r}, v{accB+4*ct+r}")
            a(f"v_fma_f32 v{accB+4*ct+r}, v{vGl}, v{accY+4*ct+r}, v{accB+4*ct+r}")
        a(f"""v_cvt_pk_bf16_f32 v{accY+4*ct}, v{accB+4*ct}, v{accB+4*ct+1}
v_cvt_pk_bf16_f32 v{accY+4*ct+1}, v{accB+4*ct+2}, v{accB+4*ct+3}
buffer_store_dwordx2 {vr(accY+4*ct,2)}, v{vOut}, s[{R_A}:{R_A+3}], 0 offen offset:{32*ct}""")
    stamp(a, 4)
    stamp_flush(a, 1, vT)
    a.label('K2_END')
    a('s_endpgm')
    return a, V.hi

def kernel_text(name, a):
    return f""".globl {name}
.p2align 8
.type {name},@function
{name}:
{a.text()}"""

def desc(name, nv):
    nv = (nv + 7)//8*8
    return f""".p2align 6
.amdhsa_kernel {name}
  .amdhsa_next_free_vgpr {nv}
  .amdhsa_next_free_sgpr 100
  .amdhsa_accum_offset {nv}
  .amdhsa_group_segment_fixed_size 0
  .amdhsa_kernarg_size 96
  .amdhsa_user_sgpr_count 2
  .amdhsa_user_sgpr_kernarg_segment_ptr 1
  .amdhsa_system_sgpr_workgroup_id_x 1
.end_amdhsa_kernel
"""

a1, h1 = k1(); a2, h2 = k2()
print("pads", a1.pad(), a2.pad(), "vgprs", h1, h2, file=sys.stderr)
txt = f"""; gated mix: FNet (factored DFT) + dilated sliding-window attention.  Generated by work/gen.py
; @launch kernel=stage1_kernel grid=(256,1,1) block=(256,1,1) lds=151552
; @launch kernel=stage2_kernel grid=(256,1,1) block=(256,1,1) lds=122880
.amdgcn_target "amdgcn-amd-amdhsa--gfx950"
.text
{kernel_text('stage1_kernel', a1)}
{kernel_text('stage2_kernel', a2)}
.section .rodata,"a"
{desc('stage1_kernel', h1)}
{desc('stage2_kernel', h2)}
"""
open(OUT, 'w').write(txt)
```

```python
import sys, struct
from asmlib import *
NAME = "gated_mix__spectral_fnet__sliding_local_dilated__prompt"
def opt(name, default):
    for x in sys.argv[1:]:
        if x.startswith(f'--{name}='): return int(x.split('=')[1])
    return default
STAMP = '--stamp' in sys.argv
CLK = '--clk' in sys.argv
PF_W = opt('pfw', 1)
PF_XQ = opt('pfxq', 0)
PF_XD = opt('pfxd', 0)
PF_CS = opt('pfcs', 1)
OUT = [x for x in sys.argv[1:] if x.endswith('.s')]
OUT = OUT[0] if OUT else f"cdna_kernels/{NAME}.s"

WS_O = 0
WS_G = 0x280000
GP = 328
WS_GATE = 0x510000
WS_FLAG = 0x520000
WS_END = 0x530000
WS_STAMP = 0x800000
OOB = 0x80000000
SPIN = 200000
MF = 'v_mfma_f32_16x16x32_bf16'
LDS_BYTES = 153600

S_X, S_SRE, S_SIM, S_HRE, S_HIM, S_BX, S_WQKV, S_WO = 4, 6, 8, 10, 12, 14, 16, 18
S_GATE, S_OUT, S_DBG, S_WS = 20, 22, 24, 26
R_A, R_B, R_WS, R_C, R_D = 28, 32, 36, 40, 44
sP, sCP, sSL, sW4 = 48, 49, 50, 51
sC2, sK1, sKs, sRot = 52, 53, 54, 55
S_ST = 84

def srd(a, r, p, n):
    a(f"s_mov_b32 s{r}, s{p}\ns_mov_b32 s{r+1}, s{p+1}\ns_mov_b32 s{r+2}, {n}\ns_mov_b32 s{r+3}, 0x20000")
def R(r): return f"s[{r}:{r+3}]"
def stamp(a, i):
    if STAMP: a(f"{'s_memtime' if CLK else 's_memrealtime'} s[{S_ST+2*i}:{S_ST+2*i+1}]")
def stamp_flush(a, vtmp):
    if not STAMP: return
    a(f"s_waitcnt vmcnt(0) lgkmcnt(0)")
    stamp(a, 7)
    a(f"""s_mov_b32 s{R_D}, s{S_WS}
s_mov_b32 s{R_D+1}, s{S_WS+1}
s_mov_b32 s{R_D+2}, 0x1000000
s_mov_b32 s{R_D+3}, 0x20000
s_lshl_b32 s70, s2, 3
s_add_u32 s70, s70, s3
s_lshl_b32 s70, s70, 5
s_add_u32 s70, s70, {WS_STAMP}
s_waitcnt lgkmcnt(0)
v_mov_b32 v{vtmp}, 0""")
    for i in range(8):
        a(f"v_mov_b32 v{vtmp+1}, s{S_ST+2*i}")
        a(f"buffer_store_dword v{vtmp+1}, v{vtmp}, {R(R_D)}, s70 offen offset:{4*i}")
    a("s_waitcnt vmcnt(0)")

def interleave(a, mfmas, fillers, start=0, per=1):
    f = list(fillers)
    for i, m in enumerate(mfmas):
        a(m)
        if i >= start:
            for _ in range(per):
                if f: a(f.pop(0))
    for x in f: a(x)
def pk(d, s): return f"v_cvt_pk_bf16_f32 v{d}, v{s}, v{s+1}\nv_cvt_pk_bf16_f32 v{d+1}, v{s+2}, v{s+3}"
def f32(x): return f"{struct.unpack('<I', struct.pack('<f', x))[0]:#x}"

hi_v = [0]

NREG = 7
def pos_of(hh, j):
    return hh*NREG + j if j < NREG else 14 + hh*(10-NREG) + (j-NREG)
def inv_pos(pos):
    for hh in range(2):
        for j in range(10):
            if pos_of(hh, j) == pos: return hh, j
L_OB = [10240*w for w in range(7)] + [102400]
L_G = 112640
L_EX = 133120

def wo_setup(a, vWo, vT, vT2, vT3, sT):
    assert all((q*6554) >> 16 == q//10 for q in range(320))
    for j in range(5):
        a(f"""v_add_u32 v{vT}, {64*j}, v0
v_mul_u32_u24 v{vT2}, 6554, v{vT}
v_lshrrev_b32 v{vT2}, 16, v{vT2}
v_mul_u32_u24 v{vT3}, 10, v{vT2}
v_sub_u32 v{vT}, v{vT}, v{vT3}
v_and_b32 v{vT3}, 19, v{vT2}
v_and_b32 v{vWo+j}, 4, v{vT2}
v_lshl_add_u32 v{vT3}, v{vWo+j}, 1, v{vT3}
v_and_b32 v{vT2}, 8, v{vT2}
v_lshrrev_b32 v{vT2}, 1, v{vT2}
v_add_u32 v{vT3}, v{vT3}, v{vT2}
v_mul_u32_u24 v{vT3}, 1280, v{vT3}
v_lshl_add_u32 v{vWo+j}, v{vT}, 4, v{vT3}""")
        if j & 3: a(f"v_subrev_u32 v{vWo+j}, {1024*(j&3)}, v{vWo+j}")

def wo_dma(a, r, vWo, sT, sT2):
    tab = [inv_pos(4*r + w) for w in range(4)]
    code = [hh*16 + j for hh, j in tab]
    packed = sum(c << (8*w) for w, c in enumerate(code))
    a(f"""s_lshl_b32 s{sT}, s{sW4}, 3
s_lshr_b32 s{sT}, {packed:#x}, s{sT}
s_and_b32 s{sT2}, s{sT}, 15
s_add_u32 s{sT2}, s{sT2}, s{sRot}
s_cmp_ge_u32 s{sT2}, 10
s_cselect_b32 s71, 10, 0
s_sub_u32 s{sT2}, s{sT2}, s71
s_bitcmp1_b32 s{sT}, 4
s_cselect_b32 s71, 10, 0
s_add_u32 s{sT2}, s{sT2}, s71
s_mul_i32 s{sT2}, s{sT2}, {32*1280}
s_mul_i32 s{sT}, s{sC2}, 160
s_add_u32 s{sT2}, s{sT2}, s{sT}
s_mul_i32 s{sT}, s{sW4}, 5120
s_add_u32 m0, s{sT}, {r*20480}""")
    for j in range(5):
        if j == 4: a("s_add_u32 m0, m0, 4096")
        a(f"buffer_load_dwordx4 v{vWo+j}, {R(R_C)}, s{sT2} offen offset:{1024*(j&3)} lds")

def p2_prefetch(a, vT, vT2, vD, sT):
    a(f"""s_lshl_b32 s{sT}, s{sSL}, 2
s_add_u32 s{sT}, s{sT}, s{sW4}
s_mul_i32 s{sT}, s{sT}, 6400
v_lshlrev_b32 v{vT}, 7, v0
v_mov_b32 v{vT2}, {OOB}
v_cmp_gt_u32 vcc, 50, v0
v_cndmask_b32 v{vT}, v{vT2}, v{vT}, vcc
buffer_load_dword v{vD+1}, v{vT}, {R(R_C)}, s{sT} offen
v_mov_b32 v{vT}, 0
buffer_load_dword v{vD}, v{vT}, {R(R_D)}, 0 offen sc1""")
    return 2

def main():
    a = Asm()
    a(f"""s_cmp_ge_u32 s2, 256
s_cbranch_scc1 L_END
s_load_dwordx16 s[4:19], s[0:1], 0
s_load_dwordx8 s[20:27], s[0:1], 64""")
    if STAMP:
        for i in range(8): a(f"s_mov_b64 s[{S_ST+2*i}:{S_ST+2*i+1}], 0")
    stamp(a, 0)
    a(f"""v_lshrrev_b32 v1, 6, v0
v_and_b32 v0, 63, v0
v_readfirstlane_b32 s3, v1
s_and_b32 s{sP}, s2, 1
s_lshr_b32 s{sCP}, s2, 1
s_and_b32 s{sCP}, s{sCP}, 3
s_lshr_b32 s{sSL}, s2, 3
s_and_b32 s{sW4}, s3, 3
s_and_b32 s{sC2}, s{sSL}, 7
s_lshr_b32 s70, s{sSL}, 4
s_lshl_b32 s70, s70, 1
s_lshl_b32 s{sK1}, s{sCP}, 2
s_add_u32 s{sK1}, s{sK1}, s70
s_add_u32 s{sK1}, s{sK1}, s{sP}
s_sub_u32 s70, 32, s{sK1}
s_cmp_eq_u32 s{sK1}, 0
s_cselect_b32 s70, 16, s70
s_bitcmp1_b32 s{sSL}, 3
s_cselect_b32 s{sK1}, s70, s{sK1}
s_sub_u32 s{sKs}, 32, s{sK1}
s_and_b32 s{sKs}, s{sKs}, 31
s_cmp_lt_u32 s{sC2}, 4
s_cselect_b32 s{sKs}, s{sK1}, s{sKs}
s_cmp_ge_u32 s{sC2}, 5
s_cselect_b32 s70, 5, 0
s_sub_u32 s{sRot}, s{sC2}, s70
s_lshl_b32 s{sRot}, s{sRot}, 1
s_cmp_ge_u32 s{sSL}, 24
s_cbranch_scc1 L_DFT
s_cmp_ge_u32 s3, 4
s_cbranch_scc1 L_QLOAD""")
    qkv_compute(a)
    a.label('L_QLOAD'); qkv_loader(a)
    a.label('L_DFT')
    a("s_cmp_ge_u32 s3, 4\ns_cbranch_scc1 L_DLOAD")
    dft_compute(a)
    a.label('L_DLOAD'); dft_loader(a)
    phase2(a)
    a.label('L_END')
    a('s_endpgm')
    return a

QSLOT = 45056
def qslot(c): return ((c + 2) % 3) * QSLOT

def qkv_scalars(a, sHG, sI, sJ0, sT):
    a(f"""s_lshl_b32 s{sHG}, s{sCP}, 1
s_and_b32 s{sT}, s{sSL}, 1
s_add_u32 s{sHG}, s{sHG}, s{sT}
s_lshr_b32 s{sI}, s{sSL}, 1
s_mul_i32 s{sJ0}, s{sI}, 85""")

def loader_finish(a, vD):
    lab = f"L_CLR{len(a.items)}"
    a(f"""s_mov_b32 s71, 0
{lab}:
s_waitcnt vmcnt(0)
v_readfirstlane_b32 s70, v{vD}
s_cmp_lg_u32 s70, 0
s_cbranch_scc1 L_P2
s_add_u32 s71, s71, 1
s_cmp_gt_u32 s71, {SPIN}
s_cbranch_scc1 L_P2
v_mov_b32 v{vD+1}, 0
buffer_load_dword v{vD}, v{vD+1}, {R(R_D)}, 0 offen sc1
s_branch {lab}""")

def qkv_loader(a):
    V = RegAlloc('v', 2, 256)
    sHG, sI, sJ0, sXo, sWo, sWr, sC, sM0X, sM0W, sT, sT2 = range(56, 67)
    vM, vT, vT2, vT3 = [V.alloc() for _ in range(4)]
    vXo = V.alloc(3); vWo = V.alloc(8); vOo = V.alloc(5); vD = V.alloc(2)
    qkv_scalars(a, sHG, sI, sJ0, sT)
    a(f"""s_lshl_b32 s{sXo}, s{sJ0}, 1
s_add_u32 s{sXo}, s{sXo}, s{sP}
s_mul_i32 s{sXo}, s{sXo}, 1280
s_mul_i32 s{sWo}, s{sHG}, 160
s_mul_i32 s{sM0X}, s{sW4}, 3072
s_lshl_b32 s{sM0W}, s{sW4}, 13
s_add_u32 s{sM0W}, s{sM0W}, 12288
s_mul_i32 s{sT}, s{sW4}, 24
v_lshrrev_b32 v{vT}, 3, v0
v_add_u32 v{vT}, s{sT}, v{vT}
v_and_b32 v{vT2}, 7, v0""")
    for j in range(3):
        a(f"""v_add_u32 v{vT3}, {8*j}, v{vT}
v_mul_u32_u24 v{vXo+j}, 2560, v{vT3}
v_bfe_u32 v{vT3}, v{vT3}, 1, 3
v_xor_b32 v{vT3}, v{vT3}, v{vT2}
v_lshl_add_u32 v{vXo+j}, v{vT3}, 4, v{vXo+j}""")
        if j: a(f"v_subrev_u32 v{vXo+j}, {1024*j}, v{vXo+j}")
    assert all((q*2185) >> 16 == q//30 for q in range(512))
    assert all((q*26) >> 8 == q//10 for q in range(30))
    a(f"s_mul_i32 s{sT}, s{sW4}, {16*3840}")
    for j in range(8):
        a(f"""v_add_u32 v{vT}, {64*j}, v0
v_mul_u32_u24 v{vT2}, 2185, v{vT}
v_lshrrev_b32 v{vT2}, 16, v{vT2}
v_mul_u32_u24 v{vT3}, 30, v{vT2}
v_sub_u32 v{vT}, v{vT}, v{vT3}
v_mul_u32_u24 v{vT3}, 26, v{vT}
v_lshrrev_b32 v{vT3}, 8, v{vT3}
v_mul_u32_u24 v{vT3}, 1120, v{vT3}
v_lshl_add_u32 v{vT}, v{vT}, 4, v{vT3}
v_and_b32 v{vT3}, 3, v{vT2}
v_and_b32 v{vM}, 4, v{vT2}
v_lshl_add_u32 v{vT3}, v{vM}, 1, v{vT3}
v_and_b32 v{vM}, 8, v{vT2}
v_lshrrev_b32 v{vM}, 1, v{vM}
v_add_u32 v{vT3}, v{vT3}, v{vM}
v_mul_u32_u24 v{vT3}, 3840, v{vT3}
v_add3_u32 v{vWo+j}, v{vT}, v{vT3}, s{sT}""")
        if j & 3: a(f"v_subrev_u32 v{vWo+j}, {1024*(j&3)}, v{vWo+j}")
    a(f"""v_mov_b32 v{vT}, {OOB}
v_cmp_gt_u32 vcc, 32, v0
v_cndmask_b32 v{vWo+7}, v{vT}, v{vWo+7}, vcc
s_waitcnt lgkmcnt(0)""")
    srd(a, R_A, S_X, 2621440); srd(a, R_B, S_WQKV, 2457600); srd(a, R_WS, S_WS, WS_END)
    srd(a, R_C, S_WO, 819200); srd(a, R_D, S_DBG, 256)
    def dma():
        for j in range(3):
            if j == 0: a(f"s_add_u32 m0, s{sWr}, s{sM0X}")
            a(f"buffer_load_dwordx4 v{vXo+j}, {R(R_A)}, s{sXo} offen offset:{1024*j} lds")
        for j in range(8):
            if j == 0: a(f"s_add_u32 m0, s{sWr}, s{sM0W}")
            if j == 4: a(f"s_add_u32 m0, m0, 4096")
            a(f"buffer_load_dwordx4 v{vWo+j}, {R(R_B)}, s{sWo} offen offset:{1024*(j&3)} lds")
        a(f"""s_add_u32 s{sXo}, s{sXo}, 128
s_add_u32 s{sWo}, s{sWo}, {64*3840}
s_add_u32 s{sWr}, s{sWr}, {QSLOT}
s_cmp_eq_u32 s{sWr}, {3*QSLOT}
s_cselect_b32 s{sWr}, 0, s{sWr}""")
    a(f"s_mov_b32 s{sWr}, {qslot(0)}")
    dma(); dma()
    stamp(a, 1)
    a("s_waitcnt vmcnt(11)\ns_barrier")
    dma()
    wo_setup(a, vOo, vT, vT2, vT3, sT)
    a(f"s_mov_b32 s{sC}, 0\nQL_LOOP:\ns_waitcnt vmcnt(11)\ns_barrier")
    dma()
    a(f"s_add_u32 s{sC}, s{sC}, 1\ns_cmp_lt_u32 s{sC}, 7\ns_cbranch_scc1 QL_LOOP")
    n = p2_prefetch(a, vT, vT2, vD, sT)
    a(f"s_waitcnt vmcnt({11+n})\ns_barrier")
    wo_dma(a, 0, vOo, sT, sT2); wo_dma(a, 1, vOo, sT, sT2)
    a(f"s_waitcnt vmcnt({10+n})\ns_barrier")
    stamp(a, 2)
    wo_dma(a, 2, vOo, sT, sT2); wo_dma(a, 3, vOo, sT, sT2)
    a("s_barrier")
    wo_dma(a, 4, vOo, sT, sT2)
    loader_finish(a, vD)

def clear_flags(a, vT, vZ):
    a(f"""s_or_b32 s70, s2, s3
s_cmp_lg_u32 s70, 0
s_cbranch_scc1 L_NOCLR
v_lshlrev_b32 v{vT}, 7, v0
s_mov_b32 s70, {WS_FLAG}""")
    for r in range(8):
        a(f"buffer_store_dwordx4 {vr(vZ,4)}, v{vT}, {R(R_WS)}, s70 offen sc1\ns_add_u32 s70, s70, 8192")
    srd(a, R_D, S_DBG, 256)
    a(f"""v_mov_b32 v{vT}, 1
s_waitcnt vmcnt(0)
buffer_store_dword v{vT}, v{vZ}, {R(R_D)}, 0 offen sc1
L_NOCLR:""")

def qkv_compute(a):
    V = RegAlloc('v', 2, 256)
    sHG, sI, sJ0, sRd, sC, sT, sT2 = range(56, 63)
    vM, vG, vT, vT2, vT3 = [V.alloc() for _ in range(5)]
    vXb0, vXb1, vWb, vDb = [V.alloc() for _ in range(4)]
    vXa0, vXa1, vWa, vDa = [V.alloc() for _ in range(4)]
    acc = V.alloc(96, 4)
    F = [V.alloc(40, 4), V.alloc(40, 4)]
    cI = V.alloc(4, 4); cOne = V.alloc(4, 4); cBo = V.alloc(4, 4); cBp = V.alloc(4, 4); cMk = V.alloc(2, 2)
    vOC, vOD = V.alloc(), V.alloc()
    hi_v[0] = max(hi_v[0], V.hi)
    def A(rt, t): return acc + 16*rt + 4*t
    qkv_scalars(a, sHG, sI, sJ0, sT)
    assert all((q*7282) >> 16 == q//9 for q in range(5800))
    assert all((q*11) >> 5 == q//3 for q in range(9))
    a(f"""s_mul_i32 s{sT}, s{sW4}, 24
s_add_u32 s{sT}, s{sT}, s{sSL}
s_mul_i32 s{sT}, s{sT}, 60
v_add_u32 v{vT}, s{sT}, v0
v_mul_u32_u24 v{vT2}, 7282, v{vT}
v_lshrrev_b32 v{vT2}, 16, v{vT2}
v_mul_u32_u24 v{vT3}, 9, v{vT2}
v_sub_u32 v{vT}, v{vT}, v{vT3}
v_mul_u32_u24 v{vT3}, 11, v{vT}
v_lshrrev_b32 v{vT3}, 5, v{vT3}
v_mul_u32_u24 v{vT3}, {1280-384}, v{vT3}
v_lshl_add_u32 v{vT}, v{vT}, 7, v{vT3}
v_mul_u32_u24 v{vT2}, 3840, v{vT2}
v_add_u32 v{vT}, v{vT}, v{vT2}
v_mov_b32 v{vT2}, {OOB}
v_cmp_gt_u32 vcc, 60, v0
v_cndmask_b32 v{vT}, v{vT2}, v{vT}, vcc
s_mul_i32 s{sT}, s{sCP}, 320
s_and_b32 s{sT}, s{sT}, 0xffffff80""")
    if PF_XQ:
        a(f"""s_and_b32 s{sT2}, s{sSL}, 1
s_mul_i32 s{sT2}, s{sT2}, 48
s_add_u32 s{sT2}, s{sT2}, s{sJ0}
s_lshl_b32 s{sT2}, s{sT2}, 1
s_add_u32 s{sT2}, s{sT2}, s{sP}
s_mul_i32 s{sT2}, s{sT2}, 1280
s_lshl_b32 s70, s{sW4}, 7
s_add_u32 s{sT2}, s{sT2}, s70
v_mul_u32_u24 v{vT3}, 2560, v0
v_cmp_gt_u32 vcc, 48, v0
v_cndmask_b32 v{vT3}, v{vT2}, v{vT3}, vcc""")
    a("s_waitcnt lgkmcnt(0)")
    srd(a, R_B, S_WQKV, 2457600); srd(a, R_A, S_X, 2621440)
    if PF_XQ:
        a(f"buffer_load_dword v{F[0]+1}, v{vT3}, {R(R_A)}, s{sT2} offen")
    if PF_W: a(f"buffer_load_dword v{F[0]}, v{vT}, {R(R_B)}, s{sT} offen")
    if PF_XQ > 4:
        a(f"buffer_load_dword v{F[0]+1}, v{vT3}, {R(R_A)}, s{sT2} offen offset:512")
    if PF_XQ > 8:
        a(f"s_cmp_ge_u32 s{sW4}, 2\ns_cbranch_scc1 L_PFX\nbuffer_load_dword v{F[0]+1}, v{vT3}, {R(R_A)}, s{sT2} offen offset:1024\nL_PFX:")
    srd(a, R_WS, S_WS, WS_END)
    for i in range(96): a(f"v_mov_b32 v{acc+i}, 0")
    clear_flags(a, vT, acc)
    a(f"""v_and_b32 v{vM}, 15, v0
v_lshrrev_b32 v{vG}, 4, v0
v_bfe_u32 v{vT}, v{vM}, 1, 3
v_xor_b32 v{vT}, v{vT}, v{vG}
v_lshlrev_b32 v{vT}, 4, v{vT}
v_lshl_add_u32 v{vXb0}, v{vM}, 7, v{vT}
v_xor_b32 v{vXb1}, 64, v{vXb0}
v_bfe_u32 v{vT}, v0, 2, 3
v_mul_u32_u24 v{vT}, 480, v{vT}
v_lshrrev_b32 v{vT2}, 5, v0
v_lshl_add_u32 v{vT}, v{vT2}, 13, v{vT}
s_mul_i32 s{sT}, s{sW4}, 40
s_add_u32 s{sT}, s{sT}, 12288
v_add_u32 v{vT}, s{sT}, v{vT}
v_and_b32 v{vT2}, 3, v0
v_lshl_add_u32 v{vWb}, v{vT2}, 3, v{vT}
v_min_u32 v{vT2}, 2, v{vT2}
v_mul_u32_u24 v{vT2}, 160, v{vT2}
v_add3_u32 v{vDb}, v{vT}, v{vT2}, 32
s_mov_b32 s{sRd}, {qslot(0)}
v_add_u32 v{vXa0}, s{sRd}, v{vXb0}
v_add_u32 v{vXa1}, s{sRd}, v{vXb1}
v_add_u32 v{vWa}, s{sRd}, v{vWb}
v_add_u32 v{vDa}, s{sRd}, v{vDb}
v_lshlrev_b32 v{vT}, 2, v{vG}
v_sub_u32 v{vT}, v{vM}, v{vT}
v_mov_b32 v{vT3}, 0xff800000
v_mov_b32 v{cI}, 0
v_mov_b32 v{cI+1}, 0""")
    for r in range(4):
        a(f"""v_subrev_u32 v{vT2}, {r}, v{vT}
v_cmp_gt_u32 vcc, 8, v{vT2}
v_cndmask_b32 v{cBo+r}, v{vT3}, v{cI}, vcc
v_cmp_gt_i32 vcc, -8, v{vT2}
v_cndmask_b32 v{cBp+r}, v{vT3}, v{cI}, vcc
v_mov_b32 v{cOne+r}, 0x3f803f80""")
    for pr in range(2):
        a(f"""v_mov_b32 v{vT2}, 0xffff
v_cmp_le_i32 vcc, {2*pr}, v{vT}
v_cndmask_b32 v{cMk+pr}, 0, v{vT2}, vcc
v_mov_b32 v{vT2}, 0xffff0000
v_cmp_le_i32 vcc, {2*pr+1}, v{vT}
v_cndmask_b32 v{vT2}, 0, v{vT2}, vcc
v_or_b32 v{cMk+pr}, v{cMk+pr}, v{vT2}
v_mov_b32 v{vT2}, 0x3f80
v_cmp_eq_u32 vcc, {2*pr}, v{vT}
v_cndmask_b32 v{cI+2+pr}, 0, v{vT2}, vcc
v_mov_b32 v{vT2}, 0x3f800000
v_cmp_eq_u32 vcc, {2*pr+1}, v{vT}
v_cndmask_b32 v{cI+2+pr}, v{cI+2+pr}, v{vT2}, vcc""")
    a(f"""s_lshl_b32 s{sT}, s{sHG}, 2
s_add_u32 s{sT}, s{sT}, s{sW4}
s_mul_i32 s{sT}, s{sT}, 40
s_lshl_b32 s{sT2}, s{sJ0}, 1
s_add_u32 s{sT2}, s{sT2}, s{sP}
s_mul_i32 s{sT2}, s{sT2}, 1280
s_add_u32 s{sT}, s{sT}, s{sT2}
v_mul_u32_u24 v{vT3}, 2560, v{vM}
v_add_u32 v{vT3}, s{sT}, v{vT3}
v_lshl_add_u32 v{vOC}, v{vG}, 3, v{vT3}
v_add_u32 v{vOD}, 32, v{vT3}
v_mov_b32 v{vT}, {OOB}
v_cmp_le_u32 vcc, 48, v0
v_cndmask_b32 v{vOD}, v{vT}, v{vOD}, vcc""")
    def reads(fs, s):
        b = F[fs]; r = []
        for t, (reg, off) in enumerate(((vWa, 0), (vWa, 160), (vDa, 0), (vWa, 320))):
            for h in range(2):
                r.append(f"ds_read_b64_tr_b16 {vr(b+24+4*t+2*h,2)}, v{reg} offset:{s*16384+h*3840+off}")
        for rt in range(6):
            r.append(f"ds_read_b128 {vr(b+4*rt,4)}, v{vXa1 if s else vXa0} offset:{2048*rt}")
        return r
    def mfmas(fs):
        b = F[fs]; m = []
        for rt in range(6):
            x = vr(b+4*rt, 4)
            for t in range(4):
                w = vr(b+24+4*t, 4); c = vr(A(rt, t), 4)
                m.append(f"{MF} {c}, {w}, {x}, {c}" if t < 3 else f"{MF} {c}, {x}, {w}, {c}")
        return m
    adv = [f"s_add_u32 s{sRd}, s{sRd}, {QSLOT}\ns_cmp_eq_u32 s{sRd}, {3*QSLOT}\ns_cselect_b32 s{sRd}, 0, s{sRd}",
           f"v_add_u32 v{vXa0}, s{sRd}, v{vXb0}", f"v_add_u32 v{vXa1}, s{sRd}, v{vXb1}",
           f"v_add_u32 v{vWa}, s{sRd}, v{vWb}", f"v_add_u32 v{vDa}, s{sRd}, v{vDb}"]
    stamp(a, 1)
    a(f"s_mov_b32 s{sC}, 0\ns_waitcnt vmcnt(0)\ns_barrier")
    stamp(a, 2)
    for x in reads(0, 0): a(x)
    a.label('Q_LOOP')
    a("s_waitcnt lgkmcnt(0)")
    interleave(a, mfmas(0), reads(1, 1) + adv)
    a(f"s_waitcnt lgkmcnt(0)\ns_barrier\ns_cmp_eq_u32 s{sC}, 9\ns_cbranch_scc1 Q_TAIL")
    interleave(a, mfmas(1), reads(0, 0) + [f"s_add_u32 s{sC}, s{sC}, 1"])
    a("s_branch Q_LOOP\nQ_TAIL:")
    for x in mfmas(1): a(x)
    stamp(a, 3)
    Kf = F[0]; Qf = F[1]; Vp = F[0] + 24; V4 = F[1] + 24
    for z in (Vp, Vp+1, V4, V4+1): a(f"v_mov_b32 v{z}, 0")
    for rt in range(6):
        a(f"v_mov_b32 v{Qf+4*rt+2}, 0\nv_mov_b32 v{Qf+4*rt+3}, 0")
    for rt in range(6):
        a(pk(Kf+4*rt, A(rt, 1))); a(pk(Kf+4*rt+2, A(rt, 2)))
        a(pk(Qf+4*rt, A(rt, 0))); a(pk(Vp+2+2*rt, A(rt, 3)))
    for rt in range(6):
        a(f"{MF} {vr(A(rt,3),4)}, {vr(Kf+4*rt,4)}, {vr(cI,4)}, 0")
    a("s_mov_b32 s64, -1\ns_mov_b32 s65, 0")
    for rt in range(6):
        for q in range(2): a(f"v_permlane16_swap_b32 v{Qf+4*rt+2+q}, v{Kf+4*rt+2+q}")
    for rt in range(6):
        for q in range(2): a(f"v_cndmask_b32 v{Qf+4*rt+2+q}, 0, v{Qf+4*rt+2+q}, s[64:65]")
    for rt in range(6):
        a(f"{MF} {vr(A(rt,0),4)}, {vr(Kf+4*rt,4)}, {vr(Qf+4*rt,4)}, {vr(cBo,4)}")
        if rt: a(f"{MF} {vr(A(rt,1),4)}, {vr(Kf+4*rt-4,4)}, {vr(Qf+4*rt,4)}, {vr(cBp,4)}")
    for rt in range(6): a(pk(V4+2+2*rt, A(rt, 3)))
    a(f"s_mov_b32 s{sT}, {f32(20**-0.5 * 1.4426950408889634)}")
    for rt in range(1, 6):
        for r in range(4): a(f"v_max_f32 v{A(rt,0)+r}, v{A(rt,0)+r}, v{A(rt,1)+r}")
    for rt in range(6):
        s = A(rt, 0); m = A(rt, 2)
        a(f"v_max3_f32 v{m}, v{s}, v{s+1}, v{s+2}\nv_max_f32 v{m}, v{m}, v{s+3}")
    for sw in ('v_permlane32_swap_b32', 'v_permlane16_swap_b32'):
        for rt in range(6): a(f"v_mov_b32 v{A(rt,2)+1}, v{A(rt,2)}")
        for rt in range(6): a(f"{sw} v{A(rt,2)}, v{A(rt,2)+1}")
        for rt in range(6): a(f"v_max_f32 v{A(rt,2)}, v{A(rt,2)}, v{A(rt,2)+1}")
    for rt in range(6): a(f"v_mul_f32 v{A(rt,2)}, s{sT}, v{A(rt,2)}")
    for rt in range(6):
        for r in range(4): a(f"v_fma_f32 v{A(rt,0)+r}, v{A(rt,0)+r}, s{sT}, -v{A(rt,2)}")
    for rt in range(6):
        for r in range(4): a(f"v_exp_f32 v{A(rt,0)+r}, v{A(rt,0)+r}")
    for rt in range(6): a(pk(Qf+4*rt, A(rt, 0)))
    for rt in range(6):
        for q in range(2): a(f"v_and_b32 v{Qf+4*rt+2+q}, v{cMk+q}, v{Qf+4*rt+q}")
    for rt in range(6):
        for q in range(2): a(f"v_xor_b32 v{Qf+4*rt+q}, v{Qf+4*rt+2+q}, v{Qf+4*rt+q}")
    for rt in range(6):
        p = vr(Qf+4*rt, 4)
        a(f"{MF} {vr(A(rt,2),4)}, {vr(cOne,4)}, {p}, 0")
        a(f"{MF} {vr(A(rt,0),4)}, {vr(Vp+2*rt,4)}, {p}, 0")
        a(f"{MF} {vr(A(rt,1),4)}, {vr(V4+2*rt,4)}, {p}, 0")
    vOC0, vOD0, vOC5, vOD5 = vXb0, vXb1, vWb, vDb
    a(f"""s_cmp_eq_u32 s{sI}, 0
s_cselect_b32 s{sT2}, 0, 7
v_mov_b32 v{vT}, {OOB}
v_cmp_le_u32 vcc, s{sT2}, v{vM}
v_cndmask_b32 v{vOC0}, v{vT}, v{vOC}, vcc
v_cndmask_b32 v{vOD0}, v{vT}, v{vOD}, vcc
s_cmp_eq_u32 s{sI}, 11
s_cselect_b32 s{sT2}, 9, 12
v_cmp_gt_u32 vcc, s{sT2}, v{vM}
v_cndmask_b32 v{vOC5}, v{vT}, v{vOC}, vcc
v_cndmask_b32 v{vOD5}, v{vT}, v{vOD}, vcc""")
    for rt in range(6): a(f"v_rcp_f32 v{A(rt,2)}, v{A(rt,2)}")
    for rt in range(6):
        for r in range(8): a(f"v_mul_f32 v{A(rt,0)+r}, v{A(rt,2)}, v{A(rt,0)+r}")
        a(pk(A(rt, 3), A(rt, 0))); a(pk(A(rt, 3)+2, A(rt, 1)))
        oc, od = (vOC0, vOD0) if rt == 0 else (vOC5, vOD5) if rt == 5 else (vOC, vOD)
        a(f"""s_mov_b32 s{sT2}, {rt*40960}
buffer_store_dwordx2 {vr(A(rt,3),2)}, v{oc}, {R(R_WS)}, s{sT2} offen sc1
buffer_store_dwordx2 {vr(A(rt,3)+2,2)}, v{od}, {R(R_WS)}, s{sT2} offen sc1""")
    a("s_branch L_P2")

DSLOT = 36864; DNS = 4; DEXTRA = DNS*DSLOT; L_U = 102400

def dft_scalars(a, sA, sN2, sT):
    a(f"""s_sub_u32 s{sA}, s{sSL}, 24
s_lshl_b32 s{sN2}, s{sA}, 3
s_lshl_b32 s{sT}, s{sW4}, 1
s_add_u32 s{sN2}, s{sN2}, s{sT}
s_add_u32 s{sN2}, s{sN2}, s{sP}""")

def dft_loader(a):
    V = RegAlloc('v', 2, 256)
    sA, sN2, sKo, sWr, sC, sM0X, sM0C, sT, sT2 = range(56, 65)
    vT, vT2, vT3 = [V.alloc() for _ in range(3)]
    vXo = V.alloc(4); vCo = V.alloc(5); vOo = V.alloc(5); vD = V.alloc(2)
    dft_scalars(a, sA, sN2, sT)
    a(f"""s_lshl_b32 s{sM0X}, s{sW4}, 12
s_mul_i32 s{sM0C}, s{sW4}, 5120
s_add_u32 s{sM0C}, s{sM0C}, 16384
s_mov_b32 s{sKo}, 0
v_lshrrev_b32 v{vT}, 3, v0
v_and_b32 v{vT2}, 7, v0
s_mul_i32 s{sT}, s{sN2}, 1280""")
    for j in range(4):
        a(f"""v_add_u32 v{vT3}, {8*j}, v{vT}
v_mul_u32_u24 v{vXo+j}, {64*1280}, v{vT3}
v_bfe_u32 v{vT3}, v{vT3}, 1, 3
v_xor_b32 v{vT3}, v{vT3}, v{vT2}
v_lshl_add_u32 v{vXo+j}, v{vT3}, 4, v{vXo+j}
v_add_u32 v{vXo+j}, s{sT}, v{vXo+j}""")
        if j: a(f"v_subrev_u32 v{vXo+j}, {1024*j}, v{vXo+j}")
    a(f"""s_and_b32 s{sT}, s{sW4}, 1
s_mul_i32 s{sT}, s{sT}, 40
s_mul_i32 s{sT2}, s{sCP}, {80*1280}
v_add_u32 v{vT}, s{sT}, v{vT}""")
    for j in range(5):
        a(f"""v_add_u32 v{vT3}, {8*j}, v{vT}
v_mul_u32_u24 v{vCo+j}, 1280, v{vT3}
v_bfe_u32 v{vT3}, v{vT3}, 1, 3
v_xor_b32 v{vT3}, v{vT3}, v{vT2}
v_lshl_add_u32 v{vCo+j}, v{vT3}, 4, v{vCo+j}
v_add_u32 v{vCo+j}, s{sT2}, v{vCo+j}""")
        if j & 3: a(f"v_subrev_u32 v{vCo+j}, {1024*(j&3)}, v{vCo+j}")
    a("s_waitcnt lgkmcnt(0)")
    srd(a, R_A, S_X, 2621440); srd(a, R_WS, S_WS, WS_END); srd(a, R_D, S_DBG, 256)
    a(f"""s_cmp_lt_u32 s{sW4}, 2
s_cselect_b32 s{R_B}, s{S_HRE}, s{S_HIM}
s_cselect_b32 s{R_B+1}, s{S_HRE+1}, s{S_HIM+1}
s_mov_b32 s{R_B+2}, 819200
s_mov_b32 s{R_B+3}, 0x20000
s_cselect_b32 s{R_C}, s{S_HRE}, s{S_GATE}
s_cselect_b32 s{R_C+1}, s{S_HRE+1}, s{S_GATE+1}
s_mov_b32 s{R_C+3}, 0x20000
s_cselect_b32 s{sT}, {320*1280}, 0
s_add_u32 s{R_C+2}, s{sT}, 1280
s_and_b32 s{sT2}, s{sW4}, 1
s_lshl_b32 s{sT2}, s{sT2}, 10
s_add_u32 s{sT}, s{sT}, s{sT2}
s_lshl_b32 s{sT2}, s{sW4}, 10
s_add_u32 m0, s{sT2}, {DEXTRA}
v_lshlrev_b32 v{vT3}, 4, v0
buffer_load_dwordx4 v{vT3}, {R(R_C)}, s{sT} offen lds""")
    srd(a, R_C, S_WO, 819200)
    def dma():
        for j in range(4):
            if j == 0: a(f"s_add_u32 m0, s{sWr}, s{sM0X}")
            a(f"buffer_load_dwordx4 v{vXo+j}, {R(R_A)}, s{sKo} offen offset:{1024*j} lds")
        for j in range(5):
            if j == 0: a(f"s_add_u32 m0, s{sWr}, s{sM0C}")
            if j == 4: a(f"s_add_u32 m0, m0, 4096")
            a(f"buffer_load_dwordx4 v{vCo+j}, {R(R_B)}, s{sKo} offen offset:{1024*(j&3)} lds")
        a(f"""s_add_u32 s{sKo}, s{sKo}, 128
s_add_u32 s{sWr}, s{sWr}, {DSLOT}
s_cmp_eq_u32 s{sWr}, {DNS*DSLOT}
s_cselect_b32 s{sWr}, 0, s{sWr}""")
    a(f"s_mov_b32 s{sWr}, 0")
    dma(); dma()
    stamp(a, 1)
    a("s_waitcnt vmcnt(9)\ns_barrier")
    dma(); dma()
    wo_setup(a, vOo, vT, vT2, vT3, sT)
    a(f"s_mov_b32 s{sC}, 0\nDL_LOOP:\ns_waitcnt vmcnt(18)\ns_barrier")
    dma()
    a(f"s_add_u32 s{sC}, s{sC}, 1\ns_cmp_lt_u32 s{sC}, 6\ns_cbranch_scc1 DL_LOOP")
    n = p2_prefetch(a, vT, vT2, vD, sT)
    a(f"s_waitcnt vmcnt({18+n})\ns_barrier")
    a(f"s_waitcnt vmcnt({9+n})\ns_barrier")
    a(f"s_waitcnt vmcnt({n})\ns_barrier")
    stamp(a, 2)
    a("s_barrier")
    wo_dma(a, 0, vOo, sT, sT2)
    a("s_barrier")
    for r in range(1, 5): wo_dma(a, r, vOo, sT, sT2)
    loader_finish(a, vD)

def dft_compute(a):
    V = RegAlloc('v', 2, 256)
    sA, sN2, sRd, sC, sT, sT2 = range(56, 62)
    vM, vG, vT, vT2, vT3 = [V.alloc() for _ in range(5)]
    vXb0, vXb1, vCb0, vCb1 = [V.alloc() for _ in range(4)]
    vXa0, vXa1, vCa0, vCa1, vEa = [V.alloc() for _ in range(5)]
    acc = V.alloc(88, 4)
    F = [V.alloc(52, 4), V.alloc(52, 4)]
    fRe = V.alloc(4, 4); fIm = V.alloc(4, 4)
    hi_v[0] = max(hi_v[0], V.hi)
    def A(ct, rt): return acc + 8*ct + 4*rt
    dft_scalars(a, sA, sN2, sT)
    a(f"""v_and_b32 v{vM}, 15, v0
v_lshrrev_b32 v{vG}, 4, v0
v_lshrrev_b32 v{vT}, 1, v{vM}
s_lshl_b32 s{sT}, s{sW4}, 3
v_add_u32 v{vT}, s{sT}, v{vT}
v_lshlrev_b32 v{vT}, 18, v{vT}
v_lshl_add_u32 v{vT}, v{vG}, 3, v{vT}
v_lshlrev_b32 v{vT2}, 7, v0
v_mov_b32 v{vT3}, {OOB}
v_cmp_gt_u32 vcc, 50, v0
v_cndmask_b32 v{vT2}, v{vT3}, v{vT2}, vcc
s_lshl_b32 s{sT}, s{sA}, 1
s_and_b32 s{sT2}, s{sW4}, 1
s_add_u32 s{sT}, s{sT}, s{sT2}
s_mul_i32 s{sT}, s{sT}, 6400
s_mul_i32 s{sT2}, s{sCP}, {80*1280}
s_add_u32 s{sT}, s{sT}, s{sT2}
v_and_b32 v{vT3}, 31, v0
v_mul_u32_u24 v{vT3}, {64*1280}, v{vT3}
v_lshrrev_b32 v{vXa0}, 5, v0
v_lshl_add_u32 v{vT3}, v{vXa0}, 7, v{vT3}
s_mul_i32 s{sT2}, s{sN2}, 1280
s_waitcnt lgkmcnt(0)""")
    srd(a, R_A, S_X, 2621440)
    a(f"""s_cmp_lt_u32 s{sW4}, 2
s_cselect_b32 s{R_B}, s{S_HRE}, s{S_HIM}
s_cselect_b32 s{R_B+1}, s{S_HRE+1}, s{S_HIM+1}
s_mov_b32 s{R_B+2}, 819200
s_mov_b32 s{R_B+3}, 0x20000""")
    for j in range((PF_XD + 1)//2):
        a(f"buffer_load_dword v{F[0]+1}, v{vT3}, {R(R_A)}, s{sT2} offen offset:{256*j}")
        if j == 0 and PF_CS: a(f"buffer_load_dword v{F[0]}, v{vT2}, {R(R_B)}, s{sT} offen")
    if PF_CS and not PF_XD: a(f"buffer_load_dword v{F[0]}, v{vT2}, {R(R_B)}, s{sT} offen")
    srd(a, R_C, S_SRE, 8388608); srd(a, R_D, S_SIM, 8388608); srd(a, R_WS, S_WS, WS_END)
    a(f"""buffer_load_dwordx2 {vr(fRe,2)}, v{vT}, {R(R_C)}, 0 offen
buffer_load_dwordx2 {vr(fRe+2,2)}, v{vT}, {R(R_C)}, 0 offen offset:32
buffer_load_dwordx2 {vr(fIm,2)}, v{vT}, {R(R_D)}, 0 offen
buffer_load_dwordx2 {vr(fIm+2,2)}, v{vT}, {R(R_D)}, 0 offen offset:32
v_bfe_u32 v{vT}, v{vM}, 1, 3
v_xor_b32 v{vT}, v{vT}, v{vG}
v_lshlrev_b32 v{vT}, 4, v{vT}
v_lshl_add_u32 v{vT}, v{vM}, 7, v{vT}
s_lshl_b32 s{sT}, s{sW4}, 12
v_add_u32 v{vXb0}, s{sT}, v{vT}
v_xor_b32 v{vXb1}, 64, v{vXb0}
v_add_u32 v{vCb0}, 16384, v{vT}
v_xor_b32 v{vCb1}, 64, v{vCb0}
v_and_b32 v{vT}, 1, v0
v_lshlrev_b32 v{vT}, 11, v{vT}
v_lshl_add_u32 v{vT}, v{vG}, 4, v{vT}
v_add_u32 v{vEa}, {DEXTRA}, v{vT}
v_mov_b32 v{vXa0}, v{vXb0}
v_mov_b32 v{vXa1}, v{vXb1}
v_mov_b32 v{vCa0}, v{vCb0}
v_mov_b32 v{vCa1}, v{vCb1}""")
    for i in range(88): a(f"v_mov_b32 v{acc+i}, 0")
    def reads(fs, s):
        b = F[fs]; r = []
        for rt in range(2):
            r.append(f"ds_read_b128 {vr(b+4*rt,4)}, v{vXa1 if s else vXa0} offset:{2048*rt}")
        for ct in range(10):
            r.append(f"ds_read_b128 {vr(b+8+4*ct,4)}, v{vCa1 if s else vCa0} offset:{2048*ct}")
        r.append(f"ds_read_b128 {vr(b+48,4)}, v{vEa} offset:{64*s}")
        return r
    def mfmas(fs):
        b = F[fs]; m = []
        for ct in range(11):
            for rt in range(2):
                c = vr(A(ct, rt), 4)
                m.append(f"{MF} {c}, {vr(b+4*rt,4)}, {vr(b+8+4*ct,4)}, {c}")
        return m
    adv = [f"s_add_u32 s{sRd}, s{sRd}, {DSLOT}\ns_cmp_eq_u32 s{sRd}, {DNS*DSLOT}\ns_cselect_b32 s{sRd}, 0, s{sRd}",
           f"v_add_u32 v{vXa0}, s{sRd}, v{vXb0}", f"v_add_u32 v{vXa1}, s{sRd}, v{vXb1}",
           f"v_add_u32 v{vCa0}, s{sRd}, v{vCb0}", f"v_add_u32 v{vCa1}, s{sRd}, v{vCb1}", f"v_add_u32 v{vEa}, 128, v{vEa}"]
    stamp(a, 1)
    a(f"s_mov_b32 s{sRd}, 0\ns_mov_b32 s{sC}, 0\ns_waitcnt vmcnt(0)\ns_barrier")
    stamp(a, 2)
    for x in reads(0, 0): a(x)
    a.label('D_LOOP')
    a("s_waitcnt lgkmcnt(0)")
    interleave(a, mfmas(0), reads(1, 1) + adv)
    a(f"s_waitcnt lgkmcnt(0)\ns_barrier\ns_cmp_eq_u32 s{sC}, 9\ns_cbranch_scc1 D_TAIL")
    interleave(a, mfmas(1), reads(0, 0) + [f"s_add_u32 s{sC}, s{sC}, 1"])
    a("s_branch D_LOOP\nD_TAIL:")
    for x in mfmas(1): a(x)
    stamp(a, 3)
    A1, A2 = F[1], F[1] + 4
    a(f"""v_and_b32 v{vT}, 1, v0
v_cmp_eq_u32 vcc, 1, v{vT}
s_mul_i32 s{sT}, s{sW4}, {11*1024}
v_lshlrev_b32 v{vT2}, 4, v0
v_add_u32 v{vT2}, {L_U}, v{vT2}
v_add_u32 v{vT3}, s{sT}, v{vT2}""")
    U = F[0]
    for ct in range(11):
        a(pk(U+4*ct, A(ct, 0))); a(pk(U+4*ct+2, A(ct, 1)))
        a(f"ds_write_b128 v{vT3}, {vr(U+4*ct,4)} offset:{1024*ct}")
    for q in range(4):
        a(f"""v_cndmask_b32 v{A1+q}, v{fRe+q}, v{fIm+q}, vcc
v_xor_b32 v{fIm+q}, 0x80008000, v{fIm+q}
v_cndmask_b32 v{A2+q}, v{fIm+q}, v{fRe+q}, vcc""")
    a(f"""s_cmp_eq_u32 s{sCP}, 0
s_cselect_b32 s{sT}, 1, 99
v_cmp_eq_u32 vcc, s{sT}, v{vM}
v_lshlrev_b32 v{vT}, 10, v{vG}
v_mov_b32 v{vXa0}, {OOB}
v_cndmask_b32 v{vT}, v{vXa0}, v{vT}, vcc
s_lshl_b32 s{sT}, s{sN2}, 2
s_add_u32 s{sT}, s{sT}, {WS_GATE}
s_add_u32 s{sT2}, s{sT}, 4096""")
    for rt in range(2):
        for i in range(4):
            a(f"buffer_store_dword v{A(10,rt)+i}, v{vT}, {R(R_WS)}, s{sT+rt} offen offset:{256*i} sc1")
    vGo, vGe = vXa1, vCa0
    a(f"""s_lshl_b32 s{sT}, s{sW4}, 7
s_lshl_b32 s{sT2}, s{sA}, 1
s_add_u32 s{sT}, s{sT}, s{sT2}
s_add_u32 s{sT}, s{sT}, s{sP}
s_mul_i32 s{sT}, s{sT}, {GP*16}
s_add_u32 s{sT}, s{sT}, {WS_G}
v_mul_u32_u24 v{vGe}, {32*GP*16}, v{vG}
v_add_u32 v{vGe}, s{sT}, v{vGe}
s_mul_i32 s{sT2}, s{sCP}, 1280
v_lshl_add_u32 v{vGo}, v{vM}, 4, v{vGe}
v_add_u32 v{vGo}, s{sT2}, v{vGo}
v_add_u32 v{vGe}, {320*16}, v{vGe}
s_cmp_eq_u32 s{sCP}, 0
s_cselect_b32 s{sT}, 0, 99
v_cmp_eq_u32 vcc, s{sT}, v{vM}
v_cndmask_b32 v{vGe}, v{vXa0}, v{vGe}, vcc
s_mov_b32 s{sT}, 0
s_mov_b32 s{sT2}, {16*GP*16}
s_waitcnt lgkmcnt(0)
s_barrier""")
    UB = [F[0], F[1] + 8]
    def rd(ct):
        b = UB[ct & 1]; r = []
        for w in range(4):
            if ct < 5:
                r.append(f"ds_read_b128 {vr(b+8*w,4)}, v{vT2} offset:{w*11264+1024*ct}")
                r.append(f"ds_read_b128 {vr(b+8*w+4,4)}, v{vT2} offset:{w*11264+1024*(ct+5)}")
            else:
                r.append(f"ds_read_b128 {vr(b+8*w,4)}, v{vT2} offset:{w*11264+1024*10}")
        return r
    def fin(ct):
        d = acc + 24*(ct % 3); o = d + 16
        for w in range(4):
            a(f"v_cvt_pk_bf16_f32 v{o+w}, v{d+4*w}, v{d+4*w+1}\nv_cvt_pk_bf16_f32 v{o+4+w}, v{d+4*w+2}, v{d+4*w+3}")
        vo, off = (vGo, 256*ct) if ct < 5 else (vGe, 0)
        a(f"buffer_store_dwordx4 {vr(o,4)}, v{vo}, {R(R_WS)}, s{sT} offen offset:{off} sc1")
        a(f"buffer_store_dwordx4 {vr(o+4,4)}, v{vo}, {R(R_WS)}, s{sT2} offen offset:{off} sc1")
    for x in rd(0): a(x)
    for ct in range(6):
        a("s_waitcnt lgkmcnt(0)")
        if ct < 5:
            for x in rd(ct+1): a(x)
        b = UB[ct & 1]; d = acc + 24*(ct % 3)
        for w in range(4): a(f"{MF} {vr(d+4*w,4)}, {vr(A1,4)}, {vr(b+8*w,4)}, 0")
        if ct < 5:
            for w in range(4): a(f"{MF} {vr(d+4*w,4)}, {vr(A2,4)}, {vr(b+8*w+4,4)}, {vr(d+4*w,4)}")
        if ct: fin(ct-1)
    fin(5)
    a("s_branch L_P2")

def phase2(a):
    V = RegAlloc('v', 2, 256)
    sHH, sT, sT2, sT3, sSg, sOB = range(56, 62)
    sLC = 62
    vM, vG, vT, vT2, vT3, vRow, vGl, vWa, vWs, vGa, vOut, vOa0, vOa1, vPo, vEx = [V.alloc() for _ in range(15)]
    vOo = V.alloc(2); vGo = V.alloc(3)
    WR = V.alloc(20*NREG, 4)
    accB = V.alloc(20, 4); accY = V.alloc(20, 4); FW = V.alloc(20, 4)
    fT = V.alloc(8, 4); fO = V.alloc(16, 4)
    tRe, tIm = accB, accB + 4
    hi_v[0] = max(hi_v[0], V.hi)
    a.label('L_P2')
    stamp(a, 4)
    a(f"""s_lshr_b32 s{sHH}, s3, 2
s_lshl_b32 s{sT}, s{sP}, 5
s_add_u32 s{sT}, s{sT}, s{sSL}
s_lshl_b32 s{sT}, s{sT}, 7
s_lshl_b32 s{sT2}, s{sCP}, 2
s_add_u32 s{sT}, s{sT}, s{sT2}
s_add_u32 s{sT}, s{sT}, {WS_FLAG}
s_lshl_b32 s{sT3}, 0x55, s{sP}
s_cmp_ge_u32 s{sSL}, 24
s_cselect_b32 s{sT2}, 0xff, s{sT3}
s_waitcnt vmcnt(0)
v_lshlrev_b32 v{vT}, 13, v0
v_mov_b32 v{vT2}, 1
s_barrier
s_cmp_lg_u32 s3, 4
s_cbranch_scc1 L_NOFLAG
s_mov_b32 exec_lo, s{sT2}
s_mov_b32 exec_hi, 0
buffer_store_dword v{vT2}, v{vT}, {R(R_WS)}, s{sT} offen sc1
s_mov_b64 exec, -1
L_NOFLAG:""")
    stamp(a, 5)
    srd(a, R_B, S_SRE, 8388608); srd(a, R_C, S_SIM, 8388608); srd(a, R_A, S_OUT, 2621440)
    a(f"""v_and_b32 v{vM}, 15, v0
v_lshrrev_b32 v{vG}, 4, v0
s_lshl_b32 s{sT}, s{sW4}, 9
s_add_u32 s{sT}, s{sT}, s{sK1}
v_lshlrev_b32 v{vRow}, 5, v{vM}
v_add_u32 v{vRow}, s{sT}, v{vRow}
v_lshlrev_b32 v{vT}, 12, v{vRow}
v_lshl_add_u32 v{vT}, v{vG}, 5, v{vT}
s_lshl_b32 s{sT2}, s{sHH}, 4
buffer_load_dwordx4 {vr(tRe,4)}, v{vT}, {R(R_B)}, s{sT2} offen
buffer_load_dwordx4 {vr(tIm,4)}, v{vT}, {R(R_C)}, s{sT2} offen
v_bfe_u32 v{vT}, v0, 2, 3
v_lshrrev_b32 v{vT2}, 5, v0
v_lshl_add_u32 v{vT}, v{vT2}, 4, v{vT}
v_mul_u32_u24 v{vT}, 160, v{vT}
v_and_b32 v{vT2}, 3, v0
v_lshl_add_u32 v{vT}, v{vT2}, 3, v{vT}
s_mul_i32 s{sT2}, s{sHH}, {NREG*5120}
v_add_u32 v{vWa}, s{sT2}, v{vT}
s_mul_i32 s{sT2}, s{sHH}, {(10-NREG)*5120}
s_add_u32 s{sT2}, s{sT2}, {14*5120}
v_add_u32 v{vWs}, s{sT2}, v{vT}""")
    def wreads(dst, reg, j):
        return [f"ds_read_b64_tr_b16 {vr(dst+4*ct+2*h,2)}, v{reg} offset:{j*5120+h*1280+32*ct}" for ct in range(5) for h in range(2)]
    fill = []
    fill.append(f"""v_mul_u32_u24 v{vOut}, 1280, v{vRow}
v_lshl_add_u32 v{vOut}, v{vG}, 3, v{vOut}
s_mul_i32 s{sT2}, s{sC2}, 160
v_add_u32 v{vOut}, s{sT2}, v{vOut}
v_lshlrev_b32 v{vRow}, 2, v{vRow}""")
    fill.append(f"""s_mul_i32 s{sT}, s{sT}, 1280
s_mul_i32 s{sT2}, s{sHH}, 640
s_add_u32 s{sT}, s{sT}, s{sT2}
v_lshrrev_b32 v{vT}, 3, v0
v_and_b32 v{vT2}, 7, v0""")
    for q in range(2):
        fill.append(f"""v_add_u32 v{vT3}, {8*q}, v{vT}
v_mul_u32_u24 v{vOo+q}, {32*1280}, v{vT3}
v_lshrrev_b32 v{vT3}, 1, v{vT3}
v_xor_b32 v{vT3}, v{vT3}, v{vT2}
v_lshl_add_u32 v{vOo+q}, v{vT3}, 4, v{vOo+q}""" + (f"\nv_subrev_u32 v{vOo+q}, 1024, v{vOo+q}" if q else ""))
    s = f"s_lshl_b32 s{sT2}, s{sRot}, 6\n"
    for j in range(5):
        s += f"s_add_u32 s{sLC+j}, s{sT}, s{sT2}\ns_add_u32 s{sT2}, s{sT2}, 128\ns_cmp_eq_u32 s{sT2}, 640\ns_cselect_b32 s{sT2}, 0, s{sT2}\n"
    fill.append(s)
    fill.append(f"""s_mul_i32 s{sOB}, s3, 10240
s_cmp_eq_u32 s3, 7
s_cselect_b32 s{sOB}, {L_OB[7]}, s{sOB}
v_lshrrev_b32 v{vT}, 1, v{vM}
v_xor_b32 v{vT}, v{vT}, v{vG}
v_lshlrev_b32 v{vT}, 4, v{vT}
v_lshl_add_u32 v{vT}, v{vM}, 7, v{vT}
v_add_u32 v{vOa0}, s{sOB}, v{vT}
v_xor_b32 v{vOa1}, 64, v{vOa0}""")
    assert all((q*820) >> 16 == q//80 for q in range(192))
    fill.append(f"""s_mul_i32 s{sT}, s{sC2}, 80
s_sub_u32 s{sT2}, 640, s{sT}
s_cmp_lt_u32 s{sC2}, 4
s_cselect_b32 s{sT}, s{sT}, s{sT2}
s_cselect_b32 s{sT2}, 16, -16
s_cselect_b32 s{sSg}, 0x80008000, 0
s_lshl_b32 s{sT3}, s{sKs}, 3
s_add_u32 s{sT3}, s{sT3}, s3
s_mul_i32 s{sT3}, s{sT3}, {2*GP}
s_add_u32 s{sT}, s{sT}, s{sT3}
s_lshl_b32 s{sT}, s{sT}, 4
s_add_u32 s{sT}, s{sT}, {WS_G}""")
    for j in range(3):
        fill.append(f"""v_add_u32 v{vT}, {64*j}, v0
v_mul_u32_u24 v{vT2}, 820, v{vT}
v_lshrrev_b32 v{vT2}, 16, v{vT2}
v_mul_u32_u24 v{vT3}, 80, v{vT2}
v_sub_u32 v{vT}, v{vT}, v{vT3}
v_mul_i32_i24 v{vT}, s{sT2}, v{vT}
v_mul_u32_u24 v{vT2}, {GP*16}, v{vT2}
v_add3_u32 v{vGo+j}, v{vT}, v{vT2}, s{sT}""" + (f"\nv_subrev_u32 v{vGo+j}, {1024*j}, v{vGo+j}" if j else ""))
    fill.append(f"""v_mul_u32_u24 v{vGa}, 5120, v{vG}
v_lshl_add_u32 v{vGa}, v{vM}, 4, v{vGa}
s_mul_i32 s{sT}, s{sHH}, 2560
s_add_u32 s{sT}, s{sT}, {L_G}
v_add_u32 v{vGa}, s{sT}, v{vGa}
s_mul_i32 s{sT}, s{sW4}, 5120
s_add_u32 s{sT}, s{sT}, {L_EX}
v_lshlrev_b32 v{vEx}, 4, v0
v_add_u32 v{vEx}, s{sT}, v{vEx}""")
    fill.append(f"""s_and_b32 s{sT}, s2, 7
s_lshl_b32 s{sT}, s{sT}, 13
s_add_u32 s{sT}, s{sT}, {WS_FLAG}
v_lshlrev_b32 v{vPo}, 7, v0
v_add_u32 v{vPo}, s{sT}, v{vPo}
s_cmp_eq_u32 s{sP}, 0
s_cselect_b32 s68, -1, 0xff000000
s_cselect_b32 s69, 0xff000000, -1""")
    for j in range(NREG):
        if j: a("s_waitcnt lgkmcnt(5)")
        for x in wreads(WR+20*j, vWa, j): a(x)
        for _ in range(2):
            if fill: a(fill.pop(0))
    for x in fill: a(x)
    a(f"s_mov_b32 s{sT}, 0x05040100\ns_mov_b32 s{sT2}, 0x07060302\ns_waitcnt vmcnt(0)")
    for q in range(4): a(f"v_xor_b32 v{tIm+q}, s{sSg}, v{tIm+q}")
    for uu in range(2):
        for w in range(4): a(f"v_perm_b32 v{fT+4*uu+w}, v{tIm+w}, v{tRe+w}, s{sT+uu}")
    a("s_waitcnt lgkmcnt(5)")
    for x in wreads(FW, vWs, 0): a(x)
    a(f"""s_waitcnt lgkmcnt(0)
s_cmp_lg_u32 s3, 4
s_cbranch_scc1 L_GO
s_mov_b64 exec, s[68:69]
s_mov_b32 s71, 0
L_POLL:
buffer_load_dwordx4 {vr(fO,4)}, v{vPo}, {R(R_WS)}, 0 offen sc1
s_waitcnt vmcnt(0)
v_and_b32 v{fO}, v{fO}, v{fO+1}
v_and_b32 v{fO+2}, v{fO+2}, v{fO+3}
v_and_b32 v{fO}, v{fO}, v{fO+2}
v_cmp_ne_u32 vcc, 1, v{fO}
s_cbranch_vccz L_POLLED
s_sleep 4
s_add_u32 s71, s71, 1
s_cmp_gt_u32 s71, {SPIN}
s_cbranch_scc0 L_POLL
L_POLLED:
s_mov_b64 exec, -1
L_GO:
s_barrier""")
    stamp(a, 6)
    for j in range(5):
        a(f"s_add_u32 m0, s{sOB}, {2048*j}")
        for q in range(2):
            a(f"buffer_load_dwordx4 v{vOo+q}, {R(R_WS)}, s{sLC+j} offen offset:{1024*q} sc1 lds")
    a(f"s_mul_i32 s{sT}, s3, 2560\ns_add_u32 m0, s{sT}, {L_G}")
    for j in range(3):
        if j == 2: a("s_mov_b32 exec_hi, 0")
        a(f"buffer_load_dwordx4 v{vGo+j}, {R(R_WS)}, 0 offen offset:{1024*j} sc1 lds")
    a(f"""s_mov_b32 exec_hi, -1
s_mov_b32 s{sT2}, {WS_GATE}
buffer_load_dword v{vGl}, v{vRow}, {R(R_WS)}, s{sT2} offen sc1""")
    def oreads(j):
        b = fO + 8*(j & 1)
        return [f"ds_read_b128 {vr(b,4)}, v{vOa0} offset:{2048*j}", f"ds_read_b128 {vr(b+4,4)}, v{vOa1} offset:{2048*j}"]
    def mm(u, W):
        B = vr(fO + 8*((u >> 1) & 1) + 4*(u & 1), 4)
        return [f"{MF} {vr(accB+4*ct,4)}, {vr(W+4*ct,4)}, {B}, {'0' if u == 0 else vr(accB+4*ct,4)}" for ct in range(5)]
    a("s_waitcnt vmcnt(12)")
    for x in oreads(0): a(x)
    Wbuf = {u: WR + 20*u for u in range(NREG)}
    Wbuf[7] = FW; Wbuf[8] = WR; Wbuf[9] = WR + 20
    for j in range(5):
        if j < 4:
            a(f"s_waitcnt vmcnt({12-2*(j+1)})")
            for x in oreads(j+1): a(x)
            a("s_waitcnt lgkmcnt(2)")
        else:
            a("s_waitcnt vmcnt(0)\ns_barrier")
            for ct in range(5): a(f"ds_read_b128 {vr(WR+40+4*ct,4)}, v{vGa} offset:{256*ct}")
            for ct in range(5): a(f"ds_read_b128 {vr(WR+60+4*ct,4)}, v{vGa} offset:{1280+256*ct}")
            a("s_waitcnt lgkmcnt(10)")
        fl = []
        if j == 1: fl = wreads(WR, vWs, 1)
        if j == 2: fl = wreads(WR+20, vWs, 2)
        if j == 4:
            fl = [f"v_mul_f32 v{vGl}, 0xbfb8aa3b, v{vGl}", f"v_exp_f32 v{vGl}, v{vGl}", f"v_add_f32 v{vGl}, 1.0, v{vGl}", f"v_rcp_f32 v{vGl}, v{vGl}"]
        interleave(a, mm(2*j, Wbuf[2*j]) + mm(2*j+1, Wbuf[2*j+1]), fl)
    a("s_waitcnt lgkmcnt(0)")
    for uu in range(2):
        for ct in range(5):
            c = vr(accY+4*ct, 4)
            a(f"{MF} {c}, {vr(WR+40+20*uu+4*ct,4)}, {vr(fT+4*uu,4)}, {'0' if uu == 0 else c}")
    for i in range(20):
        a(f"v_sub_f32 v{accY+i}, v{accY+i}, v{accB+i}")
        a(f"v_fma_f32 v{accB+i}, v{vGl}, v{accY+i}, v{accB+i}")
    def finish(cts):
        for ct in cts: a(f"ds_read_b128 {vr(accY+4*ct,4)}, v{vEx} offset:{1024*ct}")
        a("s_waitcnt lgkmcnt(0)")
        for ct in cts:
            for r in range(4): a(f"v_add_f32 v{accB+4*ct+r}, v{accB+4*ct+r}, v{accY+4*ct+r}")
            a(pk(accY+4*ct, accB+4*ct))
            a(f"buffer_store_dwordx2 {vr(accY+4*ct,2)}, v{vOut}, {R(R_A)}, 0 offen offset:{32*ct}")
    a(f"s_cmp_eq_u32 s{sHH}, 0\ns_cbranch_scc0 L_H1")
    for ct in (3, 4): a(f"ds_write_b128 v{vEx}, {vr(accB+4*ct,4)} offset:{1024*ct}")
    a("s_waitcnt lgkmcnt(0)\ns_barrier")
    finish((0, 1, 2))
    a("s_branch L_FIN\nL_H1:")
    for ct in (0, 1, 2): a(f"ds_write_b128 v{vEx}, {vr(accB+4*ct,4)} offset:{1024*ct}")
    a("s_waitcnt lgkmcnt(0)\ns_barrier")
    finish((3, 4))
    a("L_FIN:")
    stamp_flush(a, vT)

a = main()
print("pads", a.pad(), "vgprs", hi_v[0], file=sys.stderr)
nv = (hi_v[0] + 7)//8*8
txt = f"""; gated mix: FNet (factored DFT) + dilated sliding-window attention.  Generated by work/gen2.py
; @launch grid=(256,1,1) block=(512,1,1) lds={LDS_BYTES}
.amdgcn_target "amdgcn-amd-amdhsa--gfx950"
.text
.globl {NAME}_kernel
.p2align 8
.type {NAME}_kernel,@function
{NAME}_kernel:
{a.text()}
.section .rodata,"a"
.p2align 6
.amdhsa_kernel {NAME}_kernel
  .amdhsa_next_free_vgpr {nv}
  .amdhsa_next_free_sgpr 100
  .amdhsa_accum_offset {nv}
  .amdhsa_group_segment_fixed_size 0
  .amdhsa_kernarg_size 96
  .amdhsa_user_sgpr_count 2
  .amdhsa_user_sgpr_kernarg_segment_ptr 1
  .amdhsa_system_sgpr_workgroup_id_x 1
.end_amdhsa_kernel
"""
open(OUT, 'w').write(txt)
```

```python
import re

def _expand(tok):
    tok = tok.strip()
    tok = tok.lstrip('-')
    m = re.fullmatch(r'abs\((.*)\)', tok)
    if m: tok = m.group(1)
    tok = tok.strip('|')
    m = re.fullmatch(r'([vas])(\d+)', tok)
    if m: return [(m.group(1), int(m.group(2)))]
    m = re.fullmatch(r'([vas])\[(\d+):(\d+)\]', tok)
    if m: return [(m.group(1), i) for i in range(int(m.group(2)), int(m.group(3))+1)]
    if tok == 'vcc': return [('s', 106), ('s', 107)]
    if tok == 'vcc_lo': return [('s', 106)]
    if tok == 'vcc_hi': return [('s', 107)]
    if tok == 'm0': return [('s', 124)]
    if tok == 'exec': return [('s', 126), ('s', 127)]
    if tok == 'exec_lo': return [('s', 126)]
    if tok == 'exec_hi': return [('s', 127)]
    return []

TRANS = re.compile(r'v_(exp|log|rcp|rsq|sqrt|sin|cos)_f(16|32)')

class Ins:
    def __init__(self, text):
        self.text = text
        t = text.split(';')[0].strip()
        parts = t.split(None, 1)
        self.op = parts[0]
        rest = parts[1] if len(parts) > 1 else ''
        ops = []
        if rest:
            depth = 0; cur = ''
            for ch in rest:
                if ch == '[': depth += 1
                if ch == ']': depth -= 1
                if ch == ',' and depth == 0: ops.append(cur.strip()); cur = ''
                else: cur += ch
            ops.append(cur.strip())
        self.mods = ''
        if ops:
            l = ops[-1].split(None, 1)
            ops[-1] = l[0] if l else ''
            self.mods = l[1] if len(l) > 1 else ''
        self.ops = ops
        op = self.op
        self.is_mfma = op.startswith('v_mfma')
        self.is_valu = op.startswith('v_') and not self.is_mfma
        self.is_trans = bool(TRANS.match(op))
        self.is_perml = op.startswith('v_permlane')
        self.is_dpp = 'dpp' in op or 'row_' in self.mods or 'quad_perm' in self.mods
        self.is_rdlane = op.startswith('v_readfirstlane') or op.startswith('v_readlane')
        self.is_ds = op.startswith('ds_')
        self.is_vmem = op.startswith('buffer_') or op.startswith('global_')
        self.is_salu = op.startswith('s_')
        self.is_ldsdma = self.is_vmem and (' lds' in (' ' + self.mods) or 'load_lds' in op)
        self.dst = set(); self.src = set()
        self.srcA = self.srcB = self.srcC = set()
        E = _expand
        if self.is_mfma:
            self.dst = set(E(ops[0])); self.srcA = set(E(ops[1])); self.srcB = set(E(ops[2])); self.srcC = set(E(ops[3]))
            self.src = self.srcA | self.srcB | self.srcC
            self.passes = 8 if '32x32' in op else 4
        elif self.is_valu:
            if self.is_perml and 'swap' in op:
                self.dst = set(E(ops[0])) | set(E(ops[1])); self.src = set(self.dst)
            else:
                self.dst = set(E(ops[0]))
                k = 1
                if re.match(r'v_(add|sub|subrev|addc|subb|subbrev)_co', op) or op.startswith('v_div_scale') or op.startswith('v_mad_u64'):
                    self.dst |= set(E(ops[1])); k = 2
                for o in ops[k:]: self.src |= set(E(o))
                if re.match(r'v_(fmac|mac|dot2c|pk_fmac|writelane)', op): self.src |= set(E(ops[0]))
                if op.startswith('v_cmpx'): self.dst |= set(E('exec'))
        elif self.is_ds:
            if 'read' in op or '_rtn' in op or 'bpermute' in op or 'swizzle' in op or 'permute' in op:
                self.dst = set(E(ops[0]))
                for o in ops[1:]: self.src |= set(E(o))
            else:
                for o in ops: self.src |= set(E(o))
        elif self.is_vmem:
            if 'load' in op and not self.is_ldsdma:
                self.dst = set(E(ops[0]))
                for o in ops[1:]: self.src |= set(E(o))
            else:
                for o in ops: self.src |= set(E(o))
                if self.is_ldsdma: self.src |= set(E('m0'))
        elif self.is_salu:
            if op.startswith('s_cmp') or op.startswith('s_cbranch') or op in ('s_branch','s_barrier','s_waitcnt','s_nop','s_endpgm','s_setprio','s_sleep'):
                for o in ops: self.src |= set(E(o))
            else:
                if ops: self.dst = set(E(ops[0]))
                for o in ops[1:]: self.src |= set(E(o))
                if 'saveexec' in op: self.dst |= set(E('exec'))
        self.wide_store_data = set()
        if self.is_vmem and 'store' in op and ('x3' in op or 'x4' in op):
            self.wide_store_data = set(E(ops[0])) if op.startswith('buffer_') else set(E(ops[1]))
    def states(self):
        if self.op == 's_nop': return int(self.ops[0], 0) + 1
        return 1

def vregs(s): return {r for r in s if r[0] in 'va'}
def sregs(s): return {r for r in s if r[0] == 's'}

def need(p, c):
    n = 0
    if p.is_mfma:
        P = p.passes
        if c.is_mfma:
            if p.dst & (c.srcA | c.srcB): n = max(n, P + 4)
            if p.dst & c.srcC:
                if not (p.dst == c.srcC and p.passes == c.passes): n = max(n, P + 2)
            if (p.dst & c.dst) and not (p.dst == c.srcC): n = max(n, P + 2)
        elif c.is_valu or c.is_ds or c.is_vmem:
            if p.dst & (c.src | c.dst): n = max(n, P + 4)
        if c.is_valu and (p.srcC & c.dst): n = max(n, P - 1)
        if (c.is_ds or c.is_vmem) and (p.srcC & c.dst): n = max(n, P - 1)
    elif p.is_valu:
        pv = vregs(p.dst); ps = sregs(p.dst)
        if c.is_mfma:
            if pv & c.src: n = max(n, 2)
            if ('s', 126) in ps: n = max(n, 4)
        if c.is_valu:
            if p.is_trans and not c.is_trans and (pv & c.src): n = max(n, 1)
            if p.is_trans and c.is_trans and (pv & c.src): n = max(n, 1)
            if (c.is_perml or c.is_dpp) and (pv & c.src): n = max(n, 2)
            if c.is_rdlane and (pv & c.src): n = max(n, 1)
            if ps & c.src: n = max(n, 4 if c.is_rdlane or 'writelane' in c.op else 2)
            if ('s', 126) in ps and (c.is_dpp or c.is_perml or c.is_rdlane): n = max(n, 5)
            if ('op_sel:' in p.mods or 'sdwa' in p.op) and (pv & (c.src | c.dst)): n = max(n, 1)
        if p.op.startswith('v_dot') and (c.is_valu or c.is_mfma or c.is_ds or c.is_vmem) and (pv & (c.src | c.dst)):
            acc_only = c.op == p.op and ((c.op.startswith('v_dot2c') and not (pv & set(sum((_expand(o) for o in c.ops[1:]), [])))) )
            if not acc_only: n = max(n, 3)
        if c.is_vmem and (ps & c.src): n = max(n, 5)
        if c.is_salu and (ps & c.src): n = max(n, 1)
    elif p.is_salu:
        if ('s', 124) in p.dst and c.is_ldsdma: n = max(n, 1)
    if p.wide_store_data and (p.wide_store_data & c.dst): n = max(n, 2)
    return n

class Asm:
    def __init__(self):
        self.items = []
    def __call__(self, text):
        for line in text.strip().split('\n'):
            line = line.strip()
            if not line or line.startswith(';'): continue
            if line.endswith(':'): self.items.append(('l', line[:-1]))
            elif line.startswith('.'): self.items.append(('r', line))
            else: self.items.append(('i', Ins(line)))
    def label(self, n): self.items.append(('l', n))
    def raw(self, t): self.items.append(('r', t))
    def pad(self, verbose=False):
        total = 0
        i = 0
        it = self.items
        def maps():
            jumps = {}
            for k, x in enumerate(it):
                if x[0] == 'i' and (x[1].op.startswith('s_cbranch') or x[1].op == 's_branch'):
                    jumps.setdefault(x[1].ops[0], []).append(k)
            return jumps
        jumps = maps()
        while i < len(it):
            x = it[i]
            if x[0] != 'i' or x[1].op == 's_nop':
                i += 1; continue
            c = x[1]
            worst = 0
            stack = [(i - 1, 0, False)]
            seen = {}
            while stack:
                j, d, viajump = stack.pop()
                while j >= 0 and d < 13:
                    if seen.get(j, 99) <= d: break
                    y = it[j]
                    if y[0] == 'i' and y[1].op in ('s_branch', 's_endpgm') and not viajump:
                        break
                    seen[j] = d
                    viajump = False
                    if y[0] == 'l':
                        for src in jumps.get(y[1], []): stack.append((src, d, True))
                    elif y[0] == 'i':
                        p = y[1]
                        nn = need(p, c) - d
                        if nn > worst: worst = nn
                        d += p.states()
                    j -= 1
            if worst > 0:
                it.insert(i, ('i', Ins(f's_nop {worst-1}')))
                total += worst
                if verbose: print(f'pad {worst} before: {c.text}')
                jumps = maps()
                i += 1
            i += 1
        return total
    def text(self):
        out = []
        for k, x in self.items:
            if k == 'i': out.append('    ' + x.text)
            elif k == 'l': out.append(x + ':')
            else: out.append(x)
        return '\n'.join(out) + '\n'

class RegAlloc:
    def __init__(self, kind, start, limit):
        self.kind = kind; self.next = start; self.limit = limit; self.hi = start
    def alloc(self, n=1, align=1):
        b = (self.next + align - 1) // align * align
        self.next = b + n
        assert self.next <= self.limit, f'out of {self.kind} regs'
        self.hi = max(self.hi, self.next)
        return b

def vr(b, n=1): return f'v{b}' if n == 1 else f'v[{b}:{b+n-1}]'
def sr(b, n=1): return f's{b}' if n == 1 else f's[{b}:{b+n-1}]'
def ar(b, n=1): return f'a{b}' if n == 1 else f'a[{b}:{b+n-1}]'
```

```python
import sys, struct
from asmlib import *
NAME = "gated_mix__spectral_fnet__sliding_local_dilated__prompt"
def opt(name, default):
    for x in sys.argv[1:]:
        if x.startswith(f'--{name}='): return int(x.split('=')[1])
    return default
STAMP = '--stamp' in sys.argv
CLK = '--clk' in sys.argv
P2ST = opt('p2st', 0)
PF_W = opt('pfw', 1)
PF_XQ = opt('pfxq', 0)
KA = opt('ka', 8)
NPRE = opt('npre', 5)
PSL = opt('psl', 6)
XPF = opt('xpf', 0)
NOPO = opt('nopo', 1)
P2D = opt('p2d', 0)
CPF = opt('cpf', 1)
ROT = opt('rot', 1)
ROTP = opt('rotp', 0)
PRE = opt('pre', 1)
NPF = opt('npf', 4)
PO0 = opt('po0', 3)
POM = opt('pom', 3)
N1 = opt('n1', 10)
P20 = opt('p20', 0)
P2M = opt('p2m', 1)
TRACE = opt('trace', 0)
NCE = opt('nce', 0)
OUT = [x for x in sys.argv[1:] if x.endswith('.s')]
OUT = OUT[0] if OUT else f"cdna_kernels/{NAME}.s"

WS_G = 0x280000
GP = 336
WS_GATE = 0x520000
WS_FLAG = 0x530000
WS_END = 0x540000
WS_STAMP = 0x800000
OOB = 0x80000000
SPIN = 200000
MF = 'v_mfma_f32_16x16x32_bf16'
LDS_BYTES = 159744

S_X, S_SRE, S_SIM, S_HRE, S_HIM, S_BX, S_WQKV, S_WO = 4, 6, 8, 10, 12, 14, 16, 18
S_GATE, S_OUT, S_DBG, S_WS = 20, 22, 24, 26
R_A, R_B, R_WS, R_C, R_D = 28, 32, 36, 40, 44
sP, sCP, sSL, sW4 = 48, 49, 50, 51
sC2, sK1, sKs, sRot = 52, 53, 54, 55
S_ST = 84

def srd(a, r, p, n):
    a(f"s_mov_b32 s{r}, s{p}\ns_mov_b32 s{r+1}, s{p+1}\ns_mov_b32 s{r+2}, {n}\ns_mov_b32 s{r+3}, 0x20000")
def R(r): return f"s[{r}:{r+3}]"
def stamp(a, i):
    if STAMP: a(f"{'s_memtime' if CLK else 's_memrealtime'} s[{S_ST+2*i}:{S_ST+2*i+1}]")
def stamp_flush(a, vtmp):
    if not STAMP: return
    a(f"s_waitcnt vmcnt(0) lgkmcnt(0)")
    stamp(a, 7)
    a(f"""s_mov_b32 s{R_D}, s{S_WS}
s_mov_b32 s{R_D+1}, s{S_WS+1}
s_mov_b32 s{R_D+2}, 0x1000000
s_mov_b32 s{R_D+3}, 0x20000
s_lshl_b32 s70, s2, 3
s_add_u32 s70, s70, s3
s_lshl_b32 s70, s70, 5
s_add_u32 s70, s70, {WS_STAMP}
s_waitcnt lgkmcnt(0)
v_mov_b32 v{vtmp}, 0""")
    for i in range(8):
        a(f"v_mov_b32 v{vtmp+1}, s{S_ST+2*i}")
        a(f"buffer_store_dword v{vtmp+1}, v{vtmp}, {R(R_D)}, s70 offen offset:{4*i}")
    a("s_waitcnt vmcnt(0)")
def interleave(a, mfmas, fillers, start=0, per=1):
    f = list(fillers)
    for i, m in enumerate(mfmas):
        a(m)
        if i >= start:
            for _ in range(per):
                if f: a(f.pop(0))
    for x in f: a(x)
def pkl(d, s): return [f"v_cvt_pk_bf16_f32 v{d}, v{s}, v{s+1}", f"v_cvt_pk_bf16_f32 v{d+1}, v{s+2}, v{s+3}"]
def pk(d, s): return "\n".join(pkl(d, s))
def f32(x): return f"{struct.unpack('<I', struct.pack('<f', x))[0]:#x}"
hi_v = [0]
_lab = [0]
def newlab(p):
    _lab[0] += 1
    return f"{p}{_lab[0]}"

NREG = 7
def pos_of(hh, j): return hh*NREG + j if j < NREG else 14 + hh*(10-NREG) + (j-NREG)
def inv_pos(pos):
    for hh in range(2):
        for j in range(10):
            if pos_of(hh, j) == pos: return hh, j
L_OB7 = 102400
L_G = 112640
L_GT = 133120
EXP = 336
L_OS = 135168
L_XC = 102400
QSLOT = 45056
def qslot(c): return ((c + 2) % 3) * QSLOT
DSLOT = 53248; L_U = 102400

vWoL = 232
vGoL = 237

def wo_setup(a, vT, vT2, vT3):
    vWo = vWoL
    assert all((q*6554) >> 16 == q//10 for q in range(320))
    for j in range(5):
        a(f"""v_add_u32 v{vT}, {64*j}, v0
v_mul_u32_u24 v{vT2}, 6554, v{vT}
v_lshrrev_b32 v{vT2}, 16, v{vT2}
v_mul_u32_u24 v{vT3}, 10, v{vT2}
v_sub_u32 v{vT}, v{vT}, v{vT3}
v_and_b32 v{vT3}, 3, v{vT2}
v_and_b32 v{vWo+j}, 4, v{vT2}
v_mul_u32_u24 v{vWo+j}, 20, v{vWo+j}
v_and_b32 v{vT2}, 24, v{vT2}
v_lshrrev_b32 v{vT2}, 1, v{vT2}
v_add3_u32 v{vT3}, v{vT3}, v{vT2}, v{vWo+j}
v_mul_u32_u24 v{vT3}, 1280, v{vT3}
v_lshl_add_u32 v{vWo+j}, v{vT}, 4, v{vT3}""")
        if j & 3: a(f"v_subrev_u32 v{vWo+j}, {1024*(j&3)}, v{vWo+j}")

def wo_dma(a, r):
    sT, sT2 = 70, 71
    tab = [inv_pos(4*r + w) for w in range(4)]
    code = [(2*hh + j//5)*16 + j % 5 for hh, j in tab]
    packed = sum(c << (8*w) for w, c in enumerate(code))
    a(f"""s_lshl_b32 s{sT}, s{sW4}, 3
s_lshr_b32 s{sT}, {packed:#x}, s{sT}
s_and_b32 s{sT2}, s{sT}, 15
s_mul_i32 s{sT2}, s{sT2}, {16*1280}
s_lshr_b32 s{sT}, s{sT}, 4
s_add_u32 s{sT}, s{sT}, s{sC2}
s_and_b32 s{sT}, s{sT}, 3
s_mul_i32 s{sT}, s{sT}, {160*1280}
s_add_u32 s{sT2}, s{sT2}, s{sT}
s_mul_i32 s{sT}, s{sC2}, 160
s_add_u32 s{sT2}, s{sT2}, s{sT}
s_mul_i32 s{sT}, s{sW4}, 5120
s_add_u32 m0, s{sT}, {r*20480}""")
    for j in range(5):
        if j == 4: a("s_add_u32 m0, m0, 4096")
        a(f"buffer_load_dwordx4 v{vWoL+j}, {R(R_C)}, s{sT2} offen offset:{1024*(j&3)} lds")

def g_setup(a, vT, vT2, vT3):
    sT, sT2, sT3, sB = 70, 71, 72, 73
    assert all((q*1639) >> 16 == q//40 for q in range(320))
    a(f"""s_mul_i32 s{sT}, s{sC2}, 40
s_sub_u32 s{sT2}, 320, s{sT}
s_cmp_lt_u32 s{sC2}, 4
s_cselect_b32 s{sT}, s{sT}, s{sT2}
s_cselect_b32 s{sT2}, 16, -16
s_cselect_b32 s{sB}, 0, -16
s_lshl_b32 s{sT3}, s{sKs}, 2
s_add_u32 s{sT3}, s{sT3}, s{sW4}
s_mul_i32 s{sT3}, s{sT3}, {4*GP}
s_add_u32 s{sT}, s{sT}, s{sT3}
s_lshl_b32 s{sT}, s{sT}, 4
s_add_u32 s{sT}, s{sT}, {WS_G}""")
    for j in range(5):
        a(f"""v_add_u32 v{vT}, {64*j}, v0
v_mul_u32_u24 v{vT2}, 1639, v{vT}
v_lshrrev_b32 v{vT2}, 16, v{vT2}
v_mul_u32_u24 v{vT3}, 40, v{vT2}
v_sub_u32 v{vT}, v{vT}, v{vT3}
v_mul_i32_i24 v{vT}, s{sT2}, v{vT}
v_and_b32 v{vT3}, 1, v{vT2}
v_mul_i32_i24 v{vT3}, s{sB}, v{vT3}
v_mul_u32_u24 v{vT2}, {168*16}, v{vT2}
v_add3_u32 v{vT}, v{vT}, v{vT2}, v{vT3}
v_add_u32 v{vGoL+j}, s{sT}, v{vT}""")
        if j & 3: a(f"v_subrev_u32 v{vGoL+j}, {1024*(j&3)}, v{vGoL+j}")

TW = 232
def tw_gen(a, vT, vT2, vT3, vT4):
    a(f"""s_lshl_b32 s70, s{sW4}, 9
s_add_u32 s70, s70, s{sK1}
v_and_b32 v{vT}, 15, v0
v_lshlrev_b32 v{vT}, 5, v{vT}
v_add_u32 v{vT}, s70, v{vT}
v_and_b32 v{vT2}, 48, v0
v_mul_u32_u24 v{vT2}, v{vT2}, v{vT}
s_cmp_lt_u32 s{sC2}, 4
s_mov_b32 s70, {f32(1/2048)}
s_cselect_b32 s70, s70, {f32(-1/2048)}""")
    for n in range(16):
        uu = ((n >> 3) << 1) | (n & 1); w = (n >> 1) & 3
        a(f"""v_and_b32 v{vT3}, 0x7ff, v{vT2}
v_cvt_f32_u32 v{vT3}, v{vT3}
v_mul_f32 v{vT3}, s70, v{vT3}
v_cos_f32 v{vT4}, v{vT3}
v_sin_f32 v{vT3}, v{vT3}
v_add_u32 v{vT2}, v{vT2}, v{vT}
v_cvt_pk_bf16_f32 v{TW+4*uu+w}, v{vT4}, v{vT3}""")

def dbg_read(a):
    a(f"s_load_dwordx8 s[76:83], s[{S_DBG}:{S_DBG+1}], 0\ns_load_dword s75, s[{S_DBG}:{S_DBG+1}], 128")

def dbg_spin(a, vT, lo, hi, slp):
    lp = newlab('L_DLP')
    a(f"""s_mov_b32 s71, 0
v_lshlrev_b32 v{vT}, 2, v0
v_mov_b32 v{vT+2}, 1
v_writelane_b32 v{vT+2}, 64, 32
s_mov_b32 exec_lo, {lo}
s_mov_b32 exec_hi, {hi}
{lp}:
s_sleep {slp}
buffer_load_dword v{vT+1}, v{vT}, {R(R_D)}, 0 offen sc1
s_waitcnt vmcnt(0)
v_cmp_ne_u32 vcc, v{vT+1}, v{vT+2}
s_cbranch_vccz {lp}x
s_add_u32 s71, s71, 1
s_cmp_gt_u32 s71, {SPIN}
s_cbranch_scc0 {lp}
{lp}x:
s_mov_b64 exec, -1""")

def main():
    a = Asm()
    a(f"""s_cmp_ge_u32 s2, 256
s_cbranch_scc1 L_END
s_load_dwordx16 s[4:19], s[0:1], 0
s_load_dwordx8 s[20:27], s[0:1], 64""")
    if CPF:
        a(f"""s_getpc_b64 s[28:29]
L_PC:
v_lshlrev_b32 v255, 7, v0
v_cmp_gt_u32 vcc, L_END-L_PC, v255
s_and_saveexec_b64 s[30:31], vcc
s_cbranch_execz L_NOCPF
global_load_dword v255, v255, s[28:29]
L_NOCPF:
s_mov_b64 exec, -1""")
    if STAMP:
        for i in range(8): a(f"s_mov_b64 s[{S_ST+2*i}:{S_ST+2*i+1}], 0")
    stamp(a, 0)
    a(f"""v_lshrrev_b32 v1, 6, v0
v_and_b32 v0, 63, v0
v_readfirstlane_b32 s3, v1
s_and_b32 s{sP}, s2, 1
s_lshr_b32 s{sCP}, s2, 1
s_and_b32 s{sCP}, s{sCP}, 3
s_lshr_b32 s{sSL}, s2, 3
s_and_b32 s{sW4}, s3, 3
s_and_b32 s{sC2}, s{sSL}, 7
s_lshr_b32 s70, s{sSL}, 4
s_lshl_b32 s70, s70, 1
s_lshl_b32 s{sK1}, s{sCP}, 2
s_add_u32 s{sK1}, s{sK1}, s70
s_add_u32 s{sK1}, s{sK1}, s{sP}
s_sub_u32 s70, 32, s{sK1}
s_cmp_eq_u32 s{sK1}, 0
s_cselect_b32 s70, 16, s70
s_bitcmp1_b32 s{sSL}, 3
s_cselect_b32 s{sK1}, s70, s{sK1}
s_sub_u32 s{sKs}, 32, s{sK1}
s_and_b32 s{sKs}, s{sKs}, 31
s_cmp_lt_u32 s{sC2}, 4
s_cselect_b32 s{sKs}, s{sK1}, s{sKs}
s_mul_i32 s{sRot}, s{sP}, {ROTP}
s_add_u32 s{sRot}, s{sRot}, s{sCP}
s_mul_i32 s{sRot}, s{sRot}, {ROT}
s_sub_u32 s70, s{sRot}, 5
s_min_u32 s{sRot}, s{sRot}, s70
s_cmp_ge_u32 s{sSL}, 24
s_cbranch_scc1 L_DFT
s_cmp_ge_u32 s3, 4
s_cbranch_scc0 L_QCOMP""")
    qkv_loader(a)
    a.label('L_DFT')
    a("s_cmp_ge_u32 s3, 4\ns_cbranch_scc0 L_DCOMP")
    dft_loader(a)
    a.label('L_DCOMP'); dft_compute(a)
    a.label('L_QCOMP'); qkv_compute(a)
    attention(a)
    phase2(a)
    a.label('L_END')
    a('s_endpgm')
    return a

sHG, sI, sJ0 = 56, 57, 58
qM, qG, qT, qT2, qT3 = 2, 3, 4, 5, 6
qOC, qOD, qXC = 7, 8, 9
qXb0, qXb1, qWb, qDb, qXa0, qXa1, qWa, qDa = range(10, 18)
cMk = 18; cI = 20; cOne = 24; cBo = 28; cBp = 32; cBq = 36; Qf = 40
ACC = 52; F0 = 148; F1 = 188
Kf = F0; Vp = F0 + 16; V4 = F0 + 24
def A(rt, t): return ACC + 16*rt + 4*t

def qkv_scalars(a):
    a(f"""s_lshl_b32 s{sHG}, s{sCP}, 1
s_and_b32 s70, s{sSL}, 1
s_add_u32 s{sHG}, s{sHG}, s70
s_lshr_b32 s{sI}, s{sSL}, 1
s_mul_i32 s{sJ0}, s{sI}, 85""")

def attn_consts(a, helper):
    vT, vT2, vT3 = qT, qT2, qT3
    a(f"""v_and_b32 v{qM}, 15, v0
v_lshrrev_b32 v{qG}, 4, v0
v_lshlrev_b32 v{vT}, 2, v{qG}
v_sub_u32 v{vT}, v{qM}, v{vT}
v_mov_b32 v{vT3}, 0xff800000
v_mov_b32 v{cI}, 0
v_mov_b32 v{cI+1}, 0""")
    for r in range(4):
        a(f"""v_subrev_u32 v{vT2}, {r}, v{vT}
v_cmp_gt_u32 vcc, 8, v{vT2}
v_cndmask_b32 v{cBo+r}, v{vT3}, v{cI}, vcc
v_cmp_gt_i32 vcc, -8, v{vT2}
v_cndmask_b32 v{cBp+r}, v{vT3}, v{cI}, vcc
v_mov_b32 v{cOne+r}, 0x3f803f80
v_mov_b32 v{cBq+r}, v{cBp+r if helper else vT3}""")
    for pr in range(2):
        a(f"""v_mov_b32 v{vT2}, 0xffff
v_cmp_le_i32 vcc, {2*pr}, v{vT}
v_cndmask_b32 v{cMk+pr}, 0, v{vT2}, vcc
v_mov_b32 v{vT2}, 0xffff0000
v_cmp_le_i32 vcc, {2*pr+1}, v{vT}
v_cndmask_b32 v{vT2}, 0, v{vT2}, vcc
v_or_b32 v{cMk+pr}, v{cMk+pr}, v{vT2}
v_mov_b32 v{vT2}, 0x3f80
v_cmp_eq_u32 vcc, {2*pr}, v{vT}
v_cndmask_b32 v{cI+2+pr}, 0, v{vT2}, vcc
v_mov_b32 v{vT2}, 0x3f800000
v_cmp_eq_u32 vcc, {2*pr+1}, v{vT}
v_cndmask_b32 v{cI+2+pr}, v{cI+2+pr}, v{vT2}, vcc""")
    for u in range(3): a(f"v_mov_b32 v{Qf+4*u+2}, 0\nv_mov_b32 v{Qf+4*u+3}, 0")
    a(f"""s_mul_i32 s70, s{sW4}, 40
s_add_u32 s70, s70, {L_OS + (48*176 if helper else 0)}
v_mul_u32_u24 v{vT3}, 176, v{qM}
v_add_u32 v{vT3}, s70, v{vT3}
v_lshl_add_u32 v{qOC}, v{qG}, 3, v{vT3}
v_add_u32 v{qOD}, 32, v{vT3}
s_lshl_b32 s70, s{sW4}, 13
s_add_u32 s70, s70, {L_XC}
v_lshlrev_b32 v{qXC}, 4, v0
v_add_u32 v{qXC}, s70, v{qXC}""")

vOS1, vOS2 = 252, 253
def ost_setup(a):
    sN, sT, sT2 = 70, 71, 72
    a(f"""v_mul_u32_u24 v{vOS1}, 26, v0
v_lshrrev_b32 v{vOS1}, 8, v{vOS1}
v_mul_u32_u24 v{vOS1}, {16*176-160}, v{vOS1}
v_lshl_add_u32 v{vOS1}, v0, 4, v{vOS1}
s_mul_i32 s{sT}, s3, {2*176}
s_add_u32 s{sT}, s{sT}, {L_OS}
v_add_u32 v{vOS1}, s{sT}, v{vOS1}
v_lshlrev_b32 v{vOS2}, 4, v0""")
    for q in range(2):
        a(f"""s_lshl_b32 s{sN}, s3, 1
s_add_u32 s{sN}, s{sN}, {q}
s_add_u32 s{sT}, s{sN}, s{sJ0}
s_lshl_b32 s{sT}, s{sT}, 1
s_add_u32 s{sT}, s{sT}, s{sP}
s_and_b32 s{sT2}, s{sT}, 31
s_lshl_b32 s{sT2}, s{sT2}, 3
s_add_u32 s{sT2}, s{sT2}, s{sHG}
s_lshl_b32 s{sT2}, s{sT2}, 6
s_lshr_b32 s{sT}, s{sT}, 5
s_add_u32 s{sT}, s{sT}, s{sT2}
s_mul_i32 s{74+q}, s{sT}, 160
s_cmp_eq_u32 s{sI}, 0
s_cselect_b32 s{sT}, 0, 7
s_cmp_ge_u32 s{sN}, s{sT}
s_cselect_b32 s{76+2*q}, -1, 0xfffffc00
s_cmp_eq_u32 s{sI}, 11
s_cselect_b32 s{sT}, 9, 12
s_cmp_lt_u32 s{sN}, s{sT}
s_mov_b32 s{sT}, 0x0fffffff
s_cselect_b32 s{77+2*q}, s{sT}, 0x3ffff""")

def qkv_loader(a):
    sXo, sWo, sWo2, sWr, sC, sM0X, sM0W, sT, sX0, sW0, sKc = range(59, 70)
    vT, vT2, vT3, vM = 10, 11, 12, 13
    vXo = 242; vWo = 245
    CH = 64*3840
    qkv_scalars(a)
    offs = f"""s_lshl_b32 s{sXo}, s{sKc}, 7
s_add_u32 s{sXo}, s{sXo}, s{sX0}
s_mul_i32 s{sWo}, s{sKc}, {CH}
s_add_u32 s{sWo}, s{sWo}, s{sW0}
s_add_u32 s{sWo2}, s{sWo}, {32*3840}"""
    a(f"""s_lshl_b32 s{sX0}, s{sJ0}, 1
s_add_u32 s{sX0}, s{sX0}, s{sP}
s_mul_i32 s{sX0}, s{sX0}, 1280
s_mul_i32 s{sW0}, s{sHG}, 160
s_lshr_b32 s{sT}, s{sW4}, 1
s_lshl_b32 s{sT}, s{sT}, 2
s_and_b32 s70, s{sW4}, 1
s_add_u32 s{sT}, s{sT}, s70
s_mul_i32 s{sT}, s{sT}, {4*3840}
s_add_u32 s{sW0}, s{sW0}, s{sT}
s_mov_b32 s{sKc}, s{sRot}
{offs}
s_mul_i32 s{sM0X}, s{sW4}, 3072
s_lshl_b32 s{sM0W}, s{sW4}, 12
s_add_u32 s{sM0W}, s{sM0W}, 12288
s_mul_i32 s{sT}, s{sW4}, 24
v_lshrrev_b32 v{vT}, 3, v0
v_add_u32 v{vT}, s{sT}, v{vT}
v_and_b32 v{vT2}, 7, v0""")
    for j in range(3):
        a(f"""v_add_u32 v{vT3}, {8*j}, v{vT}
v_mul_u32_u24 v{vXo+j}, 2560, v{vT3}
v_bfe_u32 v{vT3}, v{vT3}, 1, 3
v_xor_b32 v{vT3}, v{vT3}, v{vT2}
v_lshl_add_u32 v{vXo+j}, v{vT3}, 4, v{vXo+j}""")
        if j: a(f"v_subrev_u32 v{vXo+j}, {1024*j}, v{vXo+j}")
    assert all((q*2185) >> 16 == q//30 for q in range(512))
    assert all((q*26) >> 8 == q//10 for q in range(64))
    for j in range(4):
        a(f"""v_add_u32 v{vT}, {64*j}, v0
v_mul_u32_u24 v{vT2}, 2185, v{vT}
v_lshrrev_b32 v{vT2}, 16, v{vT2}
v_mul_u32_u24 v{vT3}, 30, v{vT2}
v_sub_u32 v{vT}, v{vT}, v{vT3}
v_mul_u32_u24 v{vT3}, 26, v{vT}
v_lshrrev_b32 v{vT3}, 8, v{vT3}
v_mul_u32_u24 v{vT3}, 1120, v{vT3}
v_lshl_add_u32 v{vT}, v{vT}, 4, v{vT3}
v_and_b32 v{vM}, 4, v{vT2}
v_add_u32 v{vT3}, v{vT2}, v{vM}
v_mul_u32_u24 v{vT3}, 3840, v{vT3}
v_add_u32 v{vWo+j}, v{vT}, v{vT3}""")
        if j: a(f"v_subrev_u32 v{vWo+j}, {1024*j}, v{vWo+j}")
    a(f"""v_mov_b32 v{vT}, {OOB}
v_cmp_gt_u32 vcc, 48, v0
v_cndmask_b32 v{vWo+3}, v{vT}, v{vWo+3}, vcc
s_waitcnt lgkmcnt(0)""")
    srd(a, R_A, S_X, 2621440); srd(a, R_B, S_WQKV, 2457600)
    def dma(lo, hi):
        for i in range(lo, hi):
            if i < 3:
                if i == 0 or i == lo: a(f"s_add_u32 m0, s{sWr}, s{sM0X}")
                a(f"buffer_load_dwordx4 v{vXo+i}, {R(R_A)}, s{sXo} offen offset:{1024*i} lds")
            else:
                j = (i-3) & 3; st = (i-3) >> 2
                if j == 0 or i == lo:
                    a(f"s_add_u32 m0, s{sWr}, s{sM0W}")
                    if st: a("s_add_u32 m0, m0, 16384")
                a(f"buffer_load_dwordx4 v{vWo+j}, {R(R_B)}, s{sWo2 if st else sWo} offen offset:{1024*j} lds")
        if hi == 11:
            a(f"""s_add_u32 s70, s{sKc}, 5
s_sub_u32 s71, s{sKc}, 4
s_cmp_eq_u32 s{sKc}, 9
s_cselect_b32 s71, 0, s71
s_cmp_lt_u32 s{sKc}, 5
s_cselect_b32 s{sKc}, s70, s71
{offs}
s_add_u32 s{sWr}, s{sWr}, {QSLOT}
s_cmp_eq_u32 s{sWr}, {3*QSLOT}
s_cselect_b32 s{sWr}, 0, s{sWr}""")
    a(f"s_mov_b32 s{sWr}, {qslot(0)}")
    dma(0, 7)
    srd(a, R_WS, S_WS, WS_END); srd(a, R_C, S_WO, 819200); srd(a, R_D, S_DBG, 256)
    attn_consts(a, True)
    ost_setup(a)
    wo_setup(a, vT, vT2, vT3)
    g_setup(a, vT, vT2, vT3)
    dma(7, 11)
    stamp(a, 1)
    _tc = [0]
    def tr():
        _tc[0] += 1
        if TRACE == 2 and _tc[0] % 3: return
        if TRACE: a(f"s_memtime s[82:83]\ns_waitcnt lgkmcnt(0)\ns_mov_b32 m0, s80\nv_writelane_b32 v60, s82, m0\ns_add_u32 s80, s80, 1")
    if TRACE: a("s_mov_b32 s80, 0\nv_mov_b32 v60, 0")
    a(f"s_mov_b32 s{sC}, 0\nQL_LOOP:")
    dma(0, KA)
    tr(); a(f"s_waitcnt vmcnt({KA})"); tr(); a("s_barrier"); tr()
    dma(KA, 11)
    a(f"s_add_u32 s{sC}, s{sC}, 1\ns_cmp_lt_u32 s{sC}, 9\ns_cbranch_scc1 QL_LOOP")
    wo_dma(a, 0)
    tr(); a("s_waitcnt vmcnt(9)"); tr(); a("s_barrier"); tr()
    stamp(a, 2)
    wo_dma(a, 1)
    tr(); a("s_waitcnt vmcnt(10)"); tr(); a("s_barrier"); tr()
    wo_dma(a, 2)
    tr(); tr(); a("s_barrier"); tr()
    wo_dma(a, 3)
    tr(); tr(); a("s_barrier"); tr()
    if TRACE:
        a(f"""v_lshlrev_b32 v61, 2, v0
s_lshl_b32 s80, s2, 3
s_add_u32 s80, s80, s3
s_lshl_b32 s80, s80, 8
s_add_u32 s80, s80, 0x900000
s_mov_b32 s{R_A}, s{S_WS}
s_mov_b32 s{R_A+1}, s{S_WS+1}
s_mov_b32 s{R_A+2}, 0x1000000
buffer_store_dword v60, v61, {R(R_A)}, s80 offen""")
    a(f"ds_read_b128 {vr(Kf,4)}, v{qXC} offset:6144")
    for u in range(3):
        a(f"ds_read_b128 {vr(Kf+4+4*u,4)}, v{qXC} offset:{2048*u}")
    for u in range(3):
        a(f"ds_read_b64 {vr(Qf+4*u,2)}, v{qXC} offset:{2048*u+1024}")
        a(f"ds_read_b64 {vr(Vp+2+2*u,2)}, v{qXC} offset:{2048*u+1024+8}")
    a(f"ds_read_b64 {vr(Vp,2)}, v{qXC} offset:7168")
    wo_dma(a, 4)
    a("s_waitcnt lgkmcnt(0)\ns_branch L_ATT")

def qkv_compute(a):
    sRd, sC, sT, sT2 = range(59, 63)
    vT, vT2, vT3 = qT, qT2, qT3
    F = [F0, F1]
    hi_v[0] = max(hi_v[0], 256)
    qkv_scalars(a)
    vP2, vPO, vPD = 228, 229, 230
    sPW, sPO, sIt2, sItO = 63, 64, 65, 66
    assert all((q*7282) >> 16 == q//9 for q in range(5800))
    assert all((q*11) >> 5 == q//3 for q in range(9))
    def wline(dst, first, n):
        a(f"""s_mul_i32 s{sT}, s{sW4}, 24
s_add_u32 s{sT}, s{sT}, s{sSL}
s_mul_i32 s{sT}, s{sT}, {n}
s_add_u32 s{sT}, s{sT}, {first}
v_add_u32 v{vT}, s{sT}, v0
v_mul_u32_u24 v{vT2}, 7282, v{vT}
v_lshrrev_b32 v{vT2}, 16, v{vT2}
v_mul_u32_u24 v{vT3}, 9, v{vT2}
v_sub_u32 v{vT}, v{vT}, v{vT3}
v_mul_u32_u24 v{vT3}, 11, v{vT}
v_lshrrev_b32 v{vT3}, 5, v{vT3}
v_mul_u32_u24 v{vT3}, {1280-384}, v{vT3}
v_lshl_add_u32 v{vT}, v{vT}, 7, v{vT3}
v_and_b32 v{vT3}, 63, v{vT2}
v_lshrrev_b32 v{dst}, 7, v{vT2}
v_add_u32 v{dst}, s{sRot}, v{dst}
v_subrev_u32 v{F0}, 5, v{dst}
v_min_u32 v{dst}, v{dst}, v{F0}
v_lshl_add_u32 v{vT3}, v{dst}, 6, v{vT3}
v_and_b32 v{vT2}, 64, v{vT2}
v_mul_u32_u24 v{vT2}, 5, v{vT2}
v_add_u32 v{vT2}, v{vT2}, v{vT3}
v_mul_u32_u24 v{vT2}, 3840, v{vT2}
v_add_u32 v{vT}, v{vT}, v{vT2}
v_mov_b32 v{vT2}, {OOB}
v_cmp_gt_u32 vcc, {n}, v0
v_cndmask_b32 v{dst}, v{vT2}, v{vT}, vcc""")
    wline(vP2, 0, 6*N1)
    a(f"""s_mul_i32 s{sPW}, s{sCP}, 320
s_and_b32 s{sPW}, s{sPW}, 0xffffff80
s_waitcnt lgkmcnt(0)""")
    srd(a, R_B, S_WQKV, 2457600)
    a(f"buffer_load_dword v{vPD}, v{vP2}, {R(R_B)}, s{sPW} offen")
    if XPF:
        srd(a, R_A, S_X, 2621440)
        a(f"""s_and_b32 s{sT2}, s{sSL}, 1
s_mul_i32 s{sT2}, s{sT2}, 48
s_add_u32 s{sT2}, s{sT2}, s{sJ0}
s_lshl_b32 s{sT2}, s{sT2}, 1
s_add_u32 s{sT2}, s{sT2}, s{sP}
s_mul_i32 s{sT2}, s{sT2}, 1280
s_lshl_b32 s70, s{sW4}, 7
s_add_u32 s{sT2}, s{sT2}, s70
v_mul_u32_u24 v{vT3}, 2560, v0
v_mov_b32 v{vT2}, {OOB}
v_cmp_gt_u32 vcc, 48, v0
v_cndmask_b32 v{vT3}, v{vT2}, v{vT3}, vcc
buffer_load_dword v{vPD}, v{vT3}, {R(R_A)}, s{sT2} offen
buffer_load_dword v{vPD}, v{vT3}, {R(R_A)}, s{sT2} offen offset:512
buffer_load_dword v{vPD}, v{vT3}, {R(R_A)}, s{sT2} offen offset:768""")
    if N1 < 10: wline(vP2, 576*N1, 6*(10-N1))
    srd(a, R_C, S_WO, 819200)
    a(f"""s_lshl_b32 s{sPO}, s{sSL}, 2
s_add_u32 s{sPO}, s{sPO}, s{sW4}
s_mul_i32 s{sPO}, s{sPO}, 6400
v_lshlrev_b32 v{vPO}, 7, v0
v_mov_b32 v{vT2}, {OOB}
v_cmp_gt_u32 vcc, 50, v0
v_cndmask_b32 v{vPO}, v{vT2}, v{vPO}, vcc
s_and_b32 s{sItO}, s{sSL}, {POM}
s_add_u32 s{sItO}, s{sItO}, {PO0 + 50*NOPO}
s_lshr_b32 s{sIt2}, s{sSL}, 1
s_and_b32 s{sIt2}, s{sIt2}, {P2M}
s_add_u32 s{sIt2}, s{sIt2}, {P20}""")
    srd(a, R_WS, S_WS, WS_END); srd(a, R_D, S_DBG, 256)
    for i in range(0, 96, 2): a(f"v_pk_mov_b32 {vr(ACC+i,2)}, 0, 0")
    attn_consts(a, False)
    ost_setup(a)
    tw_gen(a, vT, vT2, vT3, F0)
    a(f"""v_bfe_u32 v{vT}, v{qM}, 1, 3
v_xor_b32 v{vT}, v{vT}, v{qG}
v_lshlrev_b32 v{vT}, 4, v{vT}
v_lshl_add_u32 v{qXb0}, v{qM}, 7, v{vT}
v_xor_b32 v{qXb1}, 64, v{qXb0}
v_bfe_u32 v{vT}, v0, 2, 3
v_mul_u32_u24 v{vT}, 480, v{vT}
v_lshrrev_b32 v{vT2}, 5, v0
v_lshlrev_b32 v{vT2}, 13, v{vT2}
v_add_u32 v{vT2}, 12288, v{vT2}
s_mul_i32 s{sT}, s{sW4}, 40
v_add3_u32 v{vT}, v{vT}, v{vT2}, s{sT}
v_add_u32 v{vT3}, 3840, v{vT2}
v_and_b32 v{vT2}, 3, v0
v_lshl_add_u32 v{qWb}, v{vT2}, 3, v{vT}
v_cmp_eq_u32 vcc, 2, v{vT2}
v_min_u32 v{vT2}, 2, v{vT2}
v_mul_u32_u24 v{vT2}, 160, v{vT2}
v_add3_u32 v{qDb}, v{vT}, v{vT2}, 32
v_cndmask_b32 v{qDb}, v{qDb}, v{vT3}, vcc
s_mov_b32 s{sRd}, {qslot(0)}
v_add_u32 v{qXa0}, s{sRd}, v{qXb0}
v_add_u32 v{qXa1}, s{sRd}, v{qXb1}
v_add_u32 v{qWa}, s{sRd}, v{qWb}
v_add_u32 v{qDa}, s{sRd}, v{qDb}""")
    def reads(fs, s):
        b = F[fs]; r = []
        for t, (reg, off) in enumerate(((qWa, 0), (qWa, 160), (qDa, 0), (qWa, 320))):
            for h in range(2):
                r.append(f"ds_read_b64_tr_b16 {vr(b+24+4*t+2*h,2)}, v{reg} offset:{s*16384+h*4096+off}")
        for rt in range(6):
            r.append(f"ds_read_b128 {vr(b+4*rt,4)}, v{qXa1 if s else qXa0} offset:{2048*rt}")
        return r
    def mfmas(fs, order=range(6)):
        b = F[fs]; m = []
        for rt in order:
            x = vr(b+4*rt, 4)
            for t in range(4):
                w = vr(b+24+4*t, 4); c = vr(A(rt, t), 4)
                m.append(f"{MF} {c}, {w}, {x}, {c}" if t < 3 else f"{MF} {c}, {x}, {w}, {c}")
        return m
    adv = [f"s_add_u32 s{sRd}, s{sRd}, {QSLOT}\ns_cmp_eq_u32 s{sRd}, {3*QSLOT}\ns_cselect_b32 s{sRd}, 0, s{sRd}",
           f"v_add_u32 v{qXa0}, s{sRd}, v{qXb0}", f"v_add_u32 v{qXa1}, s{sRd}, v{qXb1}",
           f"v_add_u32 v{qWa}, s{sRd}, v{qWb}", f"v_add_u32 v{qDa}, s{sRd}, v{qDb}"]
    stamp(a, 1)
    a(f"s_mov_b32 s{sC}, 0\ns_barrier")
    stamp(a, 2)
    for x in reads(0, 0): a(x)
    a.label('Q_LOOP')
    a("s_waitcnt lgkmcnt(0)")
    pf = []
    if not NOPO: pf.append(f"s_cmp_lg_u32 s{sC}, s{sItO}\ns_cbranch_scc1 Q_NPO\nbuffer_load_dword v{vPD}, v{vPO}, {R(R_C)}, s{sPO} offen\nQ_NPO:")
    if N1 < 10 and not P2D: pf.append(f"s_cmp_lg_u32 s{sC}, s{sIt2}\ns_cbranch_scc1 Q_NP2\nbuffer_load_dword v{vPD}, v{vP2}, {R(R_B)}, s{sPW} offen\nQ_NP2:")
    interleave(a, mfmas(0), reads(1, 1) + adv + pf)
    a(f"s_waitcnt lgkmcnt(0)\ns_barrier")
    interleave(a, mfmas(1), reads(0, 0) + [f"s_add_u32 s{sC}, s{sC}, 1\ns_cmp_lg_u32 s{sC}, 9"])
    a("s_cbranch_scc1 Q_LOOP\ns_barrier\ns_waitcnt lgkmcnt(0)")
    interleave(a, mfmas(0, (3, 4, 5, 2)), reads(1, 1))
    a("s_waitcnt lgkmcnt(0)\ns_barrier")
    def send(rt):
        u = rt - 3
        return (pkl(A(rt,1), A(rt,1)) + pkl(A(rt,1)+2, A(rt,2)) + [f"ds_write_b128 v{qXC}, {vr(A(rt,1),4)} offset:{2048*u}"]
                + pkl(A(rt,0), A(rt,0)) + pkl(A(rt,0)+2, A(rt,3)) + [f"ds_write_b128 v{qXC}, {vr(A(rt,0),4)} offset:{2048*u+1024}"])
    def own(rt): return pkl(Kf+4+4*rt, A(rt,1)) + pkl(Kf+6+4*rt, A(rt,2)) + pkl(Vp+2+2*rt, A(rt,3))
    o2 = own(2)
    s2 = o2[:4] + [f"ds_write_b128 v{qXC}, {vr(Kf+12,4)} offset:6144"] + o2[4:] + [f"ds_write_b64 v{qXC}, {vr(Vp+6,2)} offset:7168"]
    m = mfmas(1, (3, 4, 5, 2)) + mfmas(0, (0, 1)) + mfmas(1, (0, 1))
    for x in m[:9]: a(x)
    interleave(a, m[9:28], send(3) + send(4) + send(5) + s2, per=2)
    interleave(a, m[28:], pkl(Qf+8, A(2, 0)) + [f"v_pk_mov_b32 {vr(Vp,2)}, 0, 0"])
    stamp(a, 3)
    a("s_waitcnt lgkmcnt(0)\ns_barrier")
    a(f"v_pk_mov_b32 {vr(Kf,2)}, 0, 0\nv_pk_mov_b32 {vr(Kf+2,2)}, 0, 0")
    for rt in range(2):
        for x in own(rt) + pkl(Qf+4*rt, A(rt, 0)): a(x)

def attention(a):
    a.label('L_ATT')
    T = F1; So = F1 + 16; Sp = F1 + 28; Mx = ACC + 48; O = ACC + 56
    for i in range(4): a(f"{MF} {vr(T+4*i,4)}, {vr(Kf+4*i,4)}, {vr(cI,4)}, 0")
    for u in range(3):
        for q in range(2): a(f"v_permlane16_swap_b32 v{Qf+4*u+2+q}, v{Kf+4*u+6+q}")
    a(f"s_mov_b32 s70, {f32(20**-0.5 * 1.4426950408889634)}\ns_mov_b32 s71, s70")
    ms = []
    for u in range(3):
        ms.append(f"{MF} {vr(So+4*u,4)}, {vr(Kf+4*u+4,4)}, {vr(Qf+4*u,4)}, {vr(cBo,4)}")
        ms.append(f"{MF} {vr(Sp+4*u,4)}, {vr(Kf+4*u,4)}, {vr(Qf+4*u,4)}, {vr(cBq if u == 0 else cBp,4)}")
    interleave(a, ms, sum((pkl(V4+2*i, T+4*i) for i in range(4)), []), start=1, per=2)
    m0, m1, m2, t0 = Mx, Mx+2, Mx+4, Mx+6
    for u in range(3):
        for r in range(4): a(f"v_max_f32 v{So+4*u+r}, v{So+4*u+r}, v{Sp+4*u+r}")
        s = So + 4*u; m = Mx + 2*u
        a(f"v_max3_f32 v{m}, v{s}, v{s+1}, v{s+2}\nv_max_f32 v{m}, v{m}, v{s+3}")
    a(f"""v_mov_b32 v{t0}, v{m2}
v_permlane32_swap_b32 v{m0}, v{m1}
v_permlane32_swap_b32 v{m2}, v{t0}
v_max_f32 v{m0}, v{m0}, v{m1}
v_max_f32 v{m2}, v{m2}, v{t0}
v_permlane16_swap_b32 v{m0}, v{m2}
v_max_f32 v{m0}, v{m0}, v{m2}
v_mul_f32 v{m0}, s70, v{m0}
v_mov_b32 v{m2}, v{m0}
v_permlane16_swap_b32 v{m0}, v{m2}
v_mov_b32 v{m1}, v{m0}""")
    def sm(u):
        return [f"v_pk_fma_f32 {vr(So+4*u+2*q,2)}, {vr(So+4*u+2*q,2)}, s[70:71], {vr(Mx+2*u,2)} op_sel_hi:[1,0,0] neg_lo:[0,0,1] neg_hi:[0,0,1]" for q in range(2)]
    def ex(u): return [f"v_exp_f32 v{So+4*u+r}, v{So+4*u+r}" for r in range(4)]
    def pp(u):
        p = Qf + 4*u
        return pkl(p, So+4*u) + [f"v_and_b32 v{p+2+q}, v{cMk+q}, v{p+q}" for q in range(2)] + [f"v_xor_b32 v{p+q}, v{p+2+q}, v{p+q}" for q in range(2)]
    def pv(u):
        p = vr(Qf+4*u, 4); o = O + 12*u
        return [f"{MF} {vr(o+8,4)}, {vr(cOne,4)}, {p}, 0", f"{MF} {vr(o,4)}, {vr(Vp+2*u,4)}, {p}, 0", f"{MF} {vr(o+4,4)}, {vr(V4+2*u,4)}, {p}, 0"]
    def fin(u):
        o = O + 12*u
        return ([f"v_rcp_f32 v{o+8}, v{o+8}"] + [f"v_pk_mul_f32 {vr(o+2*q,2)}, {vr(o+2*q,2)}, {vr(o+8,2)} op_sel_hi:[1,0]" for q in range(4)]
                + pkl(o, o) + [f"ds_write_b64 v{qOC}, {vr(o,2)} offset:{u*16*176}"] + pkl(o+4, o+4))
    for x in sm(2): a(x)
    a(f"v_permlane32_swap_b32 v{m0}, v{m1}")
    for x in ex(2) + sm(0) + sm(1) + ex(0) + pp(2) + ex(1): a(x)
    interleave(a, pv(2), pp(0), per=2)
    interleave(a, pv(0), pp(1), per=2, start=0)
    interleave(a, pv(1), fin(2), per=2)
    for x in fin(0) + fin(1): a(x)
    a("s_mov_b32 exec_lo, 0\ns_mov_b32 exec_hi, 0xffff0000")
    for u in range(3): a(f"ds_write_b64 v{qOD}, {vr(O+12*u+4,2)} offset:{u*16*176}")
    a("s_mov_b64 exec, -1")
    v1, v2, vd = vOS1, vOS2, 12
    a(f"""s_waitcnt vmcnt(0) lgkmcnt(0)
s_barrier
ds_read_b128 {vr(vd,4)}, v{v1}
ds_read_b128 {vr(vd+4,4)}, v{v1} offset:176
s_mov_b64 exec, s[76:77]
s_waitcnt lgkmcnt(1)
buffer_store_dwordx4 {vr(vd,4)}, v{v2}, {R(R_WS)}, s74 offen sc1
s_mov_b64 exec, s[78:79]
s_waitcnt lgkmcnt(0)
buffer_store_dwordx4 {vr(vd+4,4)}, v{v2}, {R(R_WS)}, s75 offen sc1
s_mov_b64 exec, -1""")

sA, sN2 = 56, 57
def dft_scalars(a):
    a(f"""s_sub_u32 s{sA}, s{sSL}, 24
s_lshl_b32 s{sN2}, s{sA}, 3
s_lshl_b32 s70, s{sW4}, 1
s_add_u32 s{sN2}, s{sN2}, s70
s_add_u32 s{sN2}, s{sN2}, s{sP}""")

def dft_loader(a):
    sT, sT2, sXo, sKo, sM0X, sM0C = range(58, 64)
    vT, vT2, vT3, vGa, vGr, vGo_ = 2, 3, 4, 5, 6, 7
    vXo = 8; vCo = 12; XG = 20; GW = 28
    dft_scalars(a)
    a(f"""v_lshrrev_b32 v{vT}, 3, v0
v_and_b32 v{vT2}, 7, v0
s_mul_i32 s{sXo}, s{sN2}, 1280
s_lshl_b32 s{sM0X}, s{sW4}, 12""")
    for j in range(4):
        a(f"""v_add_u32 v{vT3}, {8*j}, v{vT}
v_mul_u32_u24 v{vXo+j}, {64*1280}, v{vT3}
v_bfe_u32 v{vT3}, v{vT3}, 1, 3
v_xor_b32 v{vT3}, v{vT3}, v{vT2}
v_lshl_add_u32 v{vXo+j}, v{vT3}, 4, v{vXo+j}""")
        if j: a(f"v_subrev_u32 v{vXo+j}, {1024*j}, v{vXo+j}")
    sFo = 65
    for i in range(5):
        a(f"s_add_u32 s70, s{sRot}, {i}\ns_sub_u32 s71, s70, 5\ns_min_u32 s70, s70, s71\ns_lshl_b32 s{sFo+i}, s70, 7")
    a("s_waitcnt lgkmcnt(0)")
    srd(a, R_A, S_X, 2621440)
    def xd(f):
        for h in range(2):
            a(f"s_add_u32 m0, s{sM0X}, {DSLOT*(f%3) + 16384*h}")
            a(f"s_add_u32 s{sT}, s{sXo}, s{sFo+f}" if h == 0 else f"s_add_u32 s{sT}, s{sT}, 640")
            for j in range(4):
                a(f"buffer_load_dwordx4 v{vXo+j}, {R(R_A)}, s{sT} offen offset:{1024*j} lds")
    sEm = 64
    def cd(f):
        for j in range(5):
            if j == 0: a(f"s_add_u32 m0, s{sM0C}, {DSLOT*(f%3) + 32768}\ns_add_u32 s{sT}, s{sKo}, s{sFo+f}\ns_mov_b32 exec_lo, s{sEm}")
            if j == 4: a("s_add_u32 m0, m0, 4096")
            a(f"buffer_load_dwordx4 v{vCo+j}, {R(R_B)}, s{sT} offen offset:{1024*(j&3)} lds")
            if j == 0: a("s_mov_b32 exec_lo, -1")
    xd(0)
    a(f"""s_lshl_b32 s70, s{sCP}, 2
s_add_u32 s70, s70, s{sW4}
s_cmp_eq_u32 s70, 2
s_cselect_b32 s{sEm}, 0xffffff00, -1
s_cbranch_scc0 L_NOROW
v_mov_b32 v{XG}, 0xbf803f80
v_lshlrev_b32 v{XG+1}, 2, v0
v_and_b32 v{XG+1}, 127, v{XG+1}
v_add_u32 v{XG+1}, {32768+10240}, v{XG+1}
ds_write_b32 v{XG+1}, v{XG}
ds_write_b32 v{XG+1}, v{XG} offset:{DSLOT}
v_add_u32 v{XG+1}, {2*DSLOT}, v{XG+1}
ds_write_b32 v{XG+1}, v{XG}
s_waitcnt lgkmcnt(0)
L_NOROW:""")
    a(f"""s_lshr_b32 s{sKo}, s{sCP}, 1
s_mul_i32 s{sKo}, s{sKo}, 160
s_and_b32 s70, s{sCP}, 1
s_add_u32 s{sKo}, s{sKo}, s70
s_mul_i32 s{sKo}, s{sKo}, 1280
s_and_b32 s70, s{sW4}, 1
s_mul_i32 s70, s70, {40*2560}
s_add_u32 s{sKo}, s{sKo}, s70
s_mul_i32 s{sM0C}, s{sW4}, 5120
s_cmp_lt_u32 s{sW4}, 2
s_cselect_b32 s{R_B}, s{S_HRE}, s{S_HIM}
s_cselect_b32 s{R_B+1}, s{S_HRE+1}, s{S_HIM+1}
s_mov_b32 s{R_B+2}, 819200
s_mov_b32 s{R_B+3}, 0x20000
s_and_b32 s70, s{sW4}, 1
s_lshl_b32 s70, s70, 2""")
    for j in range(5):
        a(f"""v_add_u32 v{vT3}, {8*j}, v{vT}
v_mul_u32_u24 v{vCo+j}, 2560, v{vT3}
v_lshrrev_b32 v{vT3}, 1, v{vT3}
v_add_u32 v{vT3}, s70, v{vT3}
v_and_b32 v{vT3}, 7, v{vT3}
v_xor_b32 v{vT3}, v{vT3}, v{vT2}
v_lshl_add_u32 v{vCo+j}, v{vT3}, 4, v{vCo+j}""")
        if j & 3: a(f"v_subrev_u32 v{vCo+j}, {1024*(j&3)}, v{vCo+j}")
    a(f"""s_lshl_b32 s70, s{sCP}, 3
v_add_u32 v{vT3}, s70, v{vT}
v_bfe_u32 v{vT3}, v{vT3}, 1, 3
v_xor_b32 v{vT3}, v{vT3}, v{vT2}
v_lshlrev_b32 v{vGo_}, 4, v{vT3}
s_lshl_b32 s70, s{sCP}, 10
s_add_u32 s70, s70, s{sM0X}
v_lshlrev_b32 v{vGr}, 4, v0
v_add_u32 v{vGr}, s70, v{vGr}
v_mov_b32 v{vGa}, 0""")
    srd(a, R_WS, S_WS, WS_END); srd(a, R_C, S_WO, 819200); srd(a, R_D, S_GATE, 1280)
    wo_setup(a, vT, vT2, vT3)
    g_setup(a, vT, vT2, vT3)
    a(f"""s_lshl_b32 s{sT2}, s{sA}, 2
s_add_u32 s{sT2}, s{sT2}, s{sW4}
s_mul_i32 s{sT2}, s{sT2}, 25600
v_lshlrev_b32 v{vT}, 7, v0
v_mov_b32 v{vT3}, {OOB}
v_cmp_gt_u32 vcc, 50, v0
v_cndmask_b32 v{vT}, v{vT3}, v{vT}, vcc""")
    def gate(f):
        if f == 1: a(f"v_add_u32 v{vGr}, {DSLOT}, v{vGr}")
        if f == 2: a(f"v_add_u32 v{vGr}, {DSLOT}, v{vGr}")
        if f == 3: a(f"v_subrev_u32 v{vGr}, {2*DSLOT}, v{vGr}")
        if f == 4: a(f"v_add_u32 v{vGr}, {DSLOT}, v{vGr}")
        a(f"ds_read_b128 {vr(XG,4)}, v{vGr}\nds_read_b128 {vr(XG+4,4)}, v{vGr} offset:16384\ns_waitcnt lgkmcnt(0)")
        for d in range(4):
            a(f"v_dot2c_f32_bf16 v{vGa}, v{XG+d}, v{GW+4*f+d}\nv_dot2c_f32_bf16 v{vGa}, v{XG+4+d}, v{GW+20+4*f+d}")
    cd(0); xd(1)
    stamp(a, 1)
    a("s_waitcnt vmcnt(8)\ns_barrier")
    for i in range(10): a(f"buffer_load_dwordx4 {vr(GW+4*i,4)}, v{vGo_}, {R(R_D)}, s{sFo+i%5} offen offset:{640*(i//5)}")
    srd(a, R_D, S_DBG, 256)
    cd(1); xd(2)
    a("s_waitcnt vmcnt(8)")
    gate(0)
    a("s_barrier")
    cd(2); xd(3)
    gate(1)
    a("s_waitcnt vmcnt(8)\ns_barrier")
    cd(3); xd(4)
    gate(2)
    a("s_waitcnt vmcnt(8)\ns_barrier")
    cd(4)
    for q in range(NPF): a(f"buffer_load_dword v{vT3}, v{vT}, {R(R_C)}, s{sT2} offen\ns_add_u32 s{sT2}, s{sT2}, 6400")
    gate(3)
    a(f"s_waitcnt vmcnt({NPF})\ns_barrier")
    stamp(a, 2)
    gate(4)
    a(f"""v_add_f32_dpp v{vGa}, v{vGa}, v{vGa} quad_perm:[1,0,3,2] row_mask:0xf bank_mask:0xf
v_add_f32_dpp v{vGa}, v{vGa}, v{vGa} quad_perm:[2,3,0,1] row_mask:0xf bank_mask:0xf
v_add_f32_dpp v{vGa}, v{vGa}, v{vGa} row_half_mirror row_mask:0xf bank_mask:0xf
s_lshl_b32 s{sT}, s{sCP}, 6
s_and_b32 s{sT2}, s{sN2}, 31
s_lshl_b32 s{sT2}, s{sT2}, 8
s_add_u32 s{sT}, s{sT}, s{sT2}
s_lshr_b32 s{sT2}, s{sN2}, 5
s_lshl_b32 s{sT2}, s{sT2}, 2
s_add_u32 s{sT}, s{sT}, s{sT2}
s_add_u32 s{sT}, s{sT}, {WS_GATE}
s_mov_b32 exec_lo, 0x01010101
s_mov_b32 exec_hi, 0x01010101
buffer_store_dword v{vGa}, v0, {R(R_WS)}, s{sT} offen sc1
s_mov_b64 exec, -1
s_barrier
s_barrier
s_waitcnt vmcnt(0)
s_barrier""")
    stamp(a, 3)
    a(f"""s_cmp_lg_u32 s3, 4
s_cbranch_scc1 L_NOPUB
v_mov_b32 v{vT}, 0
v_mov_b32 v{vT2}, 1
s_mov_b64 exec, 1
buffer_atomic_add v{vT2}, v{vT}, {R(R_D)}, 0 offen offset:128 sc1
s_mov_b64 exec, -1
L_NOPUB:""")
    for r in range(5): wo_dma(a, r)
    a("s_waitcnt vmcnt(0)\ns_barrier\ns_branch L_P2")

def dft_compute(a):
    V = RegAlloc('v', 2, 256)
    sKo, sT, sT2 = range(58, 61)
    vM, vG, vT, vT2, vT3 = [V.alloc() for _ in range(5)]
    vXa0, vXa1, vCa0, vCa1, vSp = [V.alloc() for _ in range(5)]
    SEL = V.alloc(10, 2)
    acc = V.alloc(80, 4)
    FC = [V.alloc(40, 4), V.alloc(40, 4)]
    RW = V.alloc(16, 4); fRe = V.alloc(4, 4); fIm = V.alloc(4, 4)
    TT = V.alloc(16, 4); XF = V.alloc(16, 4)
    Sb, Sa, Nb, Na = SEL, SEL+2, SEL+4, SEL+6
    def A_(ct, rt): return acc + 8*ct + 4*rt
    dft_scalars(a)
    a(f"""s_lshr_b32 s{sKo}, s{sCP}, 1
s_mul_i32 s{sKo}, s{sKo}, 160
s_and_b32 s70, s{sCP}, 1
s_add_u32 s{sKo}, s{sKo}, s70
s_mul_i32 s{sKo}, s{sKo}, 1280
s_and_b32 s70, s{sW4}, 1
s_mul_i32 s70, s70, {40*2560}
s_add_u32 s{sKo}, s{sKo}, s70
v_mul_u32_u24 v{vT}, 52, v0
v_lshrrev_b32 v{vT}, 8, v{vT}
v_mul_u32_u24 v{vT}, {2560-640}, v{vT}
v_lshl_add_u32 v{vT}, v0, 7, v{vT}
v_mov_b32 v{vT3}, {OOB}
v_cmp_gt_u32 vcc, 25, v0
v_cndmask_b32 v{vT}, v{vT3}, v{vT}, vcc
s_mul_i32 s{sT}, s{sA}, {5*2560}
s_add_u32 s{sT}, s{sT}, s{sKo}
s_waitcnt lgkmcnt(0)
s_cmp_lt_u32 s{sW4}, 2
s_cselect_b32 s{R_B}, s{S_HRE}, s{S_HIM}
s_cselect_b32 s{R_B+1}, s{S_HRE+1}, s{S_HIM+1}
s_mov_b32 s{R_B+2}, 819200
s_mov_b32 s{R_B+3}, 0x20000
buffer_load_dword v{RW}, v{vT}, {R(R_B)}, s{sT} offen""")
    assert all((q*52) >> 8 == q//5 for q in range(25))
    if PRE:
        srd(a, R_C, S_WO, 819200)
        a(f"""s_sub_u32 s70, s2, 192
s_lshl_b32 s70, s70, 2
s_add_u32 s70, s70, s{sW4}
s_mul_i32 s70, s70, 3200
v_lshlrev_b32 v{vT}, 7, v0
v_cndmask_b32 v{vT}, v{vT3}, v{vT}, vcc
buffer_load_dword v{RW+1}, v{vT}, {R(R_C)}, s70 offen""")
    srd(a, R_C, S_SRE, 8388608); srd(a, R_D, S_SIM, 8388608); srd(a, R_WS, S_WS, WS_END)
    a(f"""v_and_b32 v{vM}, 15, v0
v_lshrrev_b32 v{vG}, 4, v0
v_lshrrev_b32 v{vT}, 1, v{vM}
s_lshl_b32 s{sT}, s{sW4}, 3
v_add_u32 v{vT}, s{sT}, v{vT}
v_lshlrev_b32 v{vT}, 18, v{vT}
v_lshl_add_u32 v{vT}, v{vG}, 3, v{vT}
buffer_load_dwordx2 {vr(fRe,2)}, v{vT}, {R(R_C)}, 0 offen
buffer_load_dwordx2 {vr(fRe+2,2)}, v{vT}, {R(R_C)}, 0 offen offset:32
buffer_load_dwordx2 {vr(fIm,2)}, v{vT}, {R(R_D)}, 0 offen
buffer_load_dwordx2 {vr(fIm+2,2)}, v{vT}, {R(R_D)}, 0 offen offset:32""")
    for i in range(0, 80, 2): a(f"v_pk_mov_b32 {vr(acc+i,2)}, 0, 0")
    a(f"""s_lshl_b32 s70, s3, 8
s_add_u32 s70, s70, s{sSL}
s_cmp_lg_u32 s70, 31
s_cbranch_scc1 L_NOCLR
v_lshlrev_b32 v{vT}, 7, v0
s_and_b32 s70, s2, 7
s_lshl_b32 s70, s70, 13
s_add_u32 s70, s70, {WS_FLAG}
buffer_store_dwordx4 {vr(acc,4)}, v{vT}, {R(R_WS)}, s70 offen sc1
L_NOCLR:
v_bfe_u32 v{vT}, v{vM}, 1, 3
v_xor_b32 v{vT}, v{vT}, v{vG}
v_lshlrev_b32 v{vT}, 4, v{vT}
v_lshl_add_u32 v{vT}, v{vM}, 7, v{vT}
s_lshl_b32 s{sT}, s{sW4}, 12
v_add_u32 v{vXa0}, s{sT}, v{vT}
v_xor_b32 v{vXa1}, 64, v{vXa0}
v_add_u32 v{vCa0}, 32768, v{vT}
v_xor_b32 v{vCa1}, 64, v{vCa0}
s_cmp_eq_u32 s{sCP}, 0
s_cselect_b32 s66, 0x00010001, 0
s_mov_b32 s67, s66
v_lshlrev_b32 v{vT}, 2, v{vG}
v_sub_u32 v{vT}, v{vM}, v{vT}
s_bitcmp1_b32 s{sCP}, 0
s_cselect_b32 s70, 0x80008000, 0""")
    for z in (0, 4, 8): a(f"v_pk_mov_b32 {vr(SEL+z,2)}, 0, 0")
    for pr in range(2):
        a(f"""v_mov_b32 v{vT2}, 0x3f80
v_cmp_eq_u32 vcc, {2*pr}, v{vT}
v_cndmask_b32 v{SEL+2+pr}, 0, v{vT2}, vcc
v_mov_b32 v{vT2}, 0x3f800000
v_cmp_eq_u32 vcc, {2*pr+1}, v{vT}
v_cndmask_b32 v{SEL+2+pr}, v{SEL+2+pr}, v{vT2}, vcc
v_xor_b32 v{SEL+6+pr}, s70, v{SEL+2+pr}""")
    a("s_waitcnt vmcnt(0)")
    srd(a, R_D, S_DBG, 256)
    a(f"""s_lshl_b32 s70, s3, 8
s_add_u32 s70, s70, s{sSL}
s_cmp_lg_u32 s70, 31
s_cbranch_scc1 L_NOCLR2
s_and_b32 s70, s2, 7
s_lshl_b32 s70, s70, 2
v_mov_b32 v{vT}, 1
s_mov_b64 exec, 1
buffer_store_dword v{vT}, v{acc}, {R(R_D)}, s70 offen sc1
s_mov_b64 exec, -1
L_NOCLR2:""")
    def rreads(s): return [f"ds_read_b128 {vr(RW+8*rt+4*h,4)}, v{vXa1 if s else vXa0} offset:{16384*h+2048*rt}" for rt in range(2) for h in range(2)]
    def creads(s): return [f"ds_read_b128 {vr(FC[s]+4*ct,4)}, v{vCa1 if s else vCa0} offset:{2048*ct}" for ct in range(10)]
    def foldm():
        m = []
        for rt in range(2):
            for t, S_ in enumerate((Sa, Sb)): m.append(f"{MF} {vr(TT+8*rt+4*t,4)}, {vr(S_,4)}, {vr(RW+8*rt,4)}, 0")
        for rt in range(2):
            for t, N_ in enumerate((Na, Nb)): m.append(f"{MF} {vr(TT+8*rt+4*t,4)}, {vr(N_,4)}, {vr(RW+8*rt+4,4)}, {vr(TT+8*rt+4*t,4)}")
        return m
    def packx(s): return sum((pkl(XF+8*s+4*rt+2*t, TT+8*rt+4*t) for rt in range(2) for t in range(2)), [])
    def mainm(s):
        m = []
        for ct in range(10):
            for rt in range(2):
                c = vr(A_(ct, rt), 4)
                m.append(f"{MF} {c}, {vr(XF+8*s+4*rt,4)}, {vr(FC[s]+4*ct,4)}, {c}")
        return m
    def step(s, nxt):
        m = mainm(s)
        if not nxt:
            for x in m: a(x)
            return
        cr = creads(1-s)
        interleave(a, m[:9], rreads(1-s) + cr[:5])
        a("s_waitcnt lgkmcnt(5)")
        interleave(a, foldm(), cr[5:])
        interleave(a, m[9:], packx(1-s), start=3, per=2)
        a("s_waitcnt lgkmcnt(0)")
    def adv(f):
        d = DSLOT if (f+1) % 3 else -2*DSLOT
        op = 'v_add_u32' if d > 0 else 'v_subrev_u32'
        for r_ in (vXa0, vXa1, vCa0, vCa1): a(f"{op} v{r_}, {abs(d)}, v{r_}")
    stamp(a, 1)
    a("s_barrier")
    stamp(a, 2)
    for x in rreads(0) + creads(0): a(x)
    a("s_waitcnt lgkmcnt(10)")
    for x in foldm(): a(x)
    for x in packx(0): a(x)
    a("s_waitcnt lgkmcnt(0)")
    for f in range(5):
        step(0, True)
        if f < 4: adv(f)
        a("s_barrier")
        step(1, f < 4)
    stamp(a, 3)
    A1, A2 = RW, RW + 4
    a(f"""v_and_b32 v{vT}, 1, v0
v_cmp_eq_u32 vcc, 1, v{vT}
s_mul_i32 s{sT}, s{sW4}, {10*1024}
v_lshlrev_b32 v{vT2}, 4, v0
v_add_u32 v{vT2}, {L_U}, v{vT2}
v_add_u32 v{vT3}, s{sT}, v{vT2}""")
    for q in range(4):
        a(f"""v_cndmask_b32 v{A1+q}, v{fRe+q}, v{fIm+q}, vcc
v_xor_b32 v{fIm+q}, 0x80008000, v{fIm+q}
v_cndmask_b32 v{A2+q}, v{fIm+q}, v{fRe+q}, vcc""")
    U = FC[0]
    for ct in range(10):
        a(pk(U+4*ct, A_(ct, 0))); a(pk(U+4*ct+2, A_(ct, 1)))
        a(f"ds_write_b128 v{vT3}, {vr(U+4*ct,4)} offset:{1024*ct}")
    vGo, vGe = vXa1, vCa0
    a(f"""s_lshl_b32 s{sT}, s{sW4}, 7
s_lshl_b32 s{sT2}, s{sA}, 1
s_add_u32 s{sT}, s{sT}, s{sT2}
s_add_u32 s{sT}, s{sT}, s{sP}
s_mul_i32 s{sT}, s{sT}, {GP*16}
s_add_u32 s{sT}, s{sT}, {WS_G}
v_mul_u32_u24 v{vGe}, {32*GP*16}, v{vG}
v_add_u32 v{vGe}, s{sT}, v{vGe}
s_and_b32 s{sT}, s{sCP}, 1
s_mul_i32 s{sT}, s{sT}, {168*16}
s_lshr_b32 s{sT2}, s{sCP}, 1
s_mul_i32 s{sT2}, s{sT2}, 1280
s_add_u32 s{sT2}, s{sT2}, s{sT}
v_lshl_add_u32 v{vGo}, v{vM}, 4, v{vGe}
v_add_u32 v{vGo}, s{sT2}, v{vGo}
v_add_u32 v{vGe}, {160*16}, v{vGe}
v_mov_b32 v{vXa0}, {OOB}
v_cndmask_b32 v{vGe}, v{vXa0}, v{vGe}, s[66:67]
s_mov_b32 s{sT}, 0
s_mov_b32 s{sT2}, {16*GP*16}
s_waitcnt lgkmcnt(0)
s_barrier""")
    UB = [FC[0], FC[1]]
    order = (1, 2, 3, 4, 0)
    def rd(i):
        ct = order[i]; b = UB[i & 1]; r = []
        for w in range(4):
            r.append(f"ds_read_b128 {vr(b+8*w,4)}, v{vT2} offset:{w*10240+1024*ct}")
            r.append(f"ds_read_b128 {vr(b+8*w+4,4)}, v{vT2} offset:{w*10240+1024*(ct+5)}")
        return r
    def fin(i, vo, off):
        d = acc + 24*(i % 3); o = d + 16; r = []
        for w in range(4): r.append(f"v_cvt_pk_bf16_f32 v{o+w}, v{d+4*w}, v{d+4*w+1}")
        r.append(f"buffer_store_dwordx4 {vr(o,4)}, v{vo}, {R(R_WS)}, s{sT} offen offset:{off} sc1")
        for w in range(4): r.append(f"v_cvt_pk_bf16_f32 v{o+4+w}, v{d+4*w+2}, v{d+4*w+3}")
        r.append(f"buffer_store_dwordx4 {vr(o+4,4)}, v{vo}, {R(R_WS)}, s{sT2} offen offset:{off} sc1")
        return r
    for x in rd(0): a(x)
    for i in range(5):
        a("s_waitcnt lgkmcnt(0)")
        if i < 4:
            for x in rd(i+1): a(x)
        b = UB[i & 1]; d = acc + 24*(i % 3)
        m1 = [f"{MF} {vr(d+4*w,4)}, {vr(A1,4)}, {vr(b+8*w,4)}, 0" for w in range(4)]
        m2 = [f"{MF} {vr(d+4*w,4)}, {vr(A2,4)}, {vr(b+8*w+4,4)}, {vr(d+4*w,4)}" for w in range(4)]
        fl = fin(i-1, vGo, 256*order[i-1]) if i else []
        if i < 4:
            interleave(a, m1 + m2, fl, per=2, start=1)
        else:
            d5 = acc + 24*(5 % 3)
            m0 = [f"{MF} {vr(d5+4*w,4)}, {vr(A1,4)}, {vr(b+8*w+4,4)}, 0" for w in range(4)]
            interleave(a, m0 + m1, fl, per=2, start=1)
            a("s_mov_b64 exec, s[66:67]")
            for w in range(4): a(f"v_pk_mov_b32 {vr(b+8*w+4,2)}, 0, 0\nv_pk_mov_b32 {vr(b+8*w+6,2)}, 0, 0")
            a("s_mov_b64 exec, -1")
            interleave(a, m2, fin(5, vGe, 0), per=2)
    for x in fin(4, vGo, 0): a(x)
    a("s_waitcnt vmcnt(0)\ns_barrier")
    tw_gen(a, vT, vT2, vT3, vM)
    a("s_barrier\ns_branch L_P2")

def phase2(a):
    V = RegAlloc('v', 2, 256)
    sHH, sT, sT2, sT3, sSg, sOB, sQ0, sQ1, sFl, sEx = range(56, 66)
    vM, vG, vT, vT2, vT3, vRow, vWa, vWs = [V.alloc() for _ in range(8)]
    V.alloc(10)
    vOa, vPo, vEx, vGa = [V.alloc() for _ in range(4)]
    vGl = V.alloc(2, 2); vOut = V.alloc(2)
    WR = V.alloc(20*NREG, 4)
    accB = V.alloc(20, 4); fO = V.alloc(20, 4); FW = V.alloc(20, 4); vPl = V.alloc(4, 4); fT = V.alloc(16, 4)
    vG1 = V.alloc(4, 2); vFa = V.alloc(4)
    vOo = 10
    assert fT == TW
    accY = fO
    hi_v[0] = max(hi_v[0], V.hi)
    a.label('L_P2')
    stamp(a, 4)
    def wreads(dst, reg, j):
        return [f"ds_read_b64_tr_b16 {vr(dst+4*ct+2*h,2)}, v{reg} offset:{j*5120+h*1280+32*ct}" for ct in range(5) for h in range(2)]
    def grp(j): return wreads(WR+20*j, vWa, j) if j < NREG else wreads(FW, vWs, 0)
    a(f"""s_lshr_b32 s{sHH}, s3, 2
v_and_b32 v{vM}, 15, v0
v_lshrrev_b32 v{vG}, 4, v0
v_bfe_u32 v{vT}, v0, 2, 3
v_lshrrev_b32 v{vT2}, 5, v0
v_lshl_add_u32 v{vT}, v{vT2}, 4, v{vT}
v_mul_u32_u24 v{vT}, 160, v{vT}
v_and_b32 v{vT2}, 3, v0
v_lshl_add_u32 v{vT}, v{vT2}, 3, v{vT}
s_mul_i32 s{sT2}, s{sHH}, {NREG*5120}
v_add_u32 v{vWa}, s{sT2}, v{vT}
s_mul_i32 s{sT2}, s{sHH}, {(10-NREG)*5120}
s_add_u32 s{sT2}, s{sT2}, {14*5120}
v_add_u32 v{vWs}, s{sT2}, v{vT}""")
    fill = []
    fill.append(f"""s_lshl_b32 s{sFl}, s{sP}, 5
s_add_u32 s{sFl}, s{sFl}, s{sSL}
s_lshl_b32 s{sFl}, s{sFl}, 7
s_lshl_b32 s{sT2}, s{sCP}, 2
s_add_u32 s{sFl}, s{sFl}, s{sT2}
s_add_u32 s{sFl}, s{sFl}, {WS_FLAG}
s_lshl_b32 s{sEx}, 0x55, s{sP}
s_lshl_b32 s{sT}, s{sW4}, 6
s_add_u32 s{sT}, s{sT}, {L_GT}
v_lshlrev_b32 v{vRow}, 2, v{vM}
v_add_u32 v{vRow}, s{sT}, v{vRow}
s_and_b32 s{sT}, s2, 7
s_lshl_b32 s{sT}, s{sT}, 13
s_lshl_b32 s{sT2}, s{sP}, 12
s_add_u32 s{sT}, s{sT}, s{sT2}
s_add_u32 s{sT}, s{sT}, {WS_FLAG}
v_lshlrev_b32 v{vPo}, 7, v0
v_add_u32 v{vPo}, s{sT}, v{vPo}
s_mul_i32 s{sT}, s{sK1}, 1280
s_mul_i32 s{sT2}, s{sC2}, 160
s_add_u32 s{sT}, s{sT}, s{sT2}
s_lshl_b32 s{sT2}, s3, 6
s_mov_b32 s{sT3}, {L_GT}""")
    assert all((q*6554) >> 16 == q//10 for q in range(1100))
    for q in range(2):
        fill.append(f"""v_add_u32 v{vT}, s{sT2}, v0
v_add_u32 v{vT}, {512*q}, v{vT}
v_mul_u32_u24 v{vT2}, 6554, v{vT}
v_lshrrev_b32 v{vT2}, 16, v{vT2}
v_lshl_add_u32 v{vG1+2*q+1}, v{vT2}, 2, s{sT3}
v_mul_u32_u24 v{vT3}, 10, v{vT2}
v_sub_u32 v{vT}, v{vT}, v{vT3}
v_mul_u32_u24 v{vT3}, {32*1280}, v{vT2}
v_lshl_add_u32 v{vT3}, v{vT}, 4, v{vT3}
v_add_u32 v{vOut+q}, s{sT}, v{vT3}
v_mul_u32_u24 v{vT3}, {EXP}, v{vT2}
v_lshl_add_u32 v{vT}, v{vT}, 5, v{vT3}
v_lshrrev_b32 v{vT2}, 4, v{vT2}
v_mul_u32_u24 v{vT3}, {10240-16*EXP}, v{vT2}
v_add_u32 v{vFa+2*q}, v{vT}, v{vT3}
v_add_u32 v{vT2}, 1, v{vT2}
v_lshrrev_b32 v{vT2}, 2, v{vT2}
v_mul_u32_u24 v{vT2}, {L_OB7-71680}, v{vT2}
v_add_u32 v{vFa+2*q+1}, v{vFa+2*q}, v{vT2}""")
    s_ = ""
    for P in range(2):
        s_ += f"""s_lshl_b32 s{sT}, s{sHH}, 1
s_add_u32 s{sT}, s{sT}, s{sC2}
s_add_u32 s{sT}, s{sT}, {P}
s_and_b32 s{sT}, s{sT}, 3
s_lshl_b32 s{sT2}, s{sK1}, 2
s_add_u32 s{sT}, s{sT}, s{sT2}
s_lshl_b32 s{sT}, s{sT}, 3
s_add_u32 s{sT}, s{sT}, s{sW4}
s_mul_i32 s{sQ0+P}, s{sT}, 2560
"""
    fill.append(s_ + f"""s_mul_i32 s{sOB}, s3, 10240
s_cmp_eq_u32 s3, 7
s_cselect_b32 s{sOB}, {L_OB7}, s{sOB}
v_and_b32 v{vT}, 1, v{vG}
v_lshrrev_b32 v{vT2}, 1, v{vG}
v_xor_b32 v{vT2}, v{vT2}, v{vT}
v_mul_u32_u24 v{vT}, 2560, v{vT}
v_lshl_add_u32 v{vT}, v{vT2}, 4, v{vT}
v_mul_u32_u24 v{vT2}, 160, v{vM}
v_add3_u32 v{vOa}, v{vT}, v{vT2}, s{sOB}
v_mul_u32_u24 v{vEx}, {EXP}, v{vM}
v_lshl_add_u32 v{vEx}, v{vG}, 4, v{vEx}
v_add_u32 v{vEx}, s{sOB}, v{vEx}""")
    for j in range(NPRE):
        if j: a("s_waitcnt lgkmcnt(5)")
        for x in grp(j): a(x)
        if fill: a(fill.pop(0))
    for x in fill: a(x)
    a("s_waitcnt lgkmcnt(0)")
    dbg_read(a)
    a(f"""s_cmp_ge_u32 s{sSL}, 24
s_cselect_b32 s{sT3}, 99, 4
s_waitcnt vmcnt(0)
s_barrier
s_cmp_lg_u32 s3, 4
s_cbranch_scc1 L_NOFLAG
s_waitcnt lgkmcnt(0)
s_and_b64 s[76:77], s[76:77], s[78:79]
s_and_b64 s[80:81], s[80:81], s[82:83]
s_and_b64 s[76:77], s[76:77], s[80:81]
s_and_b32 s76, s76, s77
s_cbranch_scc1 L_CLEARED""")
    dbg_spin(a, vT, '0xff', '0', 8)
    a(f"""L_CLEARED:
s_cmp_lg_u32 s3, s{sT3}
s_cbranch_scc1 L_NOFLAG
v_lshlrev_b32 v{vT}, 13, v0
v_mov_b32 v{vT2}, 1
s_mov_b32 exec_lo, s{sEx}
s_mov_b32 exec_hi, 0
buffer_store_dword v{vT2}, v{vT}, {R(R_WS)}, s{sFl} offen sc1
s_mov_b64 exec, -1
L_NOFLAG:""")
    stamp(a, 5)
    a(f"""s_waitcnt lgkmcnt(0)
s_cmp_lg_u32 s{sHH}, 0
s_cbranch_scc1 L_GFETCH
v_and_b32 v{vT}, 1, v{vM}
v_mul_u32_u24 v{vT}, 640, v{vT}
v_lshrrev_b32 v{vT2}, 1, v{vM}
v_lshl_add_u32 v{vT}, v{vT2}, 4, v{vT}
v_mul_u32_u24 v{vT2}, 5120, v{vG}
s_mov_b32 s{sT}, {L_G}
v_add3_u32 v{vGa}, v{vT}, v{vT2}, s{sT}
s_branch L_GDONE
L_GFETCH:
s_cmp_eq_u32 s75, 64
s_cbranch_scc1 L_GOK""")
    dbg_spin(a, vT, '0', '1', 24)
    a(f"L_GOK:\ns_mul_i32 s70, s{sW4}, 5120\ns_add_u32 m0, s70, {L_G}")
    for j in range(5):
        if j == 4: a("s_add_u32 m0, m0, 4096")
        a(f"buffer_load_dwordx4 v{vGoL+j}, {R(R_WS)}, 0 offen offset:{1024*(j&3)} sc1 lds")
    a(f"""s_lshl_b32 s70, s{sK1}, 8
s_add_u32 s70, s70, {WS_GATE}
s_mov_b32 m0, {L_GT}
v_lshlrev_b32 v{vT}, 2, v0
buffer_load_dword v{vT}, {R(R_WS)}, s70 offen sc1 lds
L_GDONE:""")
    srd(a, R_A, S_OUT, 2621440)
    a(f"""v_lshlrev_b32 v{vOo}, 4, v0
v_mov_b32 v{vOo+1}, v{vOo}
v_xor_b32 v{vT}, 16, v{vOo}
v_add_u32 v{vOo+3}, {10240 + (192-160)*16 - 3072}, v{vT}
v_add_u32 v{vOo+4}, {10240 + (256-160)*16}, v{vT}
v_add_u32 v{vT}, {10240 + (128-160)*16 - 2048}, v{vT}
v_cmp_gt_u32 vcc, 32, v0
v_cndmask_b32 v{vOo+2}, v{vT}, v{vOo}, vcc""")
    for j in range(NPRE, 8):
        a("s_waitcnt lgkmcnt(5)")
        for x in grp(j): a(x)
    a(f"""s_cmp_lg_u32 s3, 4
s_cbranch_scc1 L_GO
s_mov_b32 s71, 0
s_mov_b32 exec_hi, 0
s_sub_u32 s70, s{sSL}, 24
s_lshl_b32 s70, 1, s70
s_cmp_ge_u32 s{sSL}, 24
s_cselect_b32 exec_lo, s70, 0xffffff
L_POLL:
buffer_load_dwordx4 {vr(fO,4)}, v{vPo}, {R(R_WS)}, 0 offen sc1
s_waitcnt vmcnt(0)
v_and_b32 v{fO}, v{fO}, v{fO+1}
v_and_b32 v{fO+2}, v{fO+2}, v{fO+3}
v_and_b32 v{fO}, v{fO}, v{fO+2}
v_cmp_ne_u32 vcc, 1, v{fO}
s_cbranch_vccz L_POLLED
s_sleep {PSL}
s_add_u32 s71, s71, 1
s_cmp_gt_u32 s71, {SPIN}
s_cbranch_scc0 L_POLL
L_POLLED:
s_cmp_lg_u32 exec_lo, 0xffffff
s_mov_b32 exec_lo, 0xffffff
s_cbranch_scc1 L_POLL
s_mov_b64 exec, -1
L_GO:
s_waitcnt vmcnt(0) lgkmcnt(0)
s_barrier""")
    stamp(a, 6)
    for P in range(2):
        a(f"s_add_u32 m0, s{sOB}, {5120*P}")
        for j in range(5):
            if j == 4: a("s_add_u32 m0, m0, 4096")
            a(f"buffer_load_dwordx4 v{vOo+j}, {R(R_WS)}, s{sQ0+P} offen offset:{1024*(j&3)} sc1 lds")
    a(f"""ds_read_b32 v{vGl}, v{vRow}
ds_read_b32 v{vG1}, v{vG1+1}
ds_read_b32 v{vG1+2}, v{vG1+3}""")
    FO = [fO, WR + 40]
    def oreads(P): return [f"ds_read_b128 {vr(FO[P]+4*q,4)}, v{vOa} offset:{5120*P+32*q}" for q in range(5)]
    Wbuf = {u: WR + 20*u for u in range(NREG)}
    Wbuf[7] = FW; Wbuf[8] = WR; Wbuf[9] = WR + 20
    def mm(u):
        B = vr(FO[u//5] + 4*(u % 5), 4)
        return [f"{MF} {vr(accB+4*ct,4)}, {vr(Wbuf[u]+4*ct,4)}, {B}, {'0' if u == 0 else vr(accB+4*ct,4)}" for ct in range(5)]
    if P2ST: stamp(a, 1)
    a("s_waitcnt vmcnt(5)")
    if P2ST: stamp(a, 2); a("s_waitcnt lgkmcnt(0)")
    for x in oreads(0): a(x)
    a("s_waitcnt lgkmcnt(4)")
    for x in mm(0): a(x)
    a("s_waitcnt lgkmcnt(0)")
    interleave(a, mm(1), wreads(WR, vWs, 1), per=2)
    interleave(a, mm(2) + mm(3), wreads(WR+20, vWs, 2))
    a("s_waitcnt vmcnt(0) lgkmcnt(8)")
    if P2ST: stamp(a, 3)
    for x in oreads(1): a(x)
    for x in mm(4): a(x)
    a("s_waitcnt lgkmcnt(0)")
    for x in mm(5) + mm(6): a(x)
    gm = ["s_nop 0"]
    for v_, c_ in ((vGl, '0xbfb8aa3b'), (vG1, '0x3fb8aa3b'), (vG1+2, '0x3fb8aa3b')):
        gm += [f"v_mul_f32 v{v_}, {c_}, v{v_}", f"v_exp_f32 v{v_}, v{v_}", f"v_add_f32 v{v_}, 1.0, v{v_}", f"v_rcp_f32 v{v_}, v{v_}"]
    a(f"s_cmp_lg_u32 s{sHH}, 0\ns_cbranch_scc1 L_RAW")
    GF = [WR+60+20*uu for uu in range(4)]
    gr = [f"ds_read_b128 {vr(GF[uu]+4*ct,4)}, v{vGa} offset:{1280*uu+128*ct}" for uu in range(4) for ct in range(5)]
    interleave(a, mm(7) + mm(8) + mm(9), gr[:15])
    a("s_waitcnt lgkmcnt(5)")
    for x in gr[15:]: a(x)
    ym = [f"{MF} {vr(accY+4*ct,4)}, {vr(GF[uu]+4*ct,4)}, {vr(fT+4*uu,4)}, {'0' if uu == 0 else vr(accY+4*ct,4)}" for uu in range(4) for ct in range(5)]
    interleave(a, ym[:10], gm[:7])
    a("s_waitcnt lgkmcnt(0)")
    interleave(a, ym[10:], gm[7:])
    for i in range(0, 20, 2):
        a(f"v_pk_add_f32 {vr(accY+i,2)}, {vr(accY+i,2)}, {vr(accB+i,2)} neg_lo:[0,1] neg_hi:[0,1]")
        a(f"v_pk_fma_f32 {vr(accB+i,2)}, {vr(accY+i,2)}, {vr(vGl,2)}, {vr(accB+i,2)} op_sel_hi:[1,0,1]")
    a("s_branch L_WR\nL_RAW:")
    interleave(a, mm(7) + mm(8) + mm(9), gm[:1] + gm[5:])
    a("L_WR:")
    if P2ST: stamp(a, 4)
    for ct in range(5): a(f"ds_write_b128 v{vEx}, {vr(accB+4*ct,4)} offset:{64*ct}")
    a("s_waitcnt lgkmcnt(0)\ns_barrier")
    if P2ST: stamp(a, 5)
    def rdf(q):
        b = WR + 16*q
        a(f"""ds_read_b128 {vr(b,4)}, v{vFa+2*q}
ds_read_b128 {vr(b+4,4)}, v{vFa+2*q} offset:16
ds_read_b128 {vr(b+8,4)}, v{vFa+2*q+1} offset:40960
ds_read_b128 {vr(b+12,4)}, v{vFa+2*q+1} offset:40976""")
    def fin(q):
        b = WR + 16*q
        for i in range(0, 8, 2): a(f"v_pk_fma_f32 {vr(b+i,2)}, {vr(b+8+i,2)}, {vr(vG1+2*q,2)}, {vr(b+i,2)} op_sel_hi:[1,0,1]")
        a(pk(b+8, b)); a(pk(b+10, b+4))
        a(f"buffer_store_dwordx4 {vr(b+8,4)}, v{vOut+q}, {R(R_A)}, 0 offen")
    rdf(0)
    a("s_cmp_ge_u32 s3, 2\ns_cbranch_scc1 L_F1")
    rdf(1)
    a("s_waitcnt lgkmcnt(0)")
    fin(1)
    a("L_F1:\ns_waitcnt lgkmcnt(0)")
    fin(0)
    stamp_flush(a, vT)

a = main()
print("pads", a.pad(), "vgprs", hi_v[0], file=sys.stderr)
nv = (hi_v[0] + 7)//8*8
txt = f"""; gated mix: FNet (factored DFT) + dilated sliding-window attention.  Generated by work/gen8.py
; @launch grid=(256,1,1) block=(512,1,1) lds={LDS_BYTES}
.amdgcn_target "amdgcn-amd-amdhsa--gfx950"
.text
.globl {NAME}_kernel
.p2align 8
.type {NAME}_kernel,@function
{NAME}_kernel:
{a.text()}
.section .rodata,"a"
.p2align 6
.amdhsa_kernel {NAME}_kernel
  .amdhsa_next_free_vgpr {nv}
  .amdhsa_next_free_sgpr 100
  .amdhsa_accum_offset {nv}
  .amdhsa_group_segment_fixed_size 0
  .amdhsa_kernarg_size 96
  .amdhsa_user_sgpr_count 2
  .amdhsa_user_sgpr_kernarg_segment_ptr 1
  .amdhsa_system_sgpr_workgroup_id_x 1
.end_amdhsa_kernel
"""
open(OUT, 'w').write(txt)
```

```python
import sys, struct
from asmlib import *
NAME = "gated_mix__spectral_fnet__sliding_local_dilated__prompt"
def opt(name, default):
    for x in sys.argv[1:]:
        if x.startswith(f'--{name}='): return int(x.split('=')[1])
    return default
STAMP = '--stamp' in sys.argv
CLK = '--clk' in sys.argv
P2ST = opt('p2st', 0)
PF_W = opt('pfw', 1)
PF_XQ = opt('pfxq', 0)
KA = opt('ka', 8)
NPRE = opt('npre', 0)
AST = opt('ast', 0)
WS3 = opt('ws3', 1)
HPRI = opt('hpri', 0)
OPOL = ['', 'sc1', 'nt', 'sc0 sc1', 'sc1 nt'][opt('opol', 0)]
PSL = opt('psl', 6)
XPF = opt('xpf', 0)
NOPO = opt('nopo', 1)
P2D = opt('p2d', 0)
EM = opt('em', 0)
WSCH = opt('wsch', 2)
OWARM = opt('owarm', 0)
YORD = opt('yord', 0)
YPRI = opt('ypri', 1)
EPOLL = opt('epoll', 0)
PDL = opt('pdl', 0)
NE = opt('ne', 5)
YP1 = opt('yp1', 0)
YP2 = opt('yp2', 0)
PXD = opt('pxd', 0)
NS = opt('ns', 12)
CPF = opt('cpf', 1)
ROT = opt('rot', 1)
ROTP = opt('rotp', 0)
PRE = opt('pre', 0)
NPF = opt('npf', 4)
PO0 = opt('po0', 3)
POM = opt('pom', 3)
N1 = opt('n1', 10)
P20 = opt('p20', 0)
P2M = opt('p2m', 1)
TRACE = opt('trace', 0)
NCE = opt('nce', 0)
OUT = [x for x in sys.argv[1:] if x.endswith('.s')]
OUT = OUT[0] if OUT else f"cdna_kernels/{NAME}.s"

WS_G = 0x280000
GP = 336
WS_GATE = 0x520000
WS_FLAG = 0x530000
WS_END = 0x540000
WS_STAMP = 0x800000
OOB = 0x80000000
SPIN = 200000
MF = 'v_mfma_f32_16x16x32_bf16'
LDS_BYTES = 159744

S_X, S_SRE, S_SIM, S_HRE, S_HIM, S_BX, S_WQKV, S_WO = 4, 6, 8, 10, 12, 14, 16, 18
S_GATE, S_OUT, S_DBG, S_WS = 20, 22, 24, 26
R_A, R_B, R_WS, R_C, R_D = 28, 32, 36, 40, 44
sP, sCP, sSL, sW4 = 48, 49, 50, 51
sC2, sK1, sKs, sRot = 52, 53, 54, 55
S_ST = 84

def srd(a, r, p, n):
    a(f"s_mov_b32 s{r}, s{p}\ns_mov_b32 s{r+1}, s{p+1}\ns_mov_b32 s{r+2}, {n}\ns_mov_b32 s{r+3}, 0x20000")
def R(r): return f"s[{r}:{r+3}]"
def astamp(a, i):
    if AST: a(f"{'s_memtime' if CLK else 's_memrealtime'} s[{S_ST+2*i}:{S_ST+2*i+1}]")
def stamp(a, i):
    if AST and i in (1, 2, 3, 5, 6): return
    if STAMP: a(f"{'s_memtime' if CLK else 's_memrealtime'} s[{S_ST+2*i}:{S_ST+2*i+1}]")
def stamp_flush(a, vtmp):
    if not STAMP: return
    a(f"s_waitcnt vmcnt(0) lgkmcnt(0)")
    stamp(a, 7)
    a(f"""s_mov_b32 s{R_D}, s{S_WS}
s_mov_b32 s{R_D+1}, s{S_WS+1}
s_mov_b32 s{R_D+2}, 0x1000000
s_mov_b32 s{R_D+3}, 0x20000
s_lshl_b32 s70, s2, 3
s_add_u32 s70, s70, s3
s_lshl_b32 s70, s70, 5
s_add_u32 s70, s70, {WS_STAMP}
s_waitcnt lgkmcnt(0)
v_mov_b32 v{vtmp}, 0""")
    for i in range(8):
        a(f"v_mov_b32 v{vtmp+1}, s{S_ST+2*i}")
        a(f"buffer_store_dword v{vtmp+1}, v{vtmp}, {R(R_D)}, s70 offen offset:{4*i}")
    a("s_waitcnt vmcnt(0)")
def interleave(a, mfmas, fillers, start=0, per=1):
    f = list(fillers)
    for i, m in enumerate(mfmas):
        a(m)
        if i >= start:
            for _ in range(per):
                if f: a(f.pop(0))
    for x in f: a(x)
def pkl(d, s): return [f"v_cvt_pk_bf16_f32 v{d}, v{s}, v{s+1}", f"v_cvt_pk_bf16_f32 v{d+1}, v{s+2}, v{s+3}"]
def pk(d, s): return "\n".join(pkl(d, s))
def f32(x): return f"{struct.unpack('<I', struct.pack('<f', x))[0]:#x}"
hi_v = [0]
_lab = [0]
def newlab(p):
    _lab[0] += 1
    return f"{p}{_lab[0]}"

NREG = 7
def pos_of(hh, j): return hh*NREG + j if j < NREG else 14 + hh*(10-NREG) + (j-NREG)
def inv_pos(pos):
    for hh in range(2):
        for j in range(10):
            if pos_of(hh, j) == pos: return hh, j
L_OB7 = 102400
L_G = 112640
L_GT = 133120
L_Y = 133376
EXP = 336
L_OS = 135168
L_XC = 102400
QSLOT = 45056
def qslot(c): return ((c + 2) % 3) * QSLOT
DSLOT = 53248; L_U = 102400

vWoL = 72
vGoL = 77

def wo_setup(a, vT, vT2, vT3, vWo=vWoL):
    assert all((q*6554) >> 16 == q//10 for q in range(320))
    for j in range(5):
        a(f"""v_add_u32 v{vT}, {64*j}, v0
v_mul_u32_u24 v{vT2}, 6554, v{vT}
v_lshrrev_b32 v{vT2}, 16, v{vT2}
v_mul_u32_u24 v{vT3}, 10, v{vT2}
v_sub_u32 v{vT}, v{vT}, v{vT3}
v_and_b32 v{vT3}, 3, v{vT2}
v_and_b32 v{vWo+j}, 4, v{vT2}
v_mul_u32_u24 v{vWo+j}, 20, v{vWo+j}
v_and_b32 v{vT2}, 24, v{vT2}
v_lshrrev_b32 v{vT2}, 1, v{vT2}
v_add3_u32 v{vT3}, v{vT3}, v{vT2}, v{vWo+j}
v_mul_u32_u24 v{vT3}, 1280, v{vT3}
v_lshl_add_u32 v{vWo+j}, v{vT}, 4, v{vT3}""")
        if j & 3: a(f"v_subrev_u32 v{vWo+j}, {1024*(j&3)}, v{vWo+j}")

def wo_dma(a, r, vWo=vWoL):
    sT, sT2 = 70, 71
    tab = [inv_pos(4*r + w) for w in range(4)]
    code = [(2*hh + j//5)*16 + j % 5 for hh, j in tab]
    packed = sum(c << (8*w) for w, c in enumerate(code))
    a(f"""s_lshl_b32 s{sT}, s{sW4}, 3
s_lshr_b32 s{sT}, {packed:#x}, s{sT}
s_and_b32 s{sT2}, s{sT}, 15
s_mul_i32 s{sT2}, s{sT2}, {16*1280}
s_lshr_b32 s{sT}, s{sT}, 4
s_add_u32 s{sT}, s{sT}, s{sC2}
s_and_b32 s{sT}, s{sT}, 3
s_mul_i32 s{sT}, s{sT}, {160*1280}
s_add_u32 s{sT2}, s{sT2}, s{sT}
s_mul_i32 s{sT}, s{sC2}, 160
s_add_u32 s{sT2}, s{sT2}, s{sT}
s_mul_i32 s{sT}, s{sW4}, 5120
s_add_u32 m0, s{sT}, {r*20480}""")
    for j in range(5):
        if j == 4: a("s_add_u32 m0, m0, 4096")
        a(f"buffer_load_dwordx4 v{vWo+j}, {R(R_C)}, s{sT2} offen offset:{1024*(j&3)} lds")

def g_setup(a, vT, vT2, vT3):
    sT, sT2, sT3, sB = 70, 71, 72, 73
    assert all((q*1639) >> 16 == q//40 for q in range(320))
    a(f"""s_mul_i32 s{sT}, s{sC2}, 40
s_sub_u32 s{sT2}, 320, s{sT}
s_cmp_lt_u32 s{sC2}, 4
s_cselect_b32 s{sT}, s{sT}, s{sT2}
s_cselect_b32 s{sT2}, 16, -16
s_cselect_b32 s{sB}, 0, -16
s_mul_i32 s{sT3}, s{sKs}, {16*GP}
s_add_u32 s{sT}, s{sT}, s{sT3}
s_lshl_b32 s{sT}, s{sT}, 4
s_add_u32 s{sT}, s{sT}, {WS_G}""")
    for j in range(5):
        a(f"""v_add_u32 v{vT}, {64*j}, v0
v_mul_u32_u24 v{vT2}, 1639, v{vT}
v_lshrrev_b32 v{vT2}, 16, v{vT2}
v_mul_u32_u24 v{vT3}, 40, v{vT2}
v_sub_u32 v{vT}, v{vT}, v{vT3}
v_mul_i32_i24 v{vT}, s{sT2}, v{vT}
v_and_b32 v{vT3}, 1, v{vT2}
v_mul_i32_i24 v{vT3}, s{sB}, v{vT3}
v_mul_u32_u24 v{vT2}, {168*16}, v{vT2}
v_add3_u32 v{vT}, v{vT}, v{vT2}, v{vT3}
v_add_u32 v{vGoL+j}, s{sT}, v{vT}""")
        if j & 3: a(f"v_subrev_u32 v{vGoL+j}, {1024*(j&3)}, v{vGoL+j}")

TW = 232
def tw_gen(a, vT, vT2, vT3, vT4, part=None):
    if part in (None, 0): a(f"""s_lshl_b32 s70, s{sW4}, 9
s_add_u32 s70, s70, s{sK1}
v_and_b32 v{vT}, 15, v0
v_lshlrev_b32 v{vT}, 5, v{vT}
v_add_u32 v{vT}, s70, v{vT}
v_and_b32 v{vT2}, 48, v0
v_mul_u32_u24 v{vT2}, v{vT2}, v{vT}
s_cmp_lt_u32 s{sC2}, 4
s_mov_b32 s73, {f32(1/2048)}
s_cselect_b32 s73, s73, {f32(-1/2048)}""")
    for n in (range(16) if part is None else range(6) if part == 0 else range(6, 16)):
        uu = ((n >> 3) << 1) | (n & 1); w = (n >> 1) & 3
        a(f"""v_and_b32 v{vT3}, 0x7ff, v{vT2}
v_cvt_f32_u32 v{vT3}, v{vT3}
v_mul_f32 v{vT3}, s73, v{vT3}
v_cos_f32 v{vT4}, v{vT3}
v_sin_f32 v{vT3}, v{vT3}
v_add_u32 v{vT2}, v{vT2}, v{vT}
v_cvt_pk_bf16_f32 v{TW+4*uu+w}, v{vT4}, v{vT3}""")

def clr_read(a):
    a(f"s_load_dwordx8 s[60:67], s[{S_DBG}:{S_DBG+1}], 0")

def clr_check(a, vT):
    ok, lp = newlab('L_COK'), newlab('L_CLP')
    b = 60
    a(f"""s_waitcnt lgkmcnt(0)
s_and_b64 s[{b}:{b+1}], s[{b}:{b+1}], s[{b+2}:{b+3}]
s_and_b64 s[{b+4}:{b+5}], s[{b+4}:{b+5}], s[{b+6}:{b+7}]
s_and_b64 s[{b}:{b+1}], s[{b}:{b+1}], s[{b+4}:{b+5}]
s_and_b32 s{b}, s{b}, s{b+1}
s_cbranch_scc1 {ok}
s_mov_b32 s71, 0
v_lshlrev_b32 v{vT}, 2, v0
s_mov_b64 exec, 0xff
{lp}:
s_sleep 16
buffer_load_dword v{vT+1}, v{vT}, {R(R_D)}, 0 offen sc1
s_waitcnt vmcnt(0)
v_cmp_eq_u32 vcc, 0, v{vT+1}
s_cbranch_vccz {lp}x
s_add_u32 s71, s71, 1
s_cmp_gt_u32 s71, {SPIN}
s_cbranch_scc0 {lp}
{lp}x:
s_mov_b64 exec, -1
{ok}:""")

def flag_store(a, vT, mask):
    a(f"""s_lshl_b32 s70, s{sP}, 5
s_add_u32 s70, s70, s{sSL}
s_lshl_b32 s70, s70, 7
s_lshl_b32 s71, s{sCP}, 2
s_add_u32 s70, s70, s71
s_add_u32 s70, s70, {WS_FLAG}
v_lshlrev_b32 v{vT}, 13, v0
v_mov_b32 v{vT+1}, 1
s_mov_b32 exec_lo, {mask}
s_mov_b32 exec_hi, 0
buffer_store_dword v{vT+1}, v{vT}, {R(R_WS)}, s70 offen sc1
s_mov_b64 exec, -1""")

def main():
    a = Asm()
    a(f"""s_cmp_ge_u32 s2, 256
s_cbranch_scc1 L_END
s_load_dwordx16 s[4:19], s[0:1], 0
s_load_dwordx8 s[20:27], s[0:1], 64""")
    if CPF:
        a(f"""s_getpc_b64 s[28:29]
L_PC:
v_lshlrev_b32 v255, 7, v0
v_cmp_gt_u32 vcc, L_END-L_PC, v255
s_and_saveexec_b64 s[30:31], vcc
s_cbranch_execz L_NOCPF
global_load_dword v255, v255, s[28:29]
L_NOCPF:
s_mov_b64 exec, -1""")
    if STAMP:
        for i in range(8): a(f"s_mov_b64 s[{S_ST+2*i}:{S_ST+2*i+1}], 0")
    stamp(a, 0)
    a(f"""v_lshrrev_b32 v1, 6, v0
v_and_b32 v0, 63, v0
v_readfirstlane_b32 s3, v1
s_and_b32 s{sP}, s2, 1
s_lshr_b32 s{sCP}, s2, 1
s_and_b32 s{sCP}, s{sCP}, 3
s_lshr_b32 s{sSL}, s2, 3
s_and_b32 s{sW4}, s3, 3
s_and_b32 s{sC2}, s{sSL}, 7
s_lshr_b32 s70, s{sSL}, 4
s_lshl_b32 s70, s70, 1
s_lshl_b32 s{sK1}, s{sCP}, 2
s_add_u32 s{sK1}, s{sK1}, s70
s_add_u32 s{sK1}, s{sK1}, s{sP}
s_sub_u32 s70, 32, s{sK1}
s_cmp_eq_u32 s{sK1}, 0
s_cselect_b32 s70, 16, s70
s_bitcmp1_b32 s{sSL}, 3
s_cselect_b32 s{sK1}, s70, s{sK1}
s_sub_u32 s{sKs}, 32, s{sK1}
s_and_b32 s{sKs}, s{sKs}, 31
s_cmp_lt_u32 s{sC2}, 4
s_cselect_b32 s{sKs}, s{sK1}, s{sKs}
s_mul_i32 s{sRot}, s{sP}, {ROTP}
s_add_u32 s{sRot}, s{sRot}, s{sCP}
s_mul_i32 s{sRot}, s{sRot}, {ROT}
s_sub_u32 s70, s{sRot}, 5
s_min_u32 s{sRot}, s{sRot}, s70
s_cmp_ge_u32 s{sSL}, 24
s_cbranch_scc1 L_DFT
s_cmp_ge_u32 s3, 4
s_cbranch_scc0 L_QCOMP""")
    qkv_loader(a)
    a.label('L_DFT')
    a("s_cmp_ge_u32 s3, 4\ns_cbranch_scc0 L_DCOMP")
    dft_loader(a)
    a.label('L_DCOMP'); dft_compute(a)
    a.label('L_QCOMP'); qkv_compute(a)
    attention(a)
    phase2(a)
    a.label('L_END')
    a('s_endpgm')
    return a

sHG, sI, sJ0 = 56, 57, 58
qM, qG, qT, qT2, qT3 = 2, 3, 4, 5, 6
qOC, qOD, qXC = 7, 8, 9
qXb0, qXb1, qWb, qDb, qXa0, qXa1, qWa, qDa = range(10, 18)
cMk = 18; cI = 20; cOne = 24; cBo = 28; cBp = 32; cBq = 36; Qf = 40
ACC = 52; F0 = 148; F1 = 188
Kf = F0; Vp = F0 + 16; V4 = F0 + 24
def A(rt, t): return ACC + 16*rt + 4*t

def qkv_scalars(a):
    a(f"""s_lshl_b32 s{sHG}, s{sCP}, 1
s_and_b32 s70, s{sSL}, 1
s_add_u32 s{sHG}, s{sHG}, s70
s_lshr_b32 s{sI}, s{sSL}, 1
s_mul_i32 s{sJ0}, s{sI}, 85""")

def attn_consts(a, helper):
    vT, vT2, vT3 = qT, qT2, qT3
    a(f"""v_and_b32 v{qM}, 15, v0
v_lshrrev_b32 v{qG}, 4, v0
v_lshlrev_b32 v{vT}, 2, v{qG}
v_sub_u32 v{vT}, v{qM}, v{vT}
v_mov_b32 v{vT3}, 0xff800000
v_mov_b32 v{cI}, 0
v_mov_b32 v{cI+1}, 0""")
    for r in range(4):
        a(f"""v_subrev_u32 v{vT2}, {r}, v{vT}
v_cmp_gt_u32 vcc, 8, v{vT2}
v_cndmask_b32 v{cBo+r}, v{vT3}, v{cI}, vcc
v_cmp_gt_i32 vcc, -8, v{vT2}
v_cndmask_b32 v{cBp+r}, v{vT3}, v{cI}, vcc
v_mov_b32 v{cOne+r}, 0x3f803f80
v_mov_b32 v{cBq+r}, v{cBp+r if helper else vT3}""")
    for pr in range(2):
        a(f"""v_mov_b32 v{vT2}, 0xffff
v_cmp_le_i32 vcc, {2*pr}, v{vT}
v_cndmask_b32 v{cMk+pr}, 0, v{vT2}, vcc
v_mov_b32 v{vT2}, 0xffff0000
v_cmp_le_i32 vcc, {2*pr+1}, v{vT}
v_cndmask_b32 v{vT2}, 0, v{vT2}, vcc
v_or_b32 v{cMk+pr}, v{cMk+pr}, v{vT2}
v_mov_b32 v{vT2}, 0x3f80
v_cmp_eq_u32 vcc, {2*pr}, v{vT}
v_cndmask_b32 v{cI+2+pr}, 0, v{vT2}, vcc
v_mov_b32 v{vT2}, 0x3f800000
v_cmp_eq_u32 vcc, {2*pr+1}, v{vT}
v_cndmask_b32 v{cI+2+pr}, v{cI+2+pr}, v{vT2}, vcc""")
    for u in range(3): a(f"v_mov_b32 v{Qf+4*u+2}, 0\nv_mov_b32 v{Qf+4*u+3}, 0")
    a(f"""s_mul_i32 s70, s{sW4}, 40
s_add_u32 s70, s70, {L_OS + (48*176 if helper else 0)}
v_mul_u32_u24 v{vT3}, 176, v{qM}
v_add_u32 v{vT3}, s70, v{vT3}
v_lshl_add_u32 v{qOC}, v{qG}, 3, v{vT3}
v_add_u32 v{qOD}, 32, v{vT3}
s_lshl_b32 s70, s{sW4}, 13
s_add_u32 s70, s70, {L_XC}
v_lshlrev_b32 v{qXC}, 4, v0
v_add_u32 v{qXC}, s70, v{qXC}""")

vOS1, vOS2 = 252, 253
def ost_setup(a):
    sN, sT, sT2 = 70, 71, 72
    a(f"""v_mul_u32_u24 v{vOS1}, 26, v0
v_lshrrev_b32 v{vOS1}, 8, v{vOS1}
v_mul_u32_u24 v{vOS1}, {16*176-160}, v{vOS1}
v_lshl_add_u32 v{vOS1}, v0, 4, v{vOS1}
s_mul_i32 s{sT}, s3, {2*176}
s_add_u32 s{sT}, s{sT}, {L_OS}
v_add_u32 v{vOS1}, s{sT}, v{vOS1}
v_lshlrev_b32 v{vOS2}, 4, v0""")
    for q in range(2):
        a(f"""s_lshl_b32 s{sN}, s3, 1
s_add_u32 s{sN}, s{sN}, {q}
s_add_u32 s{sT}, s{sN}, s{sJ0}
s_lshl_b32 s{sT}, s{sT}, 1
s_add_u32 s{sT}, s{sT}, s{sP}
s_and_b32 s{sT2}, s{sT}, 31
s_lshl_b32 s{sT2}, s{sT2}, 3
s_add_u32 s{sT2}, s{sT2}, s{sHG}
s_lshl_b32 s{sT2}, s{sT2}, 6
s_lshr_b32 s{sT}, s{sT}, 5
s_add_u32 s{sT}, s{sT}, s{sT2}
s_mul_i32 s{74+q}, s{sT}, 160
s_cmp_eq_u32 s{sI}, 0
s_cselect_b32 s{sT}, 0, 7
s_cmp_ge_u32 s{sN}, s{sT}
s_cselect_b32 s{76+2*q}, -1, 0xfffffc00
s_cmp_eq_u32 s{sI}, 11
s_cselect_b32 s{sT}, 9, 12
s_cmp_lt_u32 s{sN}, s{sT}
s_mov_b32 s{sT}, 0x0fffffff
s_cselect_b32 s{77+2*q}, s{sT}, 0x3ffff""")

def owarm(a):
    a(f"""s_mov_b64 exec, s[76:77]
buffer_store_dwordx4 {vr(cOne,4)}, v{vOS2}, {R(R_WS)}, s74 offen sc1
s_mov_b64 exec, s[78:79]
buffer_store_dwordx4 {vr(cOne,4)}, v{vOS2}, {R(R_WS)}, s75 offen sc1
s_mov_b64 exec, -1""")

def qkv_loader(a):
    sXo, sWo, sWo2, sWr, sC, sM0X, sM0W, sT, sX0, sW0, sKc = range(59, 70)
    vT, vT2, vT3, vM = 10, 11, 12, 13
    vXo = 82; vWo = 85
    CH = 64*3840
    qkv_scalars(a)
    offs = f"""s_lshl_b32 s{sXo}, s{sKc}, 7
s_add_u32 s{sXo}, s{sXo}, s{sX0}
s_mul_i32 s{sWo}, s{sKc}, {CH}
s_add_u32 s{sWo}, s{sWo}, s{sW0}
s_add_u32 s{sWo2}, s{sWo}, {32*3840}"""
    a(f"""s_lshl_b32 s{sX0}, s{sJ0}, 1
s_add_u32 s{sX0}, s{sX0}, s{sP}
s_mul_i32 s{sX0}, s{sX0}, 1280
s_mul_i32 s{sW0}, s{sHG}, 160
s_lshr_b32 s{sT}, s{sW4}, 1
s_lshl_b32 s{sT}, s{sT}, 2
s_and_b32 s70, s{sW4}, 1
s_add_u32 s{sT}, s{sT}, s70
s_mul_i32 s{sT}, s{sT}, {4*3840}
s_add_u32 s{sW0}, s{sW0}, s{sT}
s_mov_b32 s{sKc}, s{sRot}
{offs}
s_mul_i32 s{sM0X}, s{sW4}, 3072
s_lshl_b32 s{sM0W}, s{sW4}, 12
s_add_u32 s{sM0W}, s{sM0W}, 12288
s_mul_i32 s{sT}, s{sW4}, 24
v_lshrrev_b32 v{vT}, 3, v0
v_add_u32 v{vT}, s{sT}, v{vT}
v_and_b32 v{vT2}, 7, v0""")
    for j in range(3):
        a(f"""v_add_u32 v{vT3}, {8*j}, v{vT}
v_mul_u32_u24 v{vXo+j}, 2560, v{vT3}
v_bfe_u32 v{vT3}, v{vT3}, 1, 3
v_xor_b32 v{vT3}, v{vT3}, v{vT2}
v_lshl_add_u32 v{vXo+j}, v{vT3}, 4, v{vXo+j}""")
        if j: a(f"v_subrev_u32 v{vXo+j}, {1024*j}, v{vXo+j}")
    assert all((q*2185) >> 16 == q//30 for q in range(512))
    assert all((q*26) >> 8 == q//10 for q in range(64))
    for j in range(4):
        a(f"""v_add_u32 v{vT}, {64*j}, v0
v_mul_u32_u24 v{vT2}, 2185, v{vT}
v_lshrrev_b32 v{vT2}, 16, v{vT2}
v_mul_u32_u24 v{vT3}, 30, v{vT2}
v_sub_u32 v{vT}, v{vT}, v{vT3}
v_mul_u32_u24 v{vT3}, 26, v{vT}
v_lshrrev_b32 v{vT3}, 8, v{vT3}
v_mul_u32_u24 v{vT3}, 1120, v{vT3}
v_lshl_add_u32 v{vT}, v{vT}, 4, v{vT3}
v_and_b32 v{vM}, 4, v{vT2}
v_add_u32 v{vT3}, v{vT2}, v{vM}
v_mul_u32_u24 v{vT3}, 3840, v{vT3}
v_add_u32 v{vWo+j}, v{vT}, v{vT3}""")
        if j: a(f"v_subrev_u32 v{vWo+j}, {1024*j}, v{vWo+j}")
    a(f"""v_mov_b32 v{vT}, {OOB}
v_cmp_gt_u32 vcc, 48, v0
v_cndmask_b32 v{vWo+3}, v{vT}, v{vWo+3}, vcc
s_waitcnt lgkmcnt(0)""")
    srd(a, R_A, S_X, 2621440); srd(a, R_B, S_WQKV, 2457600)
    if EM: a(f"s_cmp_ge_u32 s{sSL}, 20\ns_cselect_b32 s{R_A+2}, 0, s{R_A+2}\ns_cselect_b32 s{R_B+2}, 0, s{R_B+2}")
    def dma(lo, hi):
        for i in range(lo, hi):
            if i < 3:
                if i == 0 or i == lo: a(f"s_add_u32 m0, s{sWr}, s{sM0X}")
                a(f"buffer_load_dwordx4 v{vXo+i}, {R(R_A)}, s{sXo} offen offset:{1024*i} lds")
            else:
                j = (i-3) & 3; st = (i-3) >> 2
                if j == 0 or i == lo:
                    a(f"s_add_u32 m0, s{sWr}, s{sM0W}")
                    if st: a("s_add_u32 m0, m0, 16384")
                a(f"buffer_load_dwordx4 v{vWo+j}, {R(R_B)}, s{sWo2 if st else sWo} offen offset:{1024*j} lds")
        if hi == 11:
            a(f"""s_add_u32 s70, s{sKc}, 5
s_sub_u32 s71, s{sKc}, 4
s_cmp_eq_u32 s{sKc}, 9
s_cselect_b32 s71, 0, s71
s_cmp_lt_u32 s{sKc}, 5
s_cselect_b32 s{sKc}, s70, s71
{offs}
s_add_u32 s{sWr}, s{sWr}, {QSLOT}
s_cmp_eq_u32 s{sWr}, {3*QSLOT}
s_cselect_b32 s{sWr}, 0, s{sWr}""")
    a(f"s_mov_b32 s{sWr}, {qslot(0)}")
    dma(0, 7)
    srd(a, R_WS, S_WS, WS_END); srd(a, R_C, S_WO, 819200); srd(a, R_D, S_DBG, 256)
    attn_consts(a, True)
    ost_setup(a)
    wo_setup(a, vT, vT2, vT3)
    g_setup(a, vT, vT2, vT3)
    dma(7, 11)
    stamp(a, 1)
    _tc = [0]
    def tr():
        _tc[0] += 1
        if TRACE == 2 and _tc[0] % 3: return
        if TRACE: a(f"s_memtime s[82:83]\ns_waitcnt lgkmcnt(0)\ns_mov_b32 m0, s80\nv_writelane_b32 v60, s82, m0\ns_add_u32 s80, s80, 1")
    if TRACE: a("s_mov_b32 s80, 0\nv_mov_b32 v60, 0")
    a(f"s_mov_b32 s{sC}, 0\nQL_LOOP:")
    dma(0, KA)
    tr(); a(f"s_waitcnt vmcnt({KA})"); tr(); a("s_barrier"); tr()
    dma(KA, 11)
    a(f"s_add_u32 s{sC}, s{sC}, 1\ns_cmp_lt_u32 s{sC}, 9\ns_cbranch_scc1 QL_LOOP")
    clr_read(a)
    tr(); a("s_waitcnt vmcnt(4)"); tr(); a("s_barrier"); tr()
    stamp(a, 2)
    if WS3: wo_dma(a, 0)
    tw_gen(a, 14, 15, 16, 17, 0)
    tr(); a(f"s_waitcnt vmcnt({5*WS3})"); tr(); a("s_barrier"); tr()
    if OWARM: owarm(a)
    wo_dma(a, WS3)
    tr(); tr(); a("s_barrier"); tr()
    wo_dma(a, WS3+1)
    tw_gen(a, 14, 15, 16, 17, 1)
    clr_check(a, 10)
    tr(); tr(); a("s_barrier"); tr()
    astamp(a, 1)
    if TRACE:
        a(f"""v_lshlrev_b32 v61, 2, v0
s_lshl_b32 s80, s2, 3
s_add_u32 s80, s80, s3
s_lshl_b32 s80, s80, 8
s_add_u32 s80, s80, 0x900000
s_mov_b32 s{R_A}, s{S_WS}
s_mov_b32 s{R_A+1}, s{S_WS+1}
s_mov_b32 s{R_A+2}, 0x1000000
buffer_store_dword v60, v61, {R(R_A)}, s80 offen""")
    a(f"ds_read_b128 {vr(Kf,4)}, v{qXC} offset:6144")
    for u in range(3):
        a(f"ds_read_b128 {vr(Kf+4+4*u,4)}, v{qXC} offset:{2048*u}")
    for u in range(3):
        a(f"ds_read_b64 {vr(Qf+4*u,2)}, v{qXC} offset:{2048*u+1024}")
        a(f"ds_read_b64 {vr(Vp+2+2*u,2)}, v{qXC} offset:{2048*u+1024+8}")
    a(f"ds_read_b64 {vr(Vp,2)}, v{qXC} offset:7168")
    a(f"s_setprio {HPRI}\ns_waitcnt lgkmcnt(0)\ns_branch L_ATT")

def qkv_compute(a):
    sRd, sC, sT, sT2 = range(59, 63)
    vT, vT2, vT3 = qT, qT2, qT3
    F = [F0, F1]
    hi_v[0] = max(hi_v[0], 256)
    qkv_scalars(a)
    vP2, vPO, vPD = 228, 229, 230
    sPW, sPO, sIt2, sItO = 63, 64, 65, 66
    assert all((q*7282) >> 16 == q//9 for q in range(5900))
    assert all((q*11) >> 5 == q//3 for q in range(9))
    def wline(dst, first, n, half=False):
        a(f"""s_mul_i32 s{sT}, s{sW4}, {12 if half else 24}
s_add_u32 s{sT}, s{sT}, s{sI if half else sSL}
s_mul_i32 s{sT}, s{sT}, {n}
s_add_u32 s{sT}, s{sT}, {first}
v_add_u32 v{vT}, s{sT}, v0
v_mul_u32_u24 v{vT2}, 7282, v{vT}
v_lshrrev_b32 v{vT2}, 16, v{vT2}
v_mul_u32_u24 v{vT3}, 9, v{vT2}
v_sub_u32 v{vT}, v{vT}, v{vT3}
v_mul_u32_u24 v{vT3}, 11, v{vT}
v_lshrrev_b32 v{vT3}, 5, v{vT3}
v_mul_u32_u24 v{vT3}, {1280-384}, v{vT3}
v_lshl_add_u32 v{vT}, v{vT}, 7, v{vT3}
v_and_b32 v{vT3}, 63, v{vT2}
v_lshrrev_b32 v{dst}, 7, v{vT2}
v_add_u32 v{dst}, s{sRot}, v{dst}
v_subrev_u32 v{F0}, 5, v{dst}
v_min_u32 v{dst}, v{dst}, v{F0}
v_lshl_add_u32 v{vT3}, v{dst}, 6, v{vT3}
v_and_b32 v{vT2}, 64, v{vT2}
v_mul_u32_u24 v{vT2}, 5, v{vT2}
v_add_u32 v{vT2}, v{vT2}, v{vT3}
v_mul_u32_u24 v{vT2}, 3840, v{vT2}
v_add_u32 v{vT}, v{vT}, v{vT2}
v_mov_b32 v{vT2}, {OOB}
v_cmp_gt_u32 vcc, {n}, v0
v_cndmask_b32 v{dst}, v{vT2}, v{vT}, vcc""")
    if NS >= 0:
        NF = (120 - NS + 1)//2
        a(f"""s_lshr_b32 s72, s{sHG}, 2
s_and_b32 s73, s{sHG}, 1
s_cmp_eq_u32 s72, s73
s_cselect_b32 s72, {NS}, {NF}
s_cselect_b32 s73, 0, {48*NS}
s_cselect_b32 s74, 0, {NF}""")
        wline(vP2, 's73', 's72', True)
    else: wline(vP2, 0, 6*N1)
    a(f"""s_mul_i32 s{sPW}, s{sCP}, 320
s_and_b32 s{sPW}, s{sPW}, 0xffffff80
s_waitcnt lgkmcnt(0)""")
    srd(a, R_B, S_WQKV, 2457600)
    a(f"buffer_load_dword v{vPD}, v{vP2}, {R(R_B)}, s{sPW} offen")
    if NS >= 0:
        wline(vP2, 48*NS + 48*NF, 's74', True)
        a(f"buffer_load_dword v{vPD}, v{vP2}, {R(R_B)}, s{sPW} offen")
    if XPF:
        srd(a, R_A, S_X, 2621440)
        a(f"""s_and_b32 s{sT2}, s{sSL}, 1
s_mul_i32 s{sT2}, s{sT2}, 48
s_add_u32 s{sT2}, s{sT2}, s{sJ0}
s_lshl_b32 s{sT2}, s{sT2}, 1
s_add_u32 s{sT2}, s{sT2}, s{sP}
s_mul_i32 s{sT2}, s{sT2}, 1280
s_lshl_b32 s70, s{sW4}, 7
s_add_u32 s{sT2}, s{sT2}, s70
v_mul_u32_u24 v{vT3}, 2560, v0
v_mov_b32 v{vT2}, {OOB}
v_cmp_gt_u32 vcc, 48, v0
v_cndmask_b32 v{vT3}, v{vT2}, v{vT3}, vcc
buffer_load_dword v{vPD}, v{vT3}, {R(R_A)}, s{sT2} offen
buffer_load_dword v{vPD}, v{vT3}, {R(R_A)}, s{sT2} offen offset:512
buffer_load_dword v{vPD}, v{vT3}, {R(R_A)}, s{sT2} offen offset:768""")
    if N1 < 10: wline(vP2, 576*N1, 6*(10-N1))
    srd(a, R_C, S_WO, 819200)
    a(f"""s_lshl_b32 s{sPO}, s{sSL}, 2
s_add_u32 s{sPO}, s{sPO}, s{sW4}
s_mul_i32 s{sPO}, s{sPO}, 6400
v_lshlrev_b32 v{vPO}, 7, v0
v_mov_b32 v{vT2}, {OOB}
v_cmp_gt_u32 vcc, 50, v0
v_cndmask_b32 v{vPO}, v{vT2}, v{vPO}, vcc
s_and_b32 s{sItO}, s{sSL}, {POM}
s_add_u32 s{sItO}, s{sItO}, {PO0 + 50*NOPO}
s_lshr_b32 s{sIt2}, s{sSL}, 1
s_and_b32 s{sIt2}, s{sIt2}, {P2M}
s_add_u32 s{sIt2}, s{sIt2}, {P20}""")
    srd(a, R_WS, S_WS, WS_END); srd(a, R_D, S_DBG, 256)
    for i in range(0, 96, 2): a(f"v_pk_mov_b32 {vr(ACC+i,2)}, 0, 0")
    attn_consts(a, False)
    wo_setup(a, vT, vT2, vT3, 232)
    ost_setup(a)
    a(f"""v_bfe_u32 v{vT}, v{qM}, 1, 3
v_xor_b32 v{vT}, v{vT}, v{qG}
v_lshlrev_b32 v{vT}, 4, v{vT}
v_lshl_add_u32 v{qXb0}, v{qM}, 7, v{vT}
v_xor_b32 v{qXb1}, 64, v{qXb0}
v_bfe_u32 v{vT}, v0, 2, 3
v_mul_u32_u24 v{vT}, 480, v{vT}
v_lshrrev_b32 v{vT2}, 5, v0
v_lshlrev_b32 v{vT2}, 13, v{vT2}
v_add_u32 v{vT2}, 12288, v{vT2}
s_mul_i32 s{sT}, s{sW4}, 40
v_add3_u32 v{vT}, v{vT}, v{vT2}, s{sT}
v_add_u32 v{vT3}, 3840, v{vT2}
v_and_b32 v{vT2}, 3, v0
v_lshl_add_u32 v{qWb}, v{vT2}, 3, v{vT}
v_cmp_eq_u32 vcc, 2, v{vT2}
v_min_u32 v{vT2}, 2, v{vT2}
v_mul_u32_u24 v{vT2}, 160, v{vT2}
v_add3_u32 v{qDb}, v{vT}, v{vT2}, 32
v_cndmask_b32 v{qDb}, v{qDb}, v{vT3}, vcc
s_mov_b32 s{sRd}, {qslot(0)}
v_add_u32 v{qXa0}, s{sRd}, v{qXb0}
v_add_u32 v{qXa1}, s{sRd}, v{qXb1}
v_add_u32 v{qWa}, s{sRd}, v{qWb}
v_add_u32 v{qDa}, s{sRd}, v{qDb}""")
    def reads(fs, s):
        b = F[fs]; r = []
        for t, (reg, off) in enumerate(((qWa, 0), (qWa, 160), (qDa, 0), (qWa, 320))):
            for h in range(2):
                r.append(f"ds_read_b64_tr_b16 {vr(b+24+4*t+2*h,2)}, v{reg} offset:{s*16384+h*4096+off}")
        for rt in range(6):
            r.append(f"ds_read_b128 {vr(b+4*rt,4)}, v{qXa1 if s else qXa0} offset:{2048*rt}")
        return r
    def mfmas(fs, order=range(6)):
        b = F[fs]; m = []
        for rt in order:
            x = vr(b+4*rt, 4)
            for t in range(4):
                w = vr(b+24+4*t, 4); c = vr(A(rt, t), 4)
                m.append(f"{MF} {c}, {w}, {x}, {c}" if t < 3 else f"{MF} {c}, {x}, {w}, {c}")
        if EM and len(m) == 24: m = m + m[:4]
        return m
    adv = [f"s_add_u32 s{sRd}, s{sRd}, {QSLOT}\ns_cmp_eq_u32 s{sRd}, {3*QSLOT}\ns_cselect_b32 s{sRd}, 0, s{sRd}",
           f"v_add_u32 v{qXa0}, s{sRd}, v{qXb0}", f"v_add_u32 v{qXa1}, s{sRd}, v{qXb1}",
           f"v_add_u32 v{qWa}, s{sRd}, v{qWb}", f"v_add_u32 v{qDa}, s{sRd}, v{qDb}"]
    stamp(a, 1)
    a(f"s_mov_b32 s{sC}, 0\ns_barrier")
    stamp(a, 2)
    for x in reads(0, 0): a(x)
    a.label('Q_LOOP')
    a("s_waitcnt lgkmcnt(0)")
    pf = []
    if not NOPO: pf.append(f"s_cmp_lg_u32 s{sC}, s{sItO}\ns_cbranch_scc1 Q_NPO\nbuffer_load_dword v{vPD}, v{vPO}, {R(R_C)}, s{sPO} offen\nQ_NPO:")
    if N1 < 10 and not P2D: pf.append(f"s_cmp_lg_u32 s{sC}, s{sIt2}\ns_cbranch_scc1 Q_NP2\nbuffer_load_dword v{vPD}, v{vP2}, {R(R_B)}, s{sPW} offen\nQ_NP2:")
    interleave(a, mfmas(0), reads(1, 1) + adv + pf)
    a(f"s_waitcnt lgkmcnt(0)\ns_barrier")
    interleave(a, mfmas(1), reads(0, 0) + [f"s_add_u32 s{sC}, s{sC}, 1\ns_cmp_lg_u32 s{sC}, 9"])
    a("s_cbranch_scc1 Q_LOOP\ns_barrier\ns_waitcnt vmcnt(0) lgkmcnt(0)")
    if OWARM: owarm(a)
    interleave(a, mfmas(0, (3, 4, 5, 2)), reads(1, 1))
    a("s_waitcnt lgkmcnt(0)\ns_barrier")
    def send(rt):
        u = rt - 3
        return (pkl(A(rt,1), A(rt,1)) + pkl(A(rt,1)+2, A(rt,2)) + [f"ds_write_b128 v{qXC}, {vr(A(rt,1),4)} offset:{2048*u}"]
                + pkl(A(rt,0), A(rt,0)) + pkl(A(rt,0)+2, A(rt,3)) + [f"ds_write_b128 v{qXC}, {vr(A(rt,0),4)} offset:{2048*u+1024}"])
    def own(rt): return pkl(Kf+4+4*rt, A(rt,1)) + pkl(Kf+6+4*rt, A(rt,2)) + pkl(Vp+2+2*rt, A(rt,3))
    o2 = own(2)
    s2 = o2[:4] + [f"ds_write_b128 v{qXC}, {vr(Kf+12,4)} offset:6144"] + o2[4:] + [f"ds_write_b64 v{qXC}, {vr(Vp+6,2)} offset:7168"]
    m = mfmas(1, (3, 4, 5, 2)) + mfmas(0, (0, 1)) + mfmas(1, (0, 1))
    for x in m[:9]: a(x)
    interleave(a, m[9:28], send(3) + send(4) + send(5) + s2, per=2)
    interleave(a, m[28:], pkl(Qf+8, A(2, 0)) + [f"v_pk_mov_b32 {vr(Vp,2)}, 0, 0"])
    stamp(a, 3)
    a("s_waitcnt lgkmcnt(0)\ns_barrier")
    astamp(a, 1)
    wo_dma(a, WS3+2, 232)
    a(f"v_pk_mov_b32 {vr(Kf,2)}, 0, 0\nv_pk_mov_b32 {vr(Kf+2,2)}, 0, 0")
    for rt in range(2):
        for x in own(rt) + pkl(Qf+4*rt, A(rt, 0)): a(x)

def attention(a):
    a.label('L_ATT')
    astamp(a, 2)
    T = F1; So = F1 + 16; Sp = F1 + 28; Mx = ACC + 48; O = ACC + 56
    for i in range(4): a(f"{MF} {vr(T+4*i,4)}, {vr(Kf+4*i,4)}, {vr(cI,4)}, 0")
    for u in range(3):
        for q in range(2): a(f"v_permlane16_swap_b32 v{Qf+4*u+2+q}, v{Kf+4*u+6+q}")
    a(f"s_mov_b32 s70, {f32(20**-0.5 * 1.4426950408889634)}\ns_mov_b32 s71, s70")
    ms = []
    for u in range(3):
        ms.append(f"{MF} {vr(So+4*u,4)}, {vr(Kf+4*u+4,4)}, {vr(Qf+4*u,4)}, {vr(cBo,4)}")
        ms.append(f"{MF} {vr(Sp+4*u,4)}, {vr(Kf+4*u,4)}, {vr(Qf+4*u,4)}, {vr(cBq if u == 0 else cBp,4)}")
    interleave(a, ms, sum((pkl(V4+2*i, T+4*i) for i in range(4)), []), start=1, per=2)
    m0, m1, m2, t0 = Mx, Mx+2, Mx+4, Mx+6
    for u in range(3):
        for r in range(4): a(f"v_max_f32 v{So+4*u+r}, v{So+4*u+r}, v{Sp+4*u+r}")
        s = So + 4*u; m = Mx + 2*u
        a(f"v_max3_f32 v{m}, v{s}, v{s+1}, v{s+2}\nv_max_f32 v{m}, v{m}, v{s+3}")
    a(f"""v_mov_b32 v{t0}, v{m2}
v_permlane32_swap_b32 v{m0}, v{m1}
v_permlane32_swap_b32 v{m2}, v{t0}
v_max_f32 v{m0}, v{m0}, v{m1}
v_max_f32 v{m2}, v{m2}, v{t0}
v_permlane16_swap_b32 v{m0}, v{m2}
v_max_f32 v{m0}, v{m0}, v{m2}
v_mul_f32 v{m0}, s70, v{m0}
v_mov_b32 v{m2}, v{m0}
v_permlane16_swap_b32 v{m0}, v{m2}
v_mov_b32 v{m1}, v{m0}""")
    def sm(u):
        return [f"v_pk_fma_f32 {vr(So+4*u+2*q,2)}, {vr(So+4*u+2*q,2)}, s[70:71], {vr(Mx+2*u,2)} op_sel_hi:[1,0,0] neg_lo:[0,0,1] neg_hi:[0,0,1]" for q in range(2)]
    def ex(u): return [f"v_exp_f32 v{So+4*u+r}, v{So+4*u+r}" for r in range(4)]
    def pp(u):
        p = Qf + 4*u
        return pkl(p, So+4*u) + [f"v_and_b32 v{p+2+q}, v{cMk+q}, v{p+q}" for q in range(2)] + [f"v_xor_b32 v{p+q}, v{p+2+q}, v{p+q}" for q in range(2)]
    def pv(u):
        p = vr(Qf+4*u, 4); o = O + 12*u
        return [f"{MF} {vr(o+8,4)}, {vr(cOne,4)}, {p}, 0", f"{MF} {vr(o,4)}, {vr(Vp+2*u,4)}, {p}, 0", f"{MF} {vr(o+4,4)}, {vr(V4+2*u,4)}, {p}, 0"]
    def fin(u):
        o = O + 12*u
        return ([f"v_rcp_f32 v{o+8}, v{o+8}"] + [f"v_pk_mul_f32 {vr(o+2*q,2)}, {vr(o+2*q,2)}, {vr(o+8,2)} op_sel_hi:[1,0]" for q in range(4)]
                + pkl(o, o) + [f"ds_write_b64 v{qOC}, {vr(o,2)} offset:{u*16*176}"] + pkl(o+4, o+4))
    for x in sm(2): a(x)
    a(f"v_permlane32_swap_b32 v{m0}, v{m1}")
    for x in sm(0) + sm(1): a(x)
    if OWARM: a("s_waitcnt vmcnt(0)")
    if not WS3:
        a("s_cmp_ge_u32 s3, 4\ns_cbranch_scc1 L_NR2")
        wo_dma(a, 3, 232)
        a("L_NR2:")
    astamp(a, 3)
    for x in ex(2) + ex(0) + pp(2) + ex(1): a(x)
    interleave(a, pv(2), pp(0), per=2)
    interleave(a, pv(0), pp(1), per=2, start=0)
    interleave(a, pv(1), fin(2), per=2)
    for x in fin(0) + fin(1): a(x)
    a("s_mov_b32 exec_lo, 0\ns_mov_b32 exec_hi, 0xffff0000")
    for u in range(3): a(f"ds_write_b64 v{qOD}, {vr(O+12*u+4,2)} offset:{u*16*176}")
    a("s_mov_b64 exec, -1")
    v1, v2, vd = vOS1, vOS2, 12
    assert NPRE == 0
    astamp(a, 5)
    a(f"""s_waitcnt lgkmcnt(0)
s_setprio 0
s_barrier
{f"s_memtime s[{S_ST+12}:{S_ST+13}]" if AST else ""}
ds_read_b128 {vr(vd,4)}, v{v1}
ds_read_b128 {vr(vd+4,4)}, v{v1} offset:176
s_mov_b64 exec, s[76:77]
s_waitcnt lgkmcnt({0 if AST else 1})
buffer_store_dwordx4 {vr(vd,4)}, v{v2}, {R(R_WS)}, s74 offen sc1
s_mov_b64 exec, s[78:79]
s_waitcnt lgkmcnt(0)
buffer_store_dwordx4 {vr(vd+4,4)}, v{v2}, {R(R_WS)}, s75 offen sc1
s_mov_b64 exec, -1
s_cmp_ge_u32 s3, 4
s_cbranch_scc0 L_P2""")
    wo_dma(a, 4)

sA, sN2 = 56, 57
def dft_scalars(a):
    a(f"""s_sub_u32 s{sA}, s{sSL}, 24
s_lshl_b32 s{sN2}, s{sA}, 3
s_lshl_b32 s70, s{sW4}, 1
s_add_u32 s{sN2}, s{sN2}, s70
s_add_u32 s{sN2}, s{sN2}, s{sP}""")

def dft_loader(a):
    sT, sT2, sXo, sKo, sM0X, sM0C = range(58, 64)
    vT, vT2, vT3, vGa, vGr, vGo_ = 2, 3, 4, 5, 6, 7
    vXo = 8; vCo = 12; XG = 20; GW = 28
    dft_scalars(a)
    a(f"""v_lshrrev_b32 v{vT}, 3, v0
v_and_b32 v{vT2}, 7, v0
s_mul_i32 s{sXo}, s{sN2}, 1280
s_lshl_b32 s{sM0X}, s{sW4}, 12""")
    for j in range(4):
        a(f"""v_add_u32 v{vT3}, {8*j}, v{vT}
v_mul_u32_u24 v{vXo+j}, {64*1280}, v{vT3}
v_bfe_u32 v{vT3}, v{vT3}, 1, 3
v_xor_b32 v{vT3}, v{vT3}, v{vT2}
v_lshl_add_u32 v{vXo+j}, v{vT3}, 4, v{vXo+j}""")
        if j: a(f"v_subrev_u32 v{vXo+j}, {1024*j}, v{vXo+j}")
    sFo = 65
    for i in range(5):
        a(f"s_add_u32 s70, s{sRot}, {i}\ns_sub_u32 s71, s70, 5\ns_min_u32 s70, s70, s71\ns_lshl_b32 s{sFo+i}, s70, 7")
    a("s_waitcnt lgkmcnt(0)")
    srd(a, R_A, S_X, 2621440)
    def xd(f):
        for h in range(2):
            a(f"s_add_u32 m0, s{sM0X}, {DSLOT*(f%3) + 16384*h}")
            a(f"s_add_u32 s{sT}, s{sXo}, s{sFo+f}" if h == 0 else f"s_add_u32 s{sT}, s{sT}, 640")
            for j in range(4):
                a(f"buffer_load_dwordx4 v{vXo+j}, {R(R_A)}, s{sT} offen offset:{1024*j} lds")
    sEm = 64
    def cd(f):
        for j in range(5):
            if j == 0: a(f"s_add_u32 m0, s{sM0C}, {DSLOT*(f%3) + 32768}\ns_add_u32 s{sT}, s{sKo}, s{sFo+f}\ns_mov_b32 exec_lo, s{sEm}")
            if j == 4: a("s_add_u32 m0, m0, 4096")
            a(f"buffer_load_dwordx4 v{vCo+j}, {R(R_B)}, s{sT} offen offset:{1024*(j&3)} lds")
            if j == 0: a("s_mov_b32 exec_lo, -1")
    xd(0)
    a(f"""s_lshl_b32 s70, s{sCP}, 2
s_add_u32 s70, s70, s{sW4}
s_cmp_eq_u32 s70, 2
s_cselect_b32 s{sEm}, 0xffffff00, -1
s_cbranch_scc0 L_NOROW
v_mov_b32 v{XG}, 0xbf803f80
v_lshlrev_b32 v{XG+1}, 2, v0
v_and_b32 v{XG+1}, 127, v{XG+1}
v_add_u32 v{XG+1}, {32768+10240}, v{XG+1}
ds_write_b32 v{XG+1}, v{XG}
ds_write_b32 v{XG+1}, v{XG} offset:{DSLOT}
v_add_u32 v{XG+1}, {2*DSLOT}, v{XG+1}
ds_write_b32 v{XG+1}, v{XG}
s_waitcnt lgkmcnt(0)
L_NOROW:""")
    a(f"""s_lshr_b32 s{sKo}, s{sCP}, 1
s_mul_i32 s{sKo}, s{sKo}, 160
s_and_b32 s70, s{sCP}, 1
s_add_u32 s{sKo}, s{sKo}, s70
s_mul_i32 s{sKo}, s{sKo}, 1280
s_and_b32 s70, s{sW4}, 1
s_mul_i32 s70, s70, {40*2560}
s_add_u32 s{sKo}, s{sKo}, s70
s_mul_i32 s{sM0C}, s{sW4}, 5120
s_cmp_lt_u32 s{sW4}, 2
s_cselect_b32 s{R_B}, s{S_HRE}, s{S_HIM}
s_cselect_b32 s{R_B+1}, s{S_HRE+1}, s{S_HIM+1}
s_mov_b32 s{R_B+2}, 819200
s_mov_b32 s{R_B+3}, 0x20000
s_and_b32 s70, s{sW4}, 1
s_lshl_b32 s70, s70, 2""")
    for j in range(5):
        a(f"""v_add_u32 v{vT3}, {8*j}, v{vT}
v_mul_u32_u24 v{vCo+j}, 2560, v{vT3}
v_lshrrev_b32 v{vT3}, 1, v{vT3}
v_add_u32 v{vT3}, s70, v{vT3}
v_and_b32 v{vT3}, 7, v{vT3}
v_xor_b32 v{vT3}, v{vT3}, v{vT2}
v_lshl_add_u32 v{vCo+j}, v{vT3}, 4, v{vCo+j}""")
        if j & 3: a(f"v_subrev_u32 v{vCo+j}, {1024*(j&3)}, v{vCo+j}")
    a(f"""s_lshl_b32 s70, s{sCP}, 3
v_add_u32 v{vT3}, s70, v{vT}
v_bfe_u32 v{vT3}, v{vT3}, 1, 3
v_xor_b32 v{vT3}, v{vT3}, v{vT2}
v_lshlrev_b32 v{vGo_}, 4, v{vT3}
s_lshl_b32 s70, s{sCP}, 10
s_add_u32 s70, s70, s{sM0X}
v_lshlrev_b32 v{vGr}, 4, v0
v_add_u32 v{vGr}, s70, v{vGr}
v_mov_b32 v{vGa}, 0""")
    srd(a, R_WS, S_WS, WS_END); srd(a, R_C, S_WO, 819200); srd(a, R_D, S_GATE, 1280)
    wo_setup(a, vT, vT2, vT3)
    g_setup(a, vT, vT2, vT3)
    a(f"""s_lshl_b32 s{sT2}, s{sA}, 2
s_add_u32 s{sT2}, s{sT2}, s{sW4}
s_mul_i32 s{sT2}, s{sT2}, 25600
v_lshlrev_b32 v{vT}, 7, v0
v_mov_b32 v{vT3}, {OOB}
v_cmp_gt_u32 vcc, 50, v0
v_cndmask_b32 v{vT}, v{vT3}, v{vT}, vcc""")
    def gate(f):
        if f == 1: a(f"v_add_u32 v{vGr}, {DSLOT}, v{vGr}")
        if f == 2: a(f"v_add_u32 v{vGr}, {DSLOT}, v{vGr}")
        if f == 3: a(f"v_subrev_u32 v{vGr}, {2*DSLOT}, v{vGr}")
        if f == 4: a(f"v_add_u32 v{vGr}, {DSLOT}, v{vGr}")
        a(f"ds_read_b128 {vr(XG,4)}, v{vGr}\nds_read_b128 {vr(XG+4,4)}, v{vGr} offset:16384\ns_waitcnt lgkmcnt(0)")
        for d in range(4):
            a(f"v_dot2c_f32_bf16 v{vGa}, v{XG+d}, v{GW+4*f+d}\nv_dot2c_f32_bf16 v{vGa}, v{XG+4+d}, v{GW+20+4*f+d}")
    cd(0); xd(1)
    stamp(a, 1)
    a("s_waitcnt vmcnt(8)\ns_barrier")
    for i in range(10): a(f"buffer_load_dwordx4 {vr(GW+4*i,4)}, v{vGo_}, {R(R_D)}, s{sFo+i%5} offen offset:{640*(i//5)}")
    srd(a, R_D, S_DBG, 256)
    cd(1); xd(2)
    a("s_waitcnt vmcnt(8)")
    gate(0)
    a("s_barrier")
    cd(2); xd(3)
    gate(1)
    a("s_waitcnt vmcnt(8)\ns_barrier")
    cd(3); xd(4)
    gate(2)
    a("s_waitcnt vmcnt(8)\ns_barrier")
    cd(4)
    for q in range(NPF): a(f"buffer_load_dword v{vT3}, v{vT}, {R(R_C)}, s{sT2} offen\ns_add_u32 s{sT2}, s{sT2}, 6400")
    gate(3)
    a(f"s_waitcnt vmcnt({NPF})\ns_barrier")
    stamp(a, 2)
    gate(4)
    a(f"""v_add_f32_dpp v{vGa}, v{vGa}, v{vGa} quad_perm:[1,0,3,2] row_mask:0xf bank_mask:0xf
v_add_f32_dpp v{vGa}, v{vGa}, v{vGa} quad_perm:[2,3,0,1] row_mask:0xf bank_mask:0xf
v_add_f32_dpp v{vGa}, v{vGa}, v{vGa} row_half_mirror row_mask:0xf bank_mask:0xf
s_lshl_b32 s{sT}, s{sCP}, 6
s_and_b32 s{sT2}, s{sN2}, 31
s_lshl_b32 s{sT2}, s{sT2}, 8
s_add_u32 s{sT}, s{sT}, s{sT2}
s_lshr_b32 s{sT2}, s{sN2}, 5
s_lshl_b32 s{sT2}, s{sT2}, 2
s_add_u32 s{sT}, s{sT}, s{sT2}
s_add_u32 s{sT}, s{sT}, {WS_GATE}
s_mov_b32 exec_lo, 0x01010101
s_mov_b32 exec_hi, 0x01010101
buffer_store_dword v{vGa}, v0, {R(R_WS)}, s{sT} offen sc1
s_mov_b64 exec, -1
s_barrier""")
    clr_read(a); clr_check(a, vT)
    a("s_barrier")
    tw_gen(a, 14, 15, 16, 17)
    a("s_waitcnt vmcnt(0)\ns_barrier")
    stamp(a, 3)
    a("s_cmp_lg_u32 s3, 4\ns_cbranch_scc1 L_NOPUB")
    flag_store(a, vT, '0xff')
    a("L_NOPUB:")
    for r in range(5): wo_dma(a, r)
    a("s_branch L_P2")

def dft_compute(a):
    V = RegAlloc('v', 2, 256)
    sKo, sT, sT2 = range(58, 61)
    vM, vG, vT, vT2, vT3 = [V.alloc() for _ in range(5)]
    vXa0, vXa1, vCa0, vCa1, vSp = [V.alloc() for _ in range(5)]
    SEL = V.alloc(10, 2)
    acc = V.alloc(80, 4)
    FC = [V.alloc(40, 4), V.alloc(40, 4)]
    RW = V.alloc(16, 4); fRe = V.alloc(4, 4); fIm = V.alloc(4, 4)
    TT = V.alloc(16, 4); XF = V.alloc(16, 4)
    Sb, Sa, Nb, Na = SEL, SEL+2, SEL+4, SEL+6
    def A_(ct, rt): return acc + 8*ct + 4*rt
    dft_scalars(a)
    a(f"""s_lshr_b32 s{sKo}, s{sCP}, 1
s_mul_i32 s{sKo}, s{sKo}, 160
s_and_b32 s70, s{sCP}, 1
s_add_u32 s{sKo}, s{sKo}, s70
s_mul_i32 s{sKo}, s{sKo}, 1280
s_and_b32 s70, s{sW4}, 1
s_mul_i32 s70, s70, {40*2560}
s_add_u32 s{sKo}, s{sKo}, s70
v_mul_u32_u24 v{vT}, 52, v0
v_lshrrev_b32 v{vT}, 8, v{vT}
v_mul_u32_u24 v{vT}, {2560-640}, v{vT}
v_lshl_add_u32 v{vT}, v0, 7, v{vT}
v_mov_b32 v{vT3}, {OOB}
v_cmp_gt_u32 vcc, 25, v0
v_cndmask_b32 v{vT}, v{vT3}, v{vT}, vcc
s_mul_i32 s{sT}, s{sA}, {5*2560}
s_add_u32 s{sT}, s{sT}, s{sKo}
s_waitcnt lgkmcnt(0)
s_cmp_lt_u32 s{sW4}, 2
s_cselect_b32 s{R_B}, s{S_HRE}, s{S_HIM}
s_cselect_b32 s{R_B+1}, s{S_HRE+1}, s{S_HIM+1}
s_mov_b32 s{R_B+2}, 819200
s_mov_b32 s{R_B+3}, 0x20000
buffer_load_dword v{RW}, v{vT}, {R(R_B)}, s{sT} offen""")
    assert all((q*52) >> 8 == q//5 for q in range(25))
    if PRE:
        srd(a, R_C, S_WO, 819200)
        a(f"""s_sub_u32 s70, s2, 192
s_lshl_b32 s70, s70, 2
s_add_u32 s70, s70, s{sW4}
s_mul_i32 s70, s70, 3200
v_lshlrev_b32 v{vT}, 7, v0
v_cndmask_b32 v{vT}, v{vT3}, v{vT}, vcc
buffer_load_dword v{RW+1}, v{vT}, {R(R_C)}, s70 offen""")
    srd(a, R_C, S_SRE, 8388608); srd(a, R_D, S_SIM, 8388608); srd(a, R_WS, S_WS, WS_END)
    a(f"""v_and_b32 v{vM}, 15, v0
v_lshrrev_b32 v{vG}, 4, v0
v_lshrrev_b32 v{vT}, 1, v{vM}
s_lshl_b32 s{sT}, s{sW4}, 3
v_add_u32 v{vT}, s{sT}, v{vT}
v_lshlrev_b32 v{vT}, 18, v{vT}
v_lshl_add_u32 v{vT}, v{vG}, 3, v{vT}
buffer_load_dwordx2 {vr(fRe,2)}, v{vT}, {R(R_C)}, 0 offen
buffer_load_dwordx2 {vr(fRe+2,2)}, v{vT}, {R(R_C)}, 0 offen offset:32
buffer_load_dwordx2 {vr(fIm,2)}, v{vT}, {R(R_D)}, 0 offen
buffer_load_dwordx2 {vr(fIm+2,2)}, v{vT}, {R(R_D)}, 0 offen offset:32""")
    if PXD:
        srd(a, R_A, S_X, 2621440)
        a(f"""v_and_b32 v{vT}, 31, v0
v_mul_u32_u24 v{vT}, {64*1280}, v{vT}
v_lshrrev_b32 v{vT2}, 5, v0
v_mul_u32_u24 v{vT2}, 640, v{vT2}
v_add_u32 v{vT}, v{vT}, v{vT2}
s_mul_i32 s{sT}, s{sN2}, 1280""")
        for i in range(1, 1+PXD):
            a(f"s_add_u32 s70, s{sRot}, {i}\ns_sub_u32 s71, s70, 5\ns_min_u32 s70, s70, s71\ns_lshl_b32 s70, s70, 7\ns_add_u32 s70, s70, s{sT}")
            a(f"buffer_load_dword v{RW+2}, v{vT}, {R(R_A)}, s70 offen")
    for i in range(0, 80, 2): a(f"v_pk_mov_b32 {vr(acc+i,2)}, 0, 0")
    a(f"""s_lshl_b32 s70, s3, 8
s_add_u32 s70, s70, s{sSL}
s_cmp_lg_u32 s70, 31
s_cbranch_scc1 L_NOCLR
v_lshlrev_b32 v{vT}, 7, v0
s_and_b32 s70, s2, 7
s_lshl_b32 s70, s70, 13
s_add_u32 s70, s70, {WS_FLAG}
buffer_store_dwordx4 {vr(acc,4)}, v{vT}, {R(R_WS)}, s70 offen sc1
L_NOCLR:
v_bfe_u32 v{vT}, v{vM}, 1, 3
v_xor_b32 v{vT}, v{vT}, v{vG}
v_lshlrev_b32 v{vT}, 4, v{vT}
v_lshl_add_u32 v{vT}, v{vM}, 7, v{vT}
s_lshl_b32 s{sT}, s{sW4}, 12
v_add_u32 v{vXa0}, s{sT}, v{vT}
v_xor_b32 v{vXa1}, 64, v{vXa0}
v_add_u32 v{vCa0}, 32768, v{vT}
v_xor_b32 v{vCa1}, 64, v{vCa0}
s_cmp_eq_u32 s{sCP}, 0
s_cselect_b32 s66, 0x00010001, 0
s_mov_b32 s67, s66
v_lshlrev_b32 v{vT}, 2, v{vG}
v_sub_u32 v{vT}, v{vM}, v{vT}
s_bitcmp1_b32 s{sCP}, 0
s_cselect_b32 s70, 0x80008000, 0""")
    for z in (0, 4, 8): a(f"v_pk_mov_b32 {vr(SEL+z,2)}, 0, 0")
    for pr in range(2):
        a(f"""v_mov_b32 v{vT2}, 0x3f80
v_cmp_eq_u32 vcc, {2*pr}, v{vT}
v_cndmask_b32 v{SEL+2+pr}, 0, v{vT2}, vcc
v_mov_b32 v{vT2}, 0x3f800000
v_cmp_eq_u32 vcc, {2*pr+1}, v{vT}
v_cndmask_b32 v{SEL+2+pr}, v{SEL+2+pr}, v{vT2}, vcc
v_xor_b32 v{SEL+6+pr}, s70, v{SEL+2+pr}""")
    a("s_waitcnt vmcnt(0)")
    srd(a, R_D, S_DBG, 256)
    a(f"""s_lshl_b32 s70, s3, 8
s_add_u32 s70, s70, s{sSL}
s_cmp_lg_u32 s70, 31
s_cbranch_scc1 L_NOCLR2
s_and_b32 s70, s2, 7
s_lshl_b32 s70, s70, 2
v_mov_b32 v{vT}, 1
s_mov_b64 exec, 1
buffer_store_dword v{vT}, v{acc}, {R(R_D)}, s70 offen sc1
s_mov_b64 exec, -1
L_NOCLR2:""")
    def rreads(s): return [f"ds_read_b128 {vr(RW+8*rt+4*h,4)}, v{vXa1 if s else vXa0} offset:{16384*h+2048*rt}" for rt in range(2) for h in range(2)]
    def creads(s): return [f"ds_read_b128 {vr(FC[s]+4*ct,4)}, v{vCa1 if s else vCa0} offset:{2048*ct}" for ct in range(10)]
    def foldm():
        m = []
        for rt in range(2):
            for t, S_ in enumerate((Sa, Sb)): m.append(f"{MF} {vr(TT+8*rt+4*t,4)}, {vr(S_,4)}, {vr(RW+8*rt,4)}, 0")
        for rt in range(2):
            for t, N_ in enumerate((Na, Nb)): m.append(f"{MF} {vr(TT+8*rt+4*t,4)}, {vr(N_,4)}, {vr(RW+8*rt+4,4)}, {vr(TT+8*rt+4*t,4)}")
        return m
    def packx(s): return sum((pkl(XF+8*s+4*rt+2*t, TT+8*rt+4*t) for rt in range(2) for t in range(2)), [])
    def mainm(s):
        m = []
        for ct in range(10):
            for rt in range(2):
                c = vr(A_(ct, rt), 4)
                m.append(f"{MF} {c}, {vr(XF+8*s+4*rt,4)}, {vr(FC[s]+4*ct,4)}, {c}")
        return m
    def step(s, nxt):
        m = mainm(s)
        if not nxt:
            for x in m: a(x)
            return
        cr = creads(1-s)
        interleave(a, m[:9], rreads(1-s) + cr[:5])
        a("s_waitcnt lgkmcnt(5)")
        interleave(a, foldm(), cr[5:])
        interleave(a, m[9:], packx(1-s), start=3, per=2)
        a("s_waitcnt lgkmcnt(0)")
    def adv(f):
        d = DSLOT if (f+1) % 3 else -2*DSLOT
        op = 'v_add_u32' if d > 0 else 'v_subrev_u32'
        for r_ in (vXa0, vXa1, vCa0, vCa1): a(f"{op} v{r_}, {abs(d)}, v{r_}")
    stamp(a, 1)
    a("s_barrier")
    stamp(a, 2)
    for x in rreads(0) + creads(0): a(x)
    a("s_waitcnt lgkmcnt(10)")
    for x in foldm(): a(x)
    for x in packx(0): a(x)
    a("s_waitcnt lgkmcnt(0)")
    for f in range(5):
        step(0, True)
        if f < 4: adv(f)
        a("s_barrier")
        step(1, f < 4)
    stamp(a, 3)
    A1, A2 = RW, RW + 4
    a(f"""v_and_b32 v{vT}, 1, v0
v_cmp_eq_u32 vcc, 1, v{vT}
s_mul_i32 s{sT}, s{sW4}, {10*1024}
v_lshlrev_b32 v{vT2}, 4, v0
v_add_u32 v{vT2}, {L_U}, v{vT2}
v_add_u32 v{vT3}, s{sT}, v{vT2}""")
    for q in range(4):
        a(f"""v_cndmask_b32 v{A1+q}, v{fRe+q}, v{fIm+q}, vcc
v_xor_b32 v{fIm+q}, 0x80008000, v{fIm+q}
v_cndmask_b32 v{A2+q}, v{fIm+q}, v{fRe+q}, vcc""")
    U = FC[0]
    for ct in range(10):
        a(pk(U+4*ct, A_(ct, 0))); a(pk(U+4*ct+2, A_(ct, 1)))
        a(f"ds_write_b128 v{vT3}, {vr(U+4*ct,4)} offset:{1024*ct}")
    vGo, vGe = vXa1, vCa0
    a(f"""s_lshl_b32 s{sT}, s{sW4}, 7
s_lshl_b32 s{sT2}, s{sA}, 1
s_add_u32 s{sT}, s{sT}, s{sT2}
s_add_u32 s{sT}, s{sT}, s{sP}
s_mul_i32 s{sT}, s{sT}, {GP*16}
s_add_u32 s{sT}, s{sT}, {WS_G}
v_mul_u32_u24 v{vGe}, {32*GP*16}, v{vG}
v_add_u32 v{vGe}, s{sT}, v{vGe}
s_and_b32 s{sT}, s{sCP}, 1
s_mul_i32 s{sT}, s{sT}, {168*16}
s_lshr_b32 s{sT2}, s{sCP}, 1
s_mul_i32 s{sT2}, s{sT2}, 1280
s_add_u32 s{sT2}, s{sT2}, s{sT}
v_lshl_add_u32 v{vGo}, v{vM}, 4, v{vGe}
v_add_u32 v{vGo}, s{sT2}, v{vGo}
v_add_u32 v{vGe}, {160*16}, v{vGe}
v_mov_b32 v{vXa0}, {OOB}
v_cndmask_b32 v{vGe}, v{vXa0}, v{vGe}, s[66:67]
s_mov_b32 s{sT}, 0
s_mov_b32 s{sT2}, {16*GP*16}
s_waitcnt lgkmcnt(0)
s_barrier""")
    UB = [FC[0], FC[1]]
    order = (1, 2, 3, 4, 0)
    def rd(i):
        ct = order[i]; b = UB[i & 1]; r = []
        for w in range(4):
            r.append(f"ds_read_b128 {vr(b+8*w,4)}, v{vT2} offset:{w*10240+1024*ct}")
            r.append(f"ds_read_b128 {vr(b+8*w+4,4)}, v{vT2} offset:{w*10240+1024*(ct+5)}")
        return r
    def fin(i, vo, off):
        d = acc + 24*(i % 3); o = d + 16; r = []
        for w in range(4): r.append(f"v_cvt_pk_bf16_f32 v{o+w}, v{d+4*w}, v{d+4*w+1}")
        r.append(f"buffer_store_dwordx4 {vr(o,4)}, v{vo}, {R(R_WS)}, s{sT} offen offset:{off} sc1")
        for w in range(4): r.append(f"v_cvt_pk_bf16_f32 v{o+4+w}, v{d+4*w+2}, v{d+4*w+3}")
        r.append(f"buffer_store_dwordx4 {vr(o+4,4)}, v{vo}, {R(R_WS)}, s{sT2} offen offset:{off} sc1")
        return r
    for x in rd(0): a(x)
    for i in range(5):
        a("s_waitcnt lgkmcnt(0)")
        if i < 4:
            for x in rd(i+1): a(x)
        b = UB[i & 1]; d = acc + 24*(i % 3)
        m1 = [f"{MF} {vr(d+4*w,4)}, {vr(A1,4)}, {vr(b+8*w,4)}, 0" for w in range(4)]
        m2 = [f"{MF} {vr(d+4*w,4)}, {vr(A2,4)}, {vr(b+8*w+4,4)}, {vr(d+4*w,4)}" for w in range(4)]
        fl = fin(i-1, vGo, 256*order[i-1]) if i else []
        if i < 4:
            interleave(a, m1 + m2, fl, per=2, start=1)
        else:
            d5 = acc + 24*(5 % 3)
            m0 = [f"{MF} {vr(d5+4*w,4)}, {vr(A1,4)}, {vr(b+8*w+4,4)}, 0" for w in range(4)]
            interleave(a, m0 + m1, fl, per=2, start=1)
            a("s_mov_b64 exec, s[66:67]")
            for w in range(4): a(f"v_pk_mov_b32 {vr(b+8*w+4,2)}, 0, 0\nv_pk_mov_b32 {vr(b+8*w+6,2)}, 0, 0")
            a("s_mov_b64 exec, -1")
            interleave(a, m2, fin(5, vGe, 0), per=2)
    for x in fin(4, vGo, 0): a(x)
    a("s_waitcnt vmcnt(0)\ns_barrier")
    a("s_branch L_P2")

def phase2(a):
    V = RegAlloc('v', 2, 256)
    sHH, sT, sT2, sT3, sSg, sOB, sQ0, sQ1, sFl, sEx = range(56, 66)
    vM, vG, vT, vT2, vT3, vRow, vWa, vWs = [V.alloc() for _ in range(8)]
    V.alloc(10)
    vOa, vPo, vEx, vGa = [V.alloc() for _ in range(4)]
    vGl = V.alloc(2, 2); vOut = V.alloc(2)
    WR = V.alloc(20*NREG, 4)
    accB = V.alloc(20, 4); fO = V.alloc(20, 4); FW = V.alloc(20, 4); vPl = V.alloc(4, 4); fT = V.alloc(16, 4)
    vG1 = V.alloc(4, 2); vX = V.alloc(4)
    vOo = 10; vYa = 15
    FA = [vX, vX+1, None, vX+2, vX+3]
    assert fT == TW
    hi_v[0] = max(hi_v[0], V.hi)
    a.label('L_P2')
    stamp(a, 4)
    dpoll = f"buffer_load_dwordx4 {vr(vPl,4)}, v{vPo}, {R(R_WS)}, s{sEx} offen sc1"
    a(f"""s_and_b32 s{sEx}, s2, 7
s_lshl_b32 s{sEx}, s{sEx}, 13
s_add_u32 s{sEx}, s{sEx}, {WS_FLAG}
v_lshlrev_b32 v{vPo}, 7, v0
s_cmp_lg_u32 s3, 5
s_cbranch_scc1 L_ND0
s_mov_b32 exec_lo, 0xff000000
s_mov_b32 exec_hi, 0xff000000
{dpoll}
s_mov_b64 exec, -1
L_ND0:
""" + "\n".join(f"v_mov_b32 v{fO+8+j}, v{vGoL+j}" for j in range(5)))
    def wreads(dst, reg, j):
        return [f"ds_read_b64_tr_b16 {vr(dst+4*ct+2*h,2)}, v{reg} offset:{j*5120+h*1280+32*ct}" for ct in range(5) for h in range(2)]
    def grp(j): return wreads(WR+20*j, vWa, j) if j < NREG else wreads(FW, vWs, 0)
    a(f"""s_lshr_b32 s{sHH}, s3, 2
v_and_b32 v{vM}, 15, v0
v_lshrrev_b32 v{vG}, 4, v0
v_bfe_u32 v{vT}, v0, 2, 3
v_lshrrev_b32 v{vT2}, 5, v0
v_lshl_add_u32 v{vT}, v{vT2}, 4, v{vT}
v_mul_u32_u24 v{vT}, 160, v{vT}
v_and_b32 v{vT2}, 3, v0
v_lshl_add_u32 v{vT}, v{vT2}, 3, v{vT}
s_mul_i32 s{sT2}, s{sHH}, {NREG*5120}
v_add_u32 v{vWa}, s{sT2}, v{vT}
s_mul_i32 s{sT2}, s{sHH}, {(10-NREG)*5120}
s_add_u32 s{sT2}, s{sT2}, {14*5120}
v_add_u32 v{vWs}, s{sT2}, v{vT}""")
    fill = []
    fill.append(f"""v_and_b32 v{vT}, 1, v{vM}
v_mul_u32_u24 v{vT}, 640, v{vT}
v_lshrrev_b32 v{vT2}, 1, v{vM}
v_lshl_add_u32 v{vT}, v{vT2}, 4, v{vT}
v_mul_u32_u24 v{vT2}, 5120, v{vG}
s_mov_b32 s{sT}, {L_G}
v_add3_u32 v{vGa}, v{vT}, v{vT2}, s{sT}
s_lshl_b32 s{sT}, s{sW4}, 6
s_add_u32 s{sT}, s{sT}, {L_GT}
v_lshlrev_b32 v{vRow}, 2, v{vM}
v_add_u32 v{vRow}, s{sT}, v{vRow}
s_lshl_b32 s{sSg}, s{sP}, 12
s_add_u32 s{sSg}, s{sSg}, s{sEx}
s_mul_i32 s{sT}, s{sK1}, 1280
s_mul_i32 s{sT2}, s{sC2}, 160
s_add_u32 s{sT}, s{sT}, s{sT2}
s_lshl_b32 s{sT2}, s3, 6
s_mov_b32 s{sT3}, {L_GT}""")
    assert all((q*6554) >> 16 == q//10 for q in range(1100))
    for q in range(2):
        fill.append(f"""v_add_u32 v{vT}, s{sT2}, v0
v_add_u32 v{vT}, {512*q}, v{vT}
v_mul_u32_u24 v{vT2}, 6554, v{vT}
v_lshrrev_b32 v{vT2}, 16, v{vT2}
v_lshl_add_u32 v{vG1+2*q+1}, v{vT2}, 2, s{sT3}
v_mul_u32_u24 v{vT3}, 10, v{vT2}
v_sub_u32 v{vT}, v{vT}, v{vT3}
v_mul_u32_u24 v{vT3}, {32*1280}, v{vT2}
v_lshl_add_u32 v{vT3}, v{vT}, 4, v{vT3}
v_add_u32 v{vOut+q}, s{sT}, v{vT3}
v_mul_u32_u24 v{vT3}, {EXP}, v{vT2}
v_lshl_add_u32 v{vT}, v{vT}, 5, v{vT3}
v_lshrrev_b32 v{vT2}, 4, v{vT2}
v_mul_u32_u24 v{vT3}, {10240-16*EXP}, v{vT2}
v_add_u32 v{FA[3*q]}, v{vT}, v{vT3}
v_add_u32 v{vT2}, 1, v{vT2}
v_lshrrev_b32 v{vT2}, 2, v{vT2}
v_mul_u32_u24 v{vT2}, {L_OB7-71680}, v{vT2}
v_add_u32 v{FA[3*q+1]}, v{FA[3*q]}, v{vT2}""")
    s_ = ""
    for P in range(2):
        s_ += f"""s_lshl_b32 s{sT}, s{sHH}, 1
s_add_u32 s{sT}, s{sT}, s{sC2}
s_add_u32 s{sT}, s{sT}, {P}
s_and_b32 s{sT}, s{sT}, 3
s_lshl_b32 s{sT2}, s{sK1}, 2
s_add_u32 s{sT}, s{sT}, s{sT2}
s_lshl_b32 s{sT}, s{sT}, 3
s_add_u32 s{sT}, s{sT}, s{sW4}
s_mul_i32 s{sQ0+P}, s{sT}, 2560
"""
    fill.append(s_ + f"""s_mul_i32 s{sOB}, s3, 10240
s_cmp_eq_u32 s3, 7
s_cselect_b32 s{sOB}, {L_OB7}, s{sOB}
v_and_b32 v{vT}, 1, v{vG}
v_lshrrev_b32 v{vT2}, 1, v{vG}
v_xor_b32 v{vT2}, v{vT2}, v{vT}
v_mul_u32_u24 v{vT}, 2560, v{vT}
v_lshl_add_u32 v{vT}, v{vT2}, 4, v{vT}
v_mul_u32_u24 v{vT2}, 160, v{vM}
v_add3_u32 v{vOa}, v{vT}, v{vT2}, s{sOB}
v_mul_u32_u24 v{vEx}, {EXP}, v{vM}
v_lshl_add_u32 v{vEx}, v{vG}, 4, v{vEx}
v_add_u32 v{vEx}, s{sOB}, v{vEx}""")
    for j in range(NPRE):
        if j: a("s_waitcnt lgkmcnt(5)")
        for x in grp(j): a(x)
        if fill: a(fill.pop(0))
    for x in fill: a(x)
    a(f"""s_lshl_b32 s{sFl}, 0x55, s{sP}
s_cmp_ge_u32 s{sSL}, 24
s_cselect_b32 s{sT3}, 99, 4
s_waitcnt vmcnt(0)
s_barrier
s_cmp_lg_u32 s3, s{sT3}
s_cbranch_scc1 L_NOFLAG""")
    flag_store(a, vT, f"s{sFl}")
    a(f"""L_NOFLAG:
s_cmp_lg_u32 s3, 4
s_cbranch_scc1 L_NOEP
s_sub_u32 s70, s{sSL}, 24
s_lshl_b32 s70, 1, s70
s_cmp_ge_u32 s{sSL}, 24
s_cselect_b32 s{sFl}, s70, 0xffffff""")
    if EPOLL: a(f"""s_mov_b32 exec_hi, 0
s_mov_b32 exec_lo, s{sFl}
buffer_load_dwordx4 {vr(fO,4)}, v{vPo}, {R(R_WS)}, s{sSg} offen sc1
s_mov_b64 exec, -1""")
    a(f"s_lshl_b32 s70, s{sSL}, 2\ns_add_u32 s70, s70, s{sCP}\nv_lshlrev_b32 v{vT}, 2, v0")
    for q in range(4):
        a(f"v_cmp_eq_u32 vcc, s70, v{vT}\nv_cndmask_b32 v{fO+4+q}, 0, 1, vcc\nv_add_u32 v{vT}, 1, v{vT}")
    a("L_NOEP:")
    stamp(a, 5)
    a(f"""s_cmp_lg_u32 s3, 5
s_cbranch_scc1 L_GDONE
s_mov_b32 exec_lo, 0xff000000
s_mov_b32 exec_hi, 0xff000000
s_mov_b32 s71, 0
L_DPOLL:
v_and_b32 v{vPl}, v{vPl}, v{vPl+1}
v_and_b32 v{vPl+2}, v{vPl+2}, v{vPl+3}
v_and_b32 v{vPl}, v{vPl}, v{vPl+2}
v_cmp_ne_u32 vcc, 1, v{vPl}
s_cbranch_vccz L_GOK
s_sleep 8
{dpoll}
s_add_u32 s71, s71, 1
s_cmp_gt_u32 s71, {SPIN}
s_waitcnt vmcnt(0)
s_cbranch_scc0 L_DPOLL
L_GOK:
s_mov_b64 exec, -1""")
    for w in range(4):
        a(f"s_mov_b32 m0, {L_G + 5120*w}\ns_mov_b32 s70, {w*4*GP*16}")
        for j in range(5):
            if j == 4: a("s_add_u32 m0, m0, 4096")
            a(f"buffer_load_dwordx4 v{fO+8+j}, {R(R_WS)}, s70 offen offset:{1024*(j&3)} sc1 lds")
    a(f"""s_lshl_b32 s70, s{sK1}, 8
s_add_u32 s70, s70, {WS_GATE}
s_mov_b32 m0, {L_GT}
v_lshlrev_b32 v{vT}, 2, v0
buffer_load_dword v{vT}, {R(R_WS)}, s70 offen sc1 lds
L_GDONE:""")
    srd(a, R_A, S_OUT, 2621440)
    a(f"""v_lshlrev_b32 v{vOo}, 4, v0
v_mov_b32 v{vOo+1}, v{vOo}
v_xor_b32 v{vT}, 16, v{vOo}
v_add_u32 v{vOo+3}, {10240 + (192-160)*16 - 3072}, v{vT}
v_add_u32 v{vOo+4}, {10240 + (256-160)*16}, v{vT}
v_add_u32 v{vT}, {10240 + (128-160)*16 - 2048}, v{vT}
v_cmp_gt_u32 vcc, 32, v0
v_cndmask_b32 v{vOo+2}, v{vT}, v{vOo}, vcc""")
    for j in range(NPRE, 8):
        a("s_waitcnt lgkmcnt(5)")
        for x in grp(j): a(x)
    mpoll = f"buffer_load_dwordx4 {vr(fO,4)}, v{vPo}, {R(R_WS)}, s{sSg} offen sc1"
    a(f"""s_cmp_lg_u32 s3, 4
s_cbranch_scc1 L_GO
s_mov_b32 s71, 0
s_mov_b32 exec_hi, 0
s_mov_b32 exec_lo, s{sFl}
{'s_sleep '+str(PDL) if PDL else ''}
{'' if EPOLL else mpoll}
L_POLL:
s_waitcnt vmcnt(0)
v_or_b32 v{fO}, v{fO}, v{fO+4}
v_or_b32 v{fO+1}, v{fO+1}, v{fO+5}
v_or_b32 v{fO+2}, v{fO+2}, v{fO+6}
v_or_b32 v{fO+3}, v{fO+3}, v{fO+7}
v_and_b32 v{fO}, v{fO}, v{fO+1}
v_and_b32 v{fO+2}, v{fO+2}, v{fO+3}
v_and_b32 v{fO}, v{fO}, v{fO+2}
v_cmp_ne_u32 vcc, 1, v{fO}
s_cbranch_vccz L_POLLED
s_sleep {PSL}
L_POLL2:
{mpoll}
s_add_u32 s71, s71, 1
s_cmp_gt_u32 s71, {SPIN}
s_cbranch_scc0 L_POLL
s_mov_b32 exec_lo, 0xffffff
L_POLLED:
s_cmp_lg_u32 exec_lo, 0xffffff
s_mov_b32 exec_lo, 0xffffff
s_cbranch_scc1 L_POLL2
s_mov_b64 exec, -1
L_GO:
s_waitcnt vmcnt(0) lgkmcnt(0)
s_barrier""")
    stamp(a, 6)
    def odl(P):
        r = []
        for j in range(5):
            pre = f"s_add_u32 m0, s{sOB}, {5120*P}\n" if j == 0 else "s_add_u32 m0, m0, 4096\n" if j == 4 else ""
            r.append(pre + f"buffer_load_dwordx4 v{vOo+j}, {R(R_WS)}, s{sQ0+P} offen offset:{1024*(j&3)} sc1 lds")
        return r
    def odma(P, n=5):
        for x in odl(P)[:n]: a(x)
    a(f"""s_cmp_eq_u32 s{sHH}, 0
s_cbranch_scc0 L_Y""")
    odma(0); odma(1, NE)
    for i in range(0, 20, 2): a(f"v_pk_mov_b32 {vr(accB+i,2)}, 0, 0")
    a(f"s_branch L_NOY\nL_Y:\ns_setprio {YP1}\nds_read_b32 v{vGl}, v{vRow}")
    seq = [(uu, ct) for uu in range(4) for ct in range(5)]
    ring = [fO+4*k for k in range(5)] + [vPl, 16]
    def rd_(n): uu, ct = seq[n]; return f"ds_read_b128 {vr(ring[n%7],4)}, v{vGa} offset:{1280*uu+128*ct}"
    for n in range(7): a(rd_(n))
    if YORD == 1: odma(0)
    gmy = [f"v_min_f32 v{vGl}, 0x41f00000, v{vGl}", f"v_mul_f32 v{vGl}, 0x3fb8aa3b, v{vGl}", f"v_exp_f32 v{vGl}, v{vGl}"]
    for n in range(20):
        uu, ct = seq[n]
        a(f"s_waitcnt lgkmcnt({min(6, 19-n)})")
        a(f"{MF} {vr(accB+4*ct,4)}, {vr(ring[n%7],4)}, {vr(fT+4*uu,4)}, {'0' if uu == 0 else vr(accB+4*ct,4)}")
        if n + 7 < 20: a(rd_(n+7))
        elif gmy: a(gmy.pop(0))
    for i in range(0, 20, 2): a(f"v_pk_mul_f32 {vr(accB+i,2)}, {vr(accB+i,2)}, {vr(vGl,2)} op_sel_hi:[1,0]")
    if YP2: a(f's_setprio {YP2}')
    if YORD == 0: odma(0)
    odma(1, NE)
    a(f"s_setprio {YPRI}\nL_NOY:\nds_read_b32 v{vG1}, v{vG1+1}\nds_read_b32 v{vG1+2}, v{vG1+3}")
    FO = [fO, WR + 40]
    def oreads(P): return [f"ds_read_b128 {vr(FO[P]+4*q,4)}, v{vOa} offset:{5120*P+32*q}" for q in range(5)]
    Wbuf = {u: WR + 20*u for u in range(NREG)}
    Wbuf[7] = FW; Wbuf[8] = WR; Wbuf[9] = WR + 20
    def mm(u):
        B = vr(FO[u//5] + 4*(u % 5), 4)
        return [f"{MF} {vr(accB+4*ct,4)}, {vr(Wbuf[u]+4*ct,4)}, {B}, {vr(accB+4*ct,4)}" for ct in range(5)]
    if P2ST: stamp(a, 1)
    a(f"s_waitcnt vmcnt({NE})")
    if P2ST: stamp(a, 2); a("s_waitcnt lgkmcnt(0)")
    for x in oreads(0): a(x)
    for x in odl(1)[NE:]: a(x)
    a("s_waitcnt lgkmcnt(4)")
    for x in mm(0): a(x)
    a("s_waitcnt lgkmcnt(0)")
    interleave(a, mm(1), wreads(WR, vWs, 1), per=2)
    interleave(a, mm(2) + mm(3), wreads(WR+20, vWs, 2))
    a("s_waitcnt vmcnt(0) lgkmcnt(8)")
    if P2ST: stamp(a, 3)
    for x in oreads(1): a(x)
    for x in mm(4): a(x)
    a("s_waitcnt lgkmcnt(0)")
    gm = []
    for v_ in (vG1, vG1+2):
        gm += [f"v_min_f32 v{v_}, 0x41f00000, v{v_}", f"v_mul_f32 v{v_}, 0x3fb8aa3b, v{v_}", f"v_exp_f32 v{v_}, v{v_}", f"v_add_f32 v{v_}, 1.0, v{v_}", f"v_rcp_f32 v{v_}, v{v_}"]
    interleave(a, sum((mm(u) for u in range(5, 10)), []), gm)
    if P2ST: stamp(a, 4)
    for ct in range(5): a(f"ds_write_b128 v{vEx}, {vr(accB+4*ct,4)} offset:{64*ct}")
    a("s_waitcnt lgkmcnt(0)\ns_barrier")
    if P2ST: stamp(a, 5)
    def rdf(q):
        b = WR + 24*q
        a(f"""ds_read_b128 {vr(b,4)}, v{FA[3*q]}
ds_read_b128 {vr(b+4,4)}, v{FA[3*q]} offset:16
ds_read_b128 {vr(b+8,4)}, v{FA[3*q+1]} offset:40960
ds_read_b128 {vr(b+12,4)}, v{FA[3*q+1]} offset:40976""")
    def fin(q):
        b = WR + 24*q
        for i in range(0, 8, 2): a(f"v_pk_add_f32 {vr(b+i,2)}, {vr(b+i,2)}, {vr(b+8+i,2)}")
        for i in range(0, 8, 2): a(f"v_pk_mul_f32 {vr(b+i,2)}, {vr(b+i,2)}, {vr(vG1+2*q,2)} op_sel_hi:[1,0]")
        a(pk(b+8, b)); a(pk(b+10, b+4))
        a(f"buffer_store_dwordx4 {vr(b+8,4)}, v{vOut+q}, {R(R_A)}, 0 offen {OPOL}")
    rdf(0)
    a("s_cmp_ge_u32 s3, 2\ns_cbranch_scc1 L_F1")
    rdf(1)
    a("s_waitcnt lgkmcnt(4)")
    fin(0)
    a("s_waitcnt lgkmcnt(0)")
    fin(1)
    a("s_branch L_F2\nL_F1:\ns_waitcnt lgkmcnt(0)")
    fin(0)
    a("L_F2:")
    stamp_flush(a, vT)

a = main()
print("pads", a.pad(), "vgprs", hi_v[0], file=sys.stderr)
nv = (hi_v[0] + 7)//8*8
txt = f"""; gated mix: FNet (factored DFT) + dilated sliding-window attention.  Generated by work/gen11.py
; @launch grid=(256,1,1) block=(512,1,1) lds={LDS_BYTES}
.amdgcn_target "amdgcn-amd-amdhsa--gfx950"
.text
.globl {NAME}_kernel
.p2align 8
.type {NAME}_kernel,@function
{NAME}_kernel:
{a.text()}
.section .rodata,"a"
.p2align 6
.amdhsa_kernel {NAME}_kernel
  .amdhsa_next_free_vgpr {nv}
  .amdhsa_next_free_sgpr 100
  .amdhsa_accum_offset {nv}
  .amdhsa_group_segment_fixed_size 0
  .amdhsa_kernarg_size 96
  .amdhsa_user_sgpr_count 2
  .amdhsa_user_sgpr_kernarg_segment_ptr 1
  .amdhsa_system_sgpr_workgroup_id_x 1
.end_amdhsa_kernel
"""
open(OUT, 'w').write(txt)
```

```python
import sys, struct
from asmlib import *
NAME = "gated_mix__spectral_fnet__sliding_local_dilated__prompt"
def opt(name, default):
    for x in sys.argv[1:]:
        if x.startswith(f'--{name}='): return int(x.split('=')[1])
    return default
STAMP = '--stamp' in sys.argv
CLK = '--clk' in sys.argv
P2ST = opt('p2st', 0)
PF_W = opt('pfw', 1)
PF_XQ = opt('pfxq', 0)
KA = opt('ka', 8)
NPRE = opt('npre', 0)
AST = opt('ast', 0)
WLATE = opt('wlate', 1)
W8 = opt('w8', 2)
DWE = opt('dwe', 0)
HOLD = opt('hold', 0)
HX = opt('hx', 3000)
WS3 = opt('ws3', 1)
HPRI = opt('hpri', 0)
OPOL = ['', 'sc1', 'nt', 'sc0 sc1', 'sc1 nt'][opt('opol', 0)]
PSL = opt('psl', 6)
XPF = opt('xpf', 0)
NOPO = opt('nopo', 1)
P2D = opt('p2d', 0)
EM = opt('em', 0)
WSCH = opt('wsch', 2)
OWARM = opt('owarm', 0)
OW2 = opt('ow2', -1)
YORD = opt('yord', 0)
YPRI = opt('ypri', 1)
EPOLL = opt('epoll', 0)
PDL = opt('pdl', 0)
NE = opt('ne', 5)
YP1 = opt('yp1', 0)
YP2 = opt('yp2', 0)
PXD = opt('pxd', 0)
NS = opt('ns', 12)
CPF = opt('cpf', 1)
ROT = opt('rot', 1)
ROTP = opt('rotp', 0)
PRE = opt('pre', 0)
NPF = opt('npf', 4)
PO0 = opt('po0', 3)
POM = opt('pom', 3)
N1 = opt('n1', 10)
P20 = opt('p20', 0)
P2M = opt('p2m', 1)
TRACE = opt('trace', 0)
NCE = opt('nce', 0)
OUT = [x for x in sys.argv[1:] if x.endswith('.s')]
OUT = OUT[0] if OUT else f"cdna_kernels/{NAME}.s"

WS_G = 0x280000
GP = 336
WS_GATE = 0x520000
WS_FLAG = 0x530000
WS_END = 0x540000
WS_STAMP = 0x800000
OOB = 0x80000000
SPIN = 200000
MF = 'v_mfma_f32_16x16x32_bf16'
LDS_BYTES = 159744

S_X, S_SRE, S_SIM, S_HRE, S_HIM, S_BX, S_WQKV, S_WO = 4, 6, 8, 10, 12, 14, 16, 18
S_GATE, S_OUT, S_DBG, S_WS = 20, 22, 24, 26
R_A, R_B, R_WS, R_C, R_D = 28, 32, 36, 40, 44
sP, sCP, sSL, sW4 = 48, 49, 50, 51
sC2, sK1, sKs, sRot = 52, 53, 54, 55
S_ST = 84

def srd(a, r, p, n):
    a(f"s_mov_b32 s{r}, s{p}\ns_mov_b32 s{r+1}, s{p+1}\ns_mov_b32 s{r+2}, {n}\ns_mov_b32 s{r+3}, 0x20000")
def R(r): return f"s[{r}:{r+3}]"
def hold(a, p):
    if HOLD != p: return
    l = newlab('L_HOLD')
    a(f"{l}:\ns_memrealtime s[82:83]\ns_waitcnt lgkmcnt(0)\ns_sub_u32 s82, s82, s80\ns_cmp_lt_u32 s82, {HX}\ns_cbranch_scc1 {l}")
def astamp(a, i):
    if AST: a(f"{'s_memtime' if CLK else 's_memrealtime'} s[{S_ST+2*i}:{S_ST+2*i+1}]")
def stamp(a, i):
    if AST and i in (1, 2, 3, 5, 6): return
    if STAMP: a(f"{'s_memtime' if CLK else 's_memrealtime'} s[{S_ST+2*i}:{S_ST+2*i+1}]")
def stamp_flush(a, vtmp):
    if not STAMP: return
    a(f"s_waitcnt vmcnt(0) lgkmcnt(0)")
    stamp(a, 7)
    a(f"""s_mov_b32 s{R_D}, s{S_WS}
s_mov_b32 s{R_D+1}, s{S_WS+1}
s_mov_b32 s{R_D+2}, 0x1000000
s_mov_b32 s{R_D+3}, 0x20000
s_lshl_b32 s70, s2, 3
s_add_u32 s70, s70, s3
s_lshl_b32 s70, s70, 5
s_add_u32 s70, s70, {WS_STAMP}
s_waitcnt lgkmcnt(0)
v_mov_b32 v{vtmp}, 0""")
    for i in range(8):
        a(f"v_mov_b32 v{vtmp+1}, s{S_ST+2*i}")
        a(f"buffer_store_dword v{vtmp+1}, v{vtmp}, {R(R_D)}, s70 offen offset:{4*i}")
    a("s_waitcnt vmcnt(0)")
def interleave(a, mfmas, fillers, start=0, per=1):
    f = list(fillers)
    for i, m in enumerate(mfmas):
        a(m)
        if i >= start:
            for _ in range(per):
                if f: a(f.pop(0))
    for x in f: a(x)
def pkl(d, s): return [f"v_cvt_pk_bf16_f32 v{d}, v{s}, v{s+1}", f"v_cvt_pk_bf16_f32 v{d+1}, v{s+2}, v{s+3}"]
def pk(d, s): return "\n".join(pkl(d, s))
def f32(x): return f"{struct.unpack('<I', struct.pack('<f', x))[0]:#x}"
hi_v = [0]
_lab = [0]
def newlab(p):
    _lab[0] += 1
    return f"{p}{_lab[0]}"

NREG = 7
def pos_of(hh, j): return hh*NREG + j if j < NREG else 14 + hh*(10-NREG) + (j-NREG)
def inv_pos(pos):
    for hh in range(2):
        for j in range(10):
            if pos_of(hh, j) == pos: return hh, j
L_OB7 = 102400
L_G = 112640
L_GT = 133120
L_Y = 133376
EXP = 336
L_OS = 135168
L_XC = 102400
QSLOT = 45056
def qslot(c): return ((c + 2) % 3) * QSLOT
DSLOT = 53248; L_U = 102400

vWoL = 72
vGoL = 77

def wo_setup(a, vT, vT2, vT3, vWo=vWoL):
    assert all((q*6554) >> 16 == q//10 for q in range(320))
    for j in range(5):
        a(f"""v_add_u32 v{vT}, {64*j}, v0
v_mul_u32_u24 v{vT2}, 6554, v{vT}
v_lshrrev_b32 v{vT2}, 16, v{vT2}
v_mul_u32_u24 v{vT3}, 10, v{vT2}
v_sub_u32 v{vT}, v{vT}, v{vT3}
v_and_b32 v{vT3}, 3, v{vT2}
v_and_b32 v{vWo+j}, 4, v{vT2}
v_mul_u32_u24 v{vWo+j}, 20, v{vWo+j}
v_and_b32 v{vT2}, 24, v{vT2}
v_lshrrev_b32 v{vT2}, 1, v{vT2}
v_add3_u32 v{vT3}, v{vT3}, v{vT2}, v{vWo+j}
v_mul_u32_u24 v{vT3}, 1280, v{vT3}
v_lshl_add_u32 v{vWo+j}, v{vT}, 4, v{vT3}""")
        if j & 3: a(f"v_subrev_u32 v{vWo+j}, {1024*(j&3)}, v{vWo+j}")

def wo_dma(a, r, vWo=vWoL):
    sT, sT2 = 70, 71
    tab = [inv_pos(4*r + w) for w in range(4)]
    code = [(2*hh + j//5)*16 + j % 5 for hh, j in tab]
    packed = sum(c << (8*w) for w, c in enumerate(code))
    a(f"""s_lshl_b32 s{sT}, s{sW4}, 3
s_lshr_b32 s{sT}, {packed:#x}, s{sT}
s_and_b32 s{sT2}, s{sT}, 15
s_mul_i32 s{sT2}, s{sT2}, {16*1280}
s_lshr_b32 s{sT}, s{sT}, 4
s_add_u32 s{sT}, s{sT}, s{sC2}
s_and_b32 s{sT}, s{sT}, 3
s_mul_i32 s{sT}, s{sT}, {160*1280}
s_add_u32 s{sT2}, s{sT2}, s{sT}
s_mul_i32 s{sT}, s{sC2}, 160
s_add_u32 s{sT2}, s{sT2}, s{sT}
s_mul_i32 s{sT}, s{sW4}, 5120
s_add_u32 m0, s{sT}, {r*20480}""")
    for j in range(5):
        if j == 4: a("s_add_u32 m0, m0, 4096")
        a(f"buffer_load_dwordx4 v{vWo+j}, {R(R_C)}, s{sT2} offen offset:{1024*(j&3)} lds")

def g_setup(a, vT, vT2, vT3):
    sT, sT2, sT3, sB = 70, 71, 72, 73
    assert all((q*1639) >> 16 == q//40 for q in range(320))
    a(f"""s_mul_i32 s{sT}, s{sC2}, 40
s_sub_u32 s{sT2}, 320, s{sT}
s_cmp_lt_u32 s{sC2}, 4
s_cselect_b32 s{sT}, s{sT}, s{sT2}
s_cselect_b32 s{sT2}, 16, -16
s_cselect_b32 s{sB}, 0, -16
s_mul_i32 s{sT3}, s{sKs}, {16*GP}
s_add_u32 s{sT}, s{sT}, s{sT3}
s_lshl_b32 s{sT}, s{sT}, 4
s_add_u32 s{sT}, s{sT}, {WS_G}""")
    for j in range(5):
        a(f"""v_add_u32 v{vT}, {64*j}, v0
v_mul_u32_u24 v{vT2}, 1639, v{vT}
v_lshrrev_b32 v{vT2}, 16, v{vT2}
v_mul_u32_u24 v{vT3}, 40, v{vT2}
v_sub_u32 v{vT}, v{vT}, v{vT3}
v_mul_i32_i24 v{vT}, s{sT2}, v{vT}
v_and_b32 v{vT3}, 1, v{vT2}
v_mul_i32_i24 v{vT3}, s{sB}, v{vT3}
v_mul_u32_u24 v{vT2}, {168*16}, v{vT2}
v_add3_u32 v{vT}, v{vT}, v{vT2}, v{vT3}
v_add_u32 v{vGoL+j}, s{sT}, v{vT}""")
        if j & 3: a(f"v_subrev_u32 v{vGoL+j}, {1024*(j&3)}, v{vGoL+j}")

TW = 232
def tw_gen(a, vT, vT2, vT3, vT4, part=None):
    if part in (None, 0): a(f"""s_lshl_b32 s70, s{sW4}, 9
s_add_u32 s70, s70, s{sK1}
v_and_b32 v{vT}, 15, v0
v_lshlrev_b32 v{vT}, 5, v{vT}
v_add_u32 v{vT}, s70, v{vT}
v_and_b32 v{vT2}, 48, v0
v_mul_u32_u24 v{vT2}, v{vT2}, v{vT}
s_cmp_lt_u32 s{sC2}, 4
s_mov_b32 s73, {f32(1/2048)}
s_cselect_b32 s73, s73, {f32(-1/2048)}""")
    for n in (range(16) if part is None else range(6) if part == 0 else range(6, 16)):
        uu = ((n >> 3) << 1) | (n & 1); w = (n >> 1) & 3
        a(f"""v_and_b32 v{vT3}, 0x7ff, v{vT2}
v_cvt_f32_u32 v{vT3}, v{vT3}
v_mul_f32 v{vT3}, s73, v{vT3}
v_cos_f32 v{vT4}, v{vT3}
v_sin_f32 v{vT3}, v{vT3}
v_add_u32 v{vT2}, v{vT2}, v{vT}
v_cvt_pk_bf16_f32 v{TW+4*uu+w}, v{vT4}, v{vT3}""")

def clr_read(a):
    a(f"s_load_dwordx8 s[60:67], s[{S_DBG}:{S_DBG+1}], 0")

def clr_check(a, vT):
    ok, lp = newlab('L_COK'), newlab('L_CLP')
    b = 60
    a(f"""s_waitcnt lgkmcnt(0)
s_and_b64 s[{b}:{b+1}], s[{b}:{b+1}], s[{b+2}:{b+3}]
s_and_b64 s[{b+4}:{b+5}], s[{b+4}:{b+5}], s[{b+6}:{b+7}]
s_and_b64 s[{b}:{b+1}], s[{b}:{b+1}], s[{b+4}:{b+5}]
s_and_b32 s{b}, s{b}, s{b+1}
s_cbranch_scc1 {ok}
s_mov_b32 s71, 0
v_lshlrev_b32 v{vT}, 2, v0
s_mov_b64 exec, 0xff
{lp}:
s_sleep 16
buffer_load_dword v{vT+1}, v{vT}, {R(R_D)}, 0 offen sc1
s_waitcnt vmcnt(0)
v_cmp_eq_u32 vcc, 0, v{vT+1}
s_cbranch_vccz {lp}x
s_add_u32 s71, s71, 1
s_cmp_gt_u32 s71, {SPIN}
s_cbranch_scc0 {lp}
{lp}x:
s_mov_b64 exec, -1
{ok}:""")

def flag_store(a, vT, mask):
    a(f"""s_lshl_b32 s70, s{sP}, 5
s_add_u32 s70, s70, s{sSL}
s_lshl_b32 s70, s70, 7
s_lshl_b32 s71, s{sCP}, 2
s_add_u32 s70, s70, s71
s_add_u32 s70, s70, {WS_FLAG}
v_lshlrev_b32 v{vT}, 13, v0
v_mov_b32 v{vT+1}, 1
s_mov_b32 exec_lo, {mask}
s_mov_b32 exec_hi, 0
buffer_store_dword v{vT+1}, v{vT}, {R(R_WS)}, s70 offen sc1
s_mov_b64 exec, -1""")

def main():
    a = Asm()
    if HOLD: a("s_memrealtime s[80:81]")
    a(f"""s_cmp_ge_u32 s2, 256
s_cbranch_scc1 L_END
s_load_dwordx16 s[4:19], s[0:1], 0
s_load_dwordx8 s[20:27], s[0:1], 64""")
    if CPF:
        a(f"""s_getpc_b64 s[28:29]
L_PC:
v_lshlrev_b32 v255, 7, v0
v_cmp_gt_u32 vcc, L_END-L_PC, v255
s_and_saveexec_b64 s[30:31], vcc
s_cbranch_execz L_NOCPF
global_load_dword v255, v255, s[28:29]
L_NOCPF:
s_mov_b64 exec, -1""")
    if STAMP:
        for i in range(8): a(f"s_mov_b64 s[{S_ST+2*i}:{S_ST+2*i+1}], 0")
    stamp(a, 0)
    hold(a, 5)
    a(f"""v_lshrrev_b32 v1, 6, v0
v_and_b32 v0, 63, v0
v_readfirstlane_b32 s3, v1
s_and_b32 s{sP}, s2, 1
s_lshr_b32 s{sCP}, s2, 1
s_and_b32 s{sCP}, s{sCP}, 3
s_lshr_b32 s{sSL}, s2, 3
s_and_b32 s{sW4}, s3, 3
s_and_b32 s{sC2}, s{sSL}, 7
s_lshr_b32 s70, s{sSL}, 4
s_lshl_b32 s70, s70, 1
s_lshl_b32 s{sK1}, s{sCP}, 2
s_add_u32 s{sK1}, s{sK1}, s70
s_add_u32 s{sK1}, s{sK1}, s{sP}
s_sub_u32 s70, 32, s{sK1}
s_cmp_eq_u32 s{sK1}, 0
s_cselect_b32 s70, 16, s70
s_bitcmp1_b32 s{sSL}, 3
s_cselect_b32 s{sK1}, s70, s{sK1}
s_sub_u32 s{sKs}, 32, s{sK1}
s_and_b32 s{sKs}, s{sKs}, 31
s_cmp_lt_u32 s{sC2}, 4
s_cselect_b32 s{sKs}, s{sK1}, s{sKs}
s_mul_i32 s{sRot}, s{sP}, {ROTP}
s_add_u32 s{sRot}, s{sRot}, s{sCP}
s_mul_i32 s{sRot}, s{sRot}, {ROT}
s_sub_u32 s70, s{sRot}, 5
s_min_u32 s{sRot}, s{sRot}, s70
s_cmp_ge_u32 s{sSL}, 24
s_cbranch_scc1 L_DFT
s_cmp_ge_u32 s3, 4
s_cbranch_scc0 L_QCOMP""")
    qkv_loader(a)
    a.label('L_DFT')
    a("s_cmp_ge_u32 s3, 4\ns_cbranch_scc0 L_DCOMP")
    dft_loader(a)
    a.label('L_DCOMP'); dft_compute(a)
    a.label('L_QCOMP'); qkv_compute(a)
    attention(a)
    phase2(a)
    a.label('L_END')
    a('s_endpgm')
    return a

sHG, sI, sJ0 = 56, 57, 58
qM, qG, qT, qT2, qT3 = 2, 3, 4, 5, 6
qOC, qOD = 7, 8
qXb0, qXb1, qWb, qDb, qXa0, qXa1, qWa, qDa = range(10, 18)
cI = 20; cOne = 24; cBo = 28; cBp = 32; Qf = 36; Vp = 60
ACC = 76; F0 = 172; F1 = 212
def A(rt, t): return ACC + 16*rt + 4*t

def qkv_scalars(a):
    a(f"""s_lshl_b32 s{sHG}, s{sCP}, 1
s_and_b32 s70, s{sSL}, 1
s_add_u32 s{sHG}, s{sHG}, s70
s_lshr_b32 s{sI}, s{sSL}, 1
s_mul_i32 s{sJ0}, s{sI}, 85""")

def attn_consts(a):
    vT, vT2, vT3 = qT, qT2, qT3
    a(f"""v_and_b32 v{qM}, 15, v0
v_lshrrev_b32 v{qG}, 4, v0
v_lshlrev_b32 v{vT}, 2, v{qG}
v_sub_u32 v{vT}, v{qM}, v{vT}
v_mov_b32 v{vT3}, 0xff800000
v_mov_b32 v{cI}, 0
v_mov_b32 v{cI+1}, 0""")
    for r in range(4):
        a(f"""v_subrev_u32 v{vT2}, {r}, v{vT}
v_cmp_gt_u32 vcc, 8, v{vT2}
v_cndmask_b32 v{cBo+r}, v{vT3}, v{cI}, vcc
v_cmp_gt_i32 vcc, -8, v{vT2}
v_cndmask_b32 v{cBp+r}, v{vT3}, v{cI}, vcc
v_mov_b32 v{cOne+r}, 0x3f803f80""")
    for pr in range(2):
        a(f"""v_mov_b32 v{vT2}, 0x3f80
v_cmp_eq_u32 vcc, {2*pr}, v{vT}
v_cndmask_b32 v{cI+2+pr}, 0, v{vT2}, vcc
v_mov_b32 v{vT2}, 0x3f800000
v_cmp_eq_u32 vcc, {2*pr+1}, v{vT}
v_cndmask_b32 v{cI+2+pr}, v{cI+2+pr}, v{vT2}, vcc""")
    for u in range(6): a(f"v_pk_mov_b32 {vr(Qf+4*u+2,2)}, 0, 0")
    a(f"""v_pk_mov_b32 {vr(Vp,2)}, 0, 0
v_pk_mov_b32 {vr(74,2)}, 0, 0
s_mul_i32 s70, s{sW4}, 40
s_add_u32 s70, s70, {L_OS}
v_mul_u32_u24 v{vT3}, 176, v{qM}
v_add_u32 v{vT3}, s70, v{vT3}
v_lshl_add_u32 v{qOC}, v{qG}, 3, v{vT3}
v_add_u32 v{qOD}, 32, v{vT3}""")

vOS1, vOS2 = 252, 253
def ost_setup(a):
    sN, sT, sT2 = 70, 71, 72
    a(f"""v_mul_u32_u24 v{vOS1}, 26, v0
v_lshrrev_b32 v{vOS1}, 8, v{vOS1}
v_mul_u32_u24 v{vOS1}, {16*176-160}, v{vOS1}
v_lshl_add_u32 v{vOS1}, v0, 4, v{vOS1}
s_mul_i32 s{sT}, s3, {2*176}
s_add_u32 s{sT}, s{sT}, {L_OS}
v_add_u32 v{vOS1}, s{sT}, v{vOS1}
v_lshlrev_b32 v{vOS2}, 4, v0""")
    for q in range(2):
        a(f"""s_lshl_b32 s{sN}, s3, 1
s_add_u32 s{sN}, s{sN}, {q}
s_add_u32 s{sT}, s{sN}, s{sJ0}
s_lshl_b32 s{sT}, s{sT}, 1
s_add_u32 s{sT}, s{sT}, s{sP}
s_and_b32 s{sT2}, s{sT}, 31
s_lshl_b32 s{sT2}, s{sT2}, 3
s_add_u32 s{sT2}, s{sT2}, s{sHG}
s_lshl_b32 s{sT2}, s{sT2}, 6
s_lshr_b32 s{sT}, s{sT}, 5
s_add_u32 s{sT}, s{sT}, s{sT2}
s_mul_i32 s{74+q}, s{sT}, 160
s_cmp_eq_u32 s{sI}, 0
s_cselect_b32 s{sT}, 0, 7
s_cmp_ge_u32 s{sN}, s{sT}
s_cselect_b32 s{76+2*q}, -1, 0xfffffc00
s_cmp_eq_u32 s{sI}, 11
s_cselect_b32 s{sT}, 9, 12
s_cmp_lt_u32 s{sN}, s{sT}
s_mov_b32 s{sT}, 0x0fffffff
s_cselect_b32 s{77+2*q}, s{sT}, 0x3ffff""")

def owarm(a):
    a(f"""s_mov_b64 exec, s[76:77]
buffer_store_dwordx4 {vr(cOne,4)}, v{vOS2}, {R(R_WS)}, s74 offen sc1
s_mov_b64 exec, s[78:79]
buffer_store_dwordx4 {vr(cOne,4)}, v{vOS2}, {R(R_WS)}, s75 offen sc1
s_mov_b64 exec, -1""")

def qkv_loader(a):
    sXo, sWo, sWo2, sWr, sC, sM0X, sM0W, sT, sX0, sW0, sKc = range(59, 70)
    vT, vT2, vT3, vM = 10, 11, 12, 13
    vXo = 82; vWo = 85
    CH = 64*3840
    qkv_scalars(a)
    offs = f"""s_lshl_b32 s{sXo}, s{sKc}, 7
s_add_u32 s{sXo}, s{sXo}, s{sX0}
s_mul_i32 s{sWo}, s{sKc}, {CH}
s_add_u32 s{sWo}, s{sWo}, s{sW0}
s_add_u32 s{sWo2}, s{sWo}, {32*3840}"""
    a(f"""s_lshl_b32 s{sX0}, s{sJ0}, 1
s_add_u32 s{sX0}, s{sX0}, s{sP}
s_mul_i32 s{sX0}, s{sX0}, 1280
s_mul_i32 s{sW0}, s{sHG}, 160
s_lshr_b32 s{sT}, s{sW4}, 1
s_lshl_b32 s{sT}, s{sT}, 2
s_and_b32 s70, s{sW4}, 1
s_add_u32 s{sT}, s{sT}, s70
s_mul_i32 s{sT}, s{sT}, {4*3840}
s_add_u32 s{sW0}, s{sW0}, s{sT}
s_mov_b32 s{sKc}, s{sRot}
{offs}
s_mul_i32 s{sM0X}, s{sW4}, 3072
s_lshl_b32 s{sM0W}, s{sW4}, 12
s_add_u32 s{sM0W}, s{sM0W}, 12288
s_mul_i32 s{sT}, s{sW4}, 24
v_lshrrev_b32 v{vT}, 3, v0
v_add_u32 v{vT}, s{sT}, v{vT}
v_and_b32 v{vT2}, 7, v0""")
    for j in range(3):
        a(f"""v_add_u32 v{vT3}, {8*j}, v{vT}
v_mul_u32_u24 v{vXo+j}, 2560, v{vT3}
v_bfe_u32 v{vT3}, v{vT3}, 1, 3
v_xor_b32 v{vT3}, v{vT3}, v{vT2}
v_lshl_add_u32 v{vXo+j}, v{vT3}, 4, v{vXo+j}""")
        if j: a(f"v_subrev_u32 v{vXo+j}, {1024*j}, v{vXo+j}")
    assert all((q*2185) >> 16 == q//30 for q in range(512))
    assert all((q*26) >> 8 == q//10 for q in range(64))
    for j in range(4):
        a(f"""v_add_u32 v{vT}, {64*j}, v0
v_mul_u32_u24 v{vT2}, 2185, v{vT}
v_lshrrev_b32 v{vT2}, 16, v{vT2}
v_mul_u32_u24 v{vT3}, 30, v{vT2}
v_sub_u32 v{vT}, v{vT}, v{vT3}
v_mul_u32_u24 v{vT3}, 26, v{vT}
v_lshrrev_b32 v{vT3}, 8, v{vT3}
v_mul_u32_u24 v{vT3}, 1120, v{vT3}
v_lshl_add_u32 v{vT}, v{vT}, 4, v{vT3}
v_and_b32 v{vM}, 4, v{vT2}
v_add_u32 v{vT3}, v{vT2}, v{vM}
v_mul_u32_u24 v{vT3}, 3840, v{vT3}
v_add_u32 v{vWo+j}, v{vT}, v{vT3}""")
        if j: a(f"v_subrev_u32 v{vWo+j}, {1024*j}, v{vWo+j}")
    a(f"""v_mov_b32 v{vT}, {OOB}
v_cmp_gt_u32 vcc, 48, v0
v_cndmask_b32 v{vWo+3}, v{vT}, v{vWo+3}, vcc
s_waitcnt lgkmcnt(0)""")
    srd(a, R_A, S_X, 2621440); srd(a, R_B, S_WQKV, 2457600)
    if EM: a(f"s_cmp_ge_u32 s{sSL}, 20\ns_cselect_b32 s{R_A+2}, 0, s{R_A+2}\ns_cselect_b32 s{R_B+2}, 0, s{R_B+2}")
    def dma(lo, hi):
        for i in range(lo, hi):
            if i < 3:
                if i == 0 or i == lo: a(f"s_add_u32 m0, s{sWr}, s{sM0X}")
                a(f"buffer_load_dwordx4 v{vXo+i}, {R(R_A)}, s{sXo} offen offset:{1024*i} lds")
            else:
                j = (i-3) & 3; st = (i-3) >> 2
                if j == 0 or i == lo:
                    a(f"s_add_u32 m0, s{sWr}, s{sM0W}")
                    if st: a("s_add_u32 m0, m0, 16384")
                a(f"buffer_load_dwordx4 v{vWo+j}, {R(R_B)}, s{sWo2 if st else sWo} offen offset:{1024*j} lds")
        if hi == 11 and lo < 11:
            a(f"""s_add_u32 s70, s{sKc}, 5
s_sub_u32 s71, s{sKc}, 4
s_cmp_eq_u32 s{sKc}, 9
s_cselect_b32 s71, 0, s71
s_cmp_lt_u32 s{sKc}, 5
s_cselect_b32 s{sKc}, s70, s71
{offs}
s_add_u32 s{sWr}, s{sWr}, {QSLOT}
s_cmp_eq_u32 s{sWr}, {3*QSLOT}
s_cselect_b32 s{sWr}, 0, s{sWr}""")
    a(f"s_mov_b32 s{sWr}, {qslot(0)}")
    dma(0, 7)
    srd(a, R_WS, S_WS, WS_END); srd(a, R_C, S_WO, 819200); srd(a, R_D, S_DBG, 256)
    ost_setup(a)
    wo_setup(a, vT, vT2, vT3)
    g_setup(a, vT, vT2, vT3)
    dma(7, 11)
    stamp(a, 1)
    _tc = [0]
    def tr():
        _tc[0] += 1
        if TRACE == 2 and _tc[0] % 3: return
        if TRACE: a(f"s_memtime s[82:83]\ns_waitcnt lgkmcnt(0)\ns_mov_b32 m0, s80\nv_writelane_b32 v60, s82, m0\ns_add_u32 s80, s80, 1")
    if TRACE: a("s_mov_b32 s80, 0\nv_mov_b32 v60, 0")
    a(f"s_mov_b32 s{sC}, 0\nQL_LOOP:")
    dma(0, KA)
    tr(); a(f"s_waitcnt vmcnt({KA})"); tr(); a("s_barrier"); tr()
    dma(KA, 11)
    a(f"s_add_u32 s{sC}, s{sC}, 1\ns_cmp_lt_u32 s{sC}, 9\ns_cbranch_scc1 QL_LOOP")
    a(f"s_lshl_b32 s70, s{sW4}, 12\ns_add_u32 s70, s70, {L_OS}\nv_lshlrev_b32 v14, 4, v0\nv_add_u32 v14, s70, v14")
    for uu in range(4): a(f"ds_read_b128 {vr(TW+4*uu,4)}, v14 offset:{1024*uu}")
    clr_read(a)
    nq = 0
    if NPF < 4:
        nq = 1
        a(f"""s_mul_i32 s70, s{sW4}, 24
s_add_u32 s70, s70, s{sSL}
s_and_b32 s71, s70, 31
s_lshl_b32 s71, s71, 2
s_lshr_b32 s72, s70, 5
s_add_u32 s72, s72, {NPF}
s_add_u32 s71, s71, s72
s_mul_i32 s71, s71, 6400
s_cmp_lt_u32 s72, 4
s_cselect_b32 s71, s71, 0x1000000
v_lshlrev_b32 v15, 7, v0
s_mov_b32 exec_hi, 0x3ffff
buffer_load_dword v15, v15, {R(R_C)}, s71 offen
s_mov_b32 exec_hi, -1""")
    tr(); a(f"s_waitcnt vmcnt({4+nq})"); tr(); a("s_barrier"); tr()
    stamp(a, 2)
    if W8 == 2: wo_dma(a, 0)
    tr(); a(f"s_waitcnt vmcnt({nq + (5 if W8 == 2 else 0)})"); tr(); a("s_barrier"); tr()
    if W8: wo_dma(a, W8-1)
    tr(); tr(); a("s_waitcnt lgkmcnt(0)\ns_barrier"); tr()
    astamp(a, 1)
    for r in range(W8, 5 - WLATE): wo_dma(a, r)
    clr_check(a, 10)
    if TRACE:
        a(f"""v_lshlrev_b32 v61, 2, v0
s_lshl_b32 s80, s2, 3
s_add_u32 s80, s80, s3
s_lshl_b32 s80, s80, 8
s_add_u32 s80, s80, 0x900000
s_mov_b32 s{R_A}, s{S_WS}
s_mov_b32 s{R_A+1}, s{S_WS+1}
s_mov_b32 s{R_A+2}, 0x1000000
buffer_store_dword v60, v61, {R(R_A)}, s80 offen""")
    a("s_branch L_OST")

def qkv_compute(a):
    sRd, sC, sT, sT2 = range(59, 63)
    vT, vT2, vT3 = qT, qT2, qT3
    F = [F0, F1]
    hi_v[0] = max(hi_v[0], 256)
    qkv_scalars(a)
    vP2, vPO, vPD = 18, 19, 254
    sPW, sPO, sIt2, sItO = 63, 64, 65, 66
    assert all((q*7282) >> 16 == q//9 for q in range(5900))
    assert all((q*11) >> 5 == q//3 for q in range(9))
    def wline(dst, first, n, half=False):
        a(f"""s_mul_i32 s{sT}, s{sW4}, {12 if half else 24}
s_add_u32 s{sT}, s{sT}, s{sI if half else sSL}
s_mul_i32 s{sT}, s{sT}, {n}
s_add_u32 s{sT}, s{sT}, {first}
v_add_u32 v{vT}, s{sT}, v0
v_mul_u32_u24 v{vT2}, 7282, v{vT}
v_lshrrev_b32 v{vT2}, 16, v{vT2}
v_mul_u32_u24 v{vT3}, 9, v{vT2}
v_sub_u32 v{vT}, v{vT}, v{vT3}
v_mul_u32_u24 v{vT3}, 11, v{vT}
v_lshrrev_b32 v{vT3}, 5, v{vT3}
v_mul_u32_u24 v{vT3}, {1280-384}, v{vT3}
v_lshl_add_u32 v{vT}, v{vT}, 7, v{vT3}
v_and_b32 v{vT3}, 63, v{vT2}
v_lshrrev_b32 v{dst}, 7, v{vT2}
v_add_u32 v{dst}, s{sRot}, v{dst}
v_subrev_u32 v{F0}, 5, v{dst}
v_min_u32 v{dst}, v{dst}, v{F0}
v_lshl_add_u32 v{vT3}, v{dst}, 6, v{vT3}
v_and_b32 v{vT2}, 64, v{vT2}
v_mul_u32_u24 v{vT2}, 5, v{vT2}
v_add_u32 v{vT2}, v{vT2}, v{vT3}
v_mul_u32_u24 v{vT2}, 3840, v{vT2}
v_add_u32 v{vT}, v{vT}, v{vT2}
v_mov_b32 v{vT2}, {OOB}
v_cmp_gt_u32 vcc, {n}, v0
v_cndmask_b32 v{dst}, v{vT2}, v{vT}, vcc""")
    if NS >= 0:
        NF = (120 - NS + 1)//2
        a(f"""s_lshr_b32 s72, s{sHG}, 2
s_and_b32 s73, s{sHG}, 1
s_cmp_eq_u32 s72, s73
s_cselect_b32 s72, {NS}, {NF}
s_cselect_b32 s73, 0, {48*NS}
s_cselect_b32 s74, 0, {NF}""")
        wline(vP2, 's73', 's72', True)
    else: wline(vP2, 0, 6*N1)
    a(f"""s_mul_i32 s{sPW}, s{sCP}, 320
s_and_b32 s{sPW}, s{sPW}, 0xffffff80
s_waitcnt lgkmcnt(0)""")
    srd(a, R_B, S_WQKV, 2457600)
    a(f"buffer_load_dword v{vPD}, v{vP2}, {R(R_B)}, s{sPW} offen")
    if NS >= 0:
        wline(vP2, 48*NS + 48*NF, 's74', True)
        a(f"buffer_load_dword v{vPD}, v{vP2}, {R(R_B)}, s{sPW} offen")
    if XPF:
        srd(a, R_A, S_X, 2621440)
        a(f"""s_and_b32 s{sT2}, s{sSL}, 1
s_mul_i32 s{sT2}, s{sT2}, 48
s_add_u32 s{sT2}, s{sT2}, s{sJ0}
s_lshl_b32 s{sT2}, s{sT2}, 1
s_add_u32 s{sT2}, s{sT2}, s{sP}
s_mul_i32 s{sT2}, s{sT2}, 1280
s_lshl_b32 s70, s{sW4}, 7
s_add_u32 s{sT2}, s{sT2}, s70
v_mul_u32_u24 v{vT3}, 2560, v0
v_mov_b32 v{vT2}, {OOB}
v_cmp_gt_u32 vcc, 48, v0
v_cndmask_b32 v{vT3}, v{vT2}, v{vT3}, vcc
buffer_load_dword v{vPD}, v{vT3}, {R(R_A)}, s{sT2} offen
buffer_load_dword v{vPD}, v{vT3}, {R(R_A)}, s{sT2} offen offset:512
buffer_load_dword v{vPD}, v{vT3}, {R(R_A)}, s{sT2} offen offset:768""")
    if N1 < 10: wline(vP2, 576*N1, 6*(10-N1))
    srd(a, R_C, S_WO, 819200)
    a(f"""s_lshl_b32 s{sPO}, s{sSL}, 2
s_add_u32 s{sPO}, s{sPO}, s{sW4}
s_mul_i32 s{sPO}, s{sPO}, 6400
v_lshlrev_b32 v{vPO}, 7, v0
v_mov_b32 v{vT2}, {OOB}
v_cmp_gt_u32 vcc, 50, v0
v_cndmask_b32 v{vPO}, v{vT2}, v{vPO}, vcc
s_and_b32 s{sItO}, s{sSL}, {POM}
s_add_u32 s{sItO}, s{sItO}, {PO0 + 50*NOPO}
s_lshr_b32 s{sIt2}, s{sSL}, 1
s_and_b32 s{sIt2}, s{sIt2}, {P2M}
s_add_u32 s{sIt2}, s{sIt2}, {P20}""")
    srd(a, R_WS, S_WS, WS_END); srd(a, R_D, S_DBG, 256)
    for i in range(0, 96, 2): a(f"v_pk_mov_b32 {vr(ACC+i,2)}, 0, 0")
    attn_consts(a)
    tw_gen(a, vT, vT2, vT3, F0)
    a(f"s_lshl_b32 s70, s{sW4}, 12\ns_add_u32 s70, s70, {L_OS}\nv_lshlrev_b32 v{vT}, 4, v0\nv_add_u32 v{vT}, s70, v{vT}")
    for uu in range(4): a(f"ds_write_b128 v{vT}, {vr(TW+4*uu,4)} offset:{1024*uu}")
    a("s_waitcnt lgkmcnt(0)")
    ost_setup(a)
    a(f"""v_bfe_u32 v{vT}, v{qM}, 1, 3
v_xor_b32 v{vT}, v{vT}, v{qG}
v_lshlrev_b32 v{vT}, 4, v{vT}
v_lshl_add_u32 v{qXb0}, v{qM}, 7, v{vT}
v_xor_b32 v{qXb1}, 64, v{qXb0}
v_bfe_u32 v{vT}, v0, 2, 3
v_mul_u32_u24 v{vT}, 480, v{vT}
v_lshrrev_b32 v{vT2}, 5, v0
v_lshlrev_b32 v{vT2}, 13, v{vT2}
v_add_u32 v{vT2}, 12288, v{vT2}
s_mul_i32 s{sT}, s{sW4}, 40
v_add3_u32 v{vT}, v{vT}, v{vT2}, s{sT}
v_add_u32 v{vT3}, 3840, v{vT2}
v_and_b32 v{vT2}, 3, v0
v_lshl_add_u32 v{qWb}, v{vT2}, 3, v{vT}
v_cmp_eq_u32 vcc, 2, v{vT2}
v_min_u32 v{vT2}, 2, v{vT2}
v_mul_u32_u24 v{vT2}, 160, v{vT2}
v_add3_u32 v{qDb}, v{vT}, v{vT2}, 32
v_cndmask_b32 v{qDb}, v{qDb}, v{vT3}, vcc
s_mov_b32 s{sRd}, {qslot(0)}
v_add_u32 v{qXa0}, s{sRd}, v{qXb0}
v_add_u32 v{qXa1}, s{sRd}, v{qXb1}
v_add_u32 v{qWa}, s{sRd}, v{qWb}
v_add_u32 v{qDa}, s{sRd}, v{qDb}""")
    def reads(fs, s):
        b = F[fs]; r = []
        for t, (reg, off) in enumerate(((qWa, 0), (qWa, 160), (qDa, 0), (qWa, 320))):
            for h in range(2):
                r.append(f"ds_read_b64_tr_b16 {vr(b+24+4*t+2*h,2)}, v{reg} offset:{s*16384+h*4096+off}")
        for rt in range(6):
            r.append(f"ds_read_b128 {vr(b+4*rt,4)}, v{qXa1 if s else qXa0} offset:{2048*rt}")
        return r
    def mfmas(fs, order=range(6)):
        b = F[fs]; m = []
        for rt in order:
            x = vr(b+4*rt, 4)
            for t in range(4):
                w = vr(b+24+4*t, 4); c = vr(A(rt, t), 4)
                m.append(f"{MF} {c}, {w}, {x}, {c}" if t < 3 else f"{MF} {c}, {x}, {w}, {c}")
        if EM and len(m) == 24: m = m + m[:4]
        return m
    adv = [f"s_add_u32 s{sRd}, s{sRd}, {QSLOT}\ns_cmp_eq_u32 s{sRd}, {3*QSLOT}\ns_cselect_b32 s{sRd}, 0, s{sRd}",
           f"v_add_u32 v{qXa0}, s{sRd}, v{qXb0}", f"v_add_u32 v{qXa1}, s{sRd}, v{qXb1}",
           f"v_add_u32 v{qWa}, s{sRd}, v{qWb}", f"v_add_u32 v{qDa}, s{sRd}, v{qDb}"]
    stamp(a, 1)
    a(f"s_mov_b32 s{sC}, 0\ns_barrier")
    hold(a, 4)
    stamp(a, 2)
    for x in reads(0, 0): a(x)
    a.label('Q_LOOP')
    a("s_waitcnt lgkmcnt(0)")
    pf = []
    if OW2 >= 0:
        pf.append(f"""s_cmp_lg_u32 s{sC}, {OW2}
s_cbranch_scc1 Q_NOW
s_mov_b64 exec, s[76:77]
buffer_store_dwordx4 {vr(cOne,4)}, v{vOS2}, {R(R_WS)}, s74 offen sc1
s_mov_b64 exec, s[78:79]
buffer_store_dwordx4 {vr(cOne,4)}, v{vOS2}, {R(R_WS)}, s75 offen sc1
s_xor_b32 s70, s74, 0x140000
s_xor_b32 s71, s75, 0x140000
s_mov_b32 exec_lo, 0xfffffc00
s_mov_b32 exec_hi, 0x3ffff
buffer_store_dwordx4 {vr(cOne,4)}, v{vOS2}, {R(R_WS)}, s68 offen sc1
buffer_store_dwordx4 {vr(cOne,4)}, v{vOS2}, {R(R_WS)}, s69 offen sc1
s_mov_b64 exec, -1
Q_NOW:""")
        a(f"""s_add_u32 s68, s74, 0x140000
s_sub_u32 s70, s74, 0x140000
s_cmp_ge_u32 s74, 0x140000
s_cselect_b32 s68, s70, s68
s_add_u32 s69, s75, 0x140000
s_sub_u32 s70, s75, 0x140000
s_cmp_ge_u32 s75, 0x140000
s_cselect_b32 s69, s70, s69""")
    if not NOPO: pf.append(f"s_cmp_lg_u32 s{sC}, s{sItO}\ns_cbranch_scc1 Q_NPO\nbuffer_load_dword v{vPD}, v{vPO}, {R(R_C)}, s{sPO} offen\nQ_NPO:")
    if N1 < 10 and not P2D: pf.append(f"s_cmp_lg_u32 s{sC}, s{sIt2}\ns_cbranch_scc1 Q_NP2\nbuffer_load_dword v{vPD}, v{vP2}, {R(R_B)}, s{sPW} offen\nQ_NP2:")
    interleave(a, mfmas(0), reads(1, 1) + adv + pf)
    a(f"s_waitcnt lgkmcnt(0)\ns_barrier")
    interleave(a, mfmas(1), reads(0, 0) + [f"s_add_u32 s{sC}, s{sC}, 1\ns_cmp_lg_u32 s{sC}, 9"])
    a("s_cbranch_scc1 Q_LOOP\ns_barrier\ns_waitcnt vmcnt(0) lgkmcnt(0)")
    interleave(a, mfmas(0, (0, 1, 2, 3)), reads(1, 1))
    a("s_waitcnt lgkmcnt(0)\ns_barrier")
    astamp(a, 1)
    V4 = F1; P = F0
    def Kf(u): return A(u, 1)
    def pack(u): return pkl(Kf(u), A(u,1)) + pkl(Kf(u)+2, A(u,2)) + pkl(Qf+4*u, A(u,0)) + pkl(Vp+2+2*u, A(u,3))
    def tm(u): return f"{MF} {vr(A(u,3),4)}, {vr(Kf(u),4)}, {vr(cI,4)}, 0"
    def sw(u): return [f"v_permlane16_swap_b32 v{Qf+4*u+2+q}, v{Kf(u)+2+q}" for q in range(2)]
    def sm_(u):
        r = [f"{MF} {vr(A(u,0),4)}, {vr(Kf(u),4)}, {vr(Qf+4*u,4)}, {vr(cBo,4)}"]
        if u: r.append(f"{MF} {vr(A(u,2),4)}, {vr(Kf(u-1),4)}, {vr(Qf+4*u,4)}, {vr(cBp,4)}")
        return r
    def v4(u): return pkl(V4+2+2*u, A(u,3))
    def pz(u): return f"v_pk_mov_b32 {vr(P+4*u,2)}, 0, 0"
    m = mfmas(1, (0, 1, 2, 3)) + mfmas(0, (4,)) + mfmas(1, (4,)) + mfmas(0, (5,)) + mfmas(1, (5,))
    interleave(a, m[:8], [pz(0), pz(1), pz(2), pz(3), f"s_mov_b32 s70, {f32(20**-0.5 * 1.4426950408889634)}\ns_mov_b32 s71, s70", "s_mov_b32 s72, 0\ns_mov_b32 s73, 0x00ff00ff"])
    interleave(a, m[8:24], pack(0) + pack(1) + pack(2) + pack(3), per=2)
    for x in [m[24], tm(0), m[25], tm(1), m[26], tm(2), m[27], tm(3)]: a(x)
    interleave(a, m[28:], sw(0) + sw(1))
    stamp(a, 3)
    interleave(a, sm_(0) + sm_(1), pack(4), per=3)
    for x in sw(2) + sw(3): a(x)
    interleave(a, [tm(4)] + sm_(2) + sm_(3), pack(5) + [pz(4), pz(5)], per=2)
    a(f"v_pk_mov_b32 {vr(V4,2)}, 0, 0")
    a(tm(5))
    for x in sw(4) + v4(0) + sw(5): a(x)
    interleave(a, sm_(4) + sm_(5), v4(1) + v4(2) + v4(3) + v4(4), per=2)
    for x in v4(5): a(x)
    astamp(a, 2)
    a("s_mov_b64 exec, s[72:73]")
    for u in range(1, 6):
        for q in (0, 2): a(f"v_pk_mov_b32 {vr(A(u,0)+q,2)}, {vr(A(u,2)+q,2)}, {vr(A(u,2)+q,2)} op_sel:[0,1]")
    a("s_mov_b64 exec, -1")
    M = [A(u, 2) for u in range(6)]
    for u in range(6): a(f"v_max3_f32 v{M[u]}, v{A(u,0)}, v{A(u,0)+1}, v{A(u,0)+2}")
    for u in range(6): a(f"v_max_f32 v{M[u]}, v{M[u]}, v{A(u,0)+3}")
    S32, S16 = 'v_permlane32_swap_b32', 'v_permlane16_swap_b32'
    a(f"""{S32} v{M[0]}, v{M[1]}
{S32} v{M[2]}, v{M[3]}
{S32} v{M[4]}, v{M[5]}
v_max_f32 v{M[0]}, v{M[0]}, v{M[1]}
v_max_f32 v{M[2]}, v{M[2]}, v{M[3]}
v_max_f32 v{M[4]}, v{M[4]}, v{M[5]}
v_mov_b32 v{M[5]}, v{M[4]}
{S16} v{M[0]}, v{M[2]}
{S16} v{M[4]}, v{M[5]}
v_max_f32 v{M[0]}, v{M[0]}, v{M[2]}
v_max_f32 v{M[4]}, v{M[4]}, v{M[5]}
v_mul_f32 v{M[2]}, s70, v{M[0]}
v_mul_f32 v{M[0]}, s70, v{M[0]}
v_mul_f32 v{M[5]}, s70, v{M[4]}
v_mul_f32 v{M[4]}, s70, v{M[4]}
{S16} v{M[0]}, v{M[2]}
{S32} v{M[4]}, v{M[5]}
v_mov_b32 v{M[1]}, v{M[0]}
v_mov_b32 v{M[3]}, v{M[2]}""")
    def sc(u): return [f"v_pk_fma_f32 {vr(A(u,0)+2*q,2)}, {vr(A(u,0)+2*q,2)}, s[70:71], {vr(M[u],2)} op_sel_hi:[1,0,0] neg_lo:[0,0,1] neg_hi:[0,0,1]" for q in range(2)]
    def ex(u): return [f"v_exp_f32 v{A(u,0)+r}, v{A(u,0)+r}" for r in range(4)]
    def pc(u): return pkl(P+4*u+2, A(u,0))
    def ps(us):
        r = ["s_mov_b64 exec, s[72:73]"]
        for u in us: r.append(f"v_pk_mov_b32 {vr(P+4*u,2)}, {vr(P+4*u+2,2)}, {vr(P+4*u+2,2)} op_sel:[0,1]")
        for u in us: r.append(f"v_pk_mov_b32 {vr(P+4*u+2,2)}, 0, 0")
        return r + ["s_mov_b64 exec, -1"]
    def pv(u):
        p = vr(P+4*u, 4)
        return [f"{MF} {vr(A(u,2),4)}, {vr(cOne,4)}, {p}, 0", f"{MF} {vr(A(u,0),4)}, {vr(Vp+2*u,4)}, {p}, 0", f"{MF} {vr(A(u,1),4)}, {vr(V4+2*u,4)}, {p}, 0"]
    def rc(u): return [f"v_rcp_f32 v{A(u,2)}, v{A(u,2)}"]
    def nm(u): return [f"v_pk_mul_f32 {vr(A(u,0)+2*q,2)}, {vr(A(u,0)+2*q,2)}, {vr(A(u,2),2)} op_sel_hi:[1,0]" for q in range(4)]
    def oc(u): return pkl(A(u,3), A(u,0)) + pkl(A(u,3)+2, A(u,1)) + [f"ds_write_b64 v{qOC}, {vr(A(u,3),2)} offset:{u*16*176}"]
    for x in sc(4) + sc(5): a(x)
    a(f"{S32} v{M[0]}, v{M[1]}\n{S32} v{M[2]}, v{M[3]}")
    for x in ex(4) + ex(5) + sc(0) + sc(1) + sc(2) + sc(3) + ex(3) + pc(4) + pc(5) + pc(3) + ps((3, 4, 5)): a(x)
    astamp(a, 3)
    interleave(a, pv(4) + pv(5) + pv(3), ex(0) + ex(1) + ex(2))
    for x in rc(4) + rc(5) + pc(0) + pc(1) + pc(2) + rc(3) + ps((1, 2)): a(x)
    interleave(a, pv(0) + pv(1) + pv(2), nm(4) + nm(5) + nm(3) + oc(4) + oc(5), per=2)
    for x in oc(3) + rc(0) + rc(1) + rc(2) + nm(0) + nm(1) + nm(2) + oc(0) + oc(1) + oc(2): a(x)
    a("s_mov_b32 exec_lo, 0\ns_mov_b32 exec_hi, 0xffff0000")
    for u in range(6): a(f"ds_write_b64 v{qOD}, {vr(A(u,3)+2,2)} offset:{u*16*176}")
    a("s_mov_b64 exec, -1")

def attention(a):
    a.label('L_OST')
    v1, v2, vd = vOS1, vOS2, 12
    assert NPRE == 0
    astamp(a, 5)
    a(f"""s_waitcnt lgkmcnt(0)
s_barrier
{f"s_memtime s[{S_ST+12}:{S_ST+13}]" if AST else ""}
ds_read_b128 {vr(vd,4)}, v{v1}
ds_read_b128 {vr(vd+4,4)}, v{v1} offset:176
s_mov_b64 exec, s[76:77]
s_waitcnt lgkmcnt({0 if AST else 1})
buffer_store_dwordx4 {vr(vd,4)}, v{v2}, {R(R_WS)}, s74 offen sc1
s_mov_b64 exec, s[78:79]
s_waitcnt lgkmcnt(0)
buffer_store_dwordx4 {vr(vd+4,4)}, v{v2}, {R(R_WS)}, s75 offen sc1
s_mov_b64 exec, -1
""")
    if WLATE:
        a("s_cmp_ge_u32 s3, 4\ns_cbranch_scc0 L_P2")
        for r in range(5-WLATE, 5): wo_dma(a, r)

sA, sN2 = 56, 57
def dft_scalars(a):
    a(f"""s_sub_u32 s{sA}, s{sSL}, 24
s_lshl_b32 s{sN2}, s{sA}, 3
s_lshl_b32 s70, s{sW4}, 1
s_add_u32 s{sN2}, s{sN2}, s70
s_add_u32 s{sN2}, s{sN2}, s{sP}""")

def dft_loader(a):
    sT, sT2, sXo, sKo, sM0X, sM0C = range(58, 64)
    vT, vT2, vT3, vGa, vGr, vGo_ = 2, 3, 4, 5, 6, 7
    vXo = 8; vCo = 12; XG = 20; GW = 28
    dft_scalars(a)
    a(f"""v_lshrrev_b32 v{vT}, 3, v0
v_and_b32 v{vT2}, 7, v0
s_mul_i32 s{sXo}, s{sN2}, 1280
s_lshl_b32 s{sM0X}, s{sW4}, 12""")
    for j in range(4):
        a(f"""v_add_u32 v{vT3}, {8*j}, v{vT}
v_mul_u32_u24 v{vXo+j}, {64*1280}, v{vT3}
v_bfe_u32 v{vT3}, v{vT3}, 1, 3
v_xor_b32 v{vT3}, v{vT3}, v{vT2}
v_lshl_add_u32 v{vXo+j}, v{vT3}, 4, v{vXo+j}""")
        if j: a(f"v_subrev_u32 v{vXo+j}, {1024*j}, v{vXo+j}")
    sFo = 65
    for i in range(5):
        a(f"s_add_u32 s70, s{sRot}, {i}\ns_sub_u32 s71, s70, 5\ns_min_u32 s70, s70, s71\ns_lshl_b32 s{sFo+i}, s70, 7")
    a("s_waitcnt lgkmcnt(0)")
    srd(a, R_A, S_X, 2621440)
    def xd(f):
        for h in range(2):
            a(f"s_add_u32 m0, s{sM0X}, {DSLOT*(f%3) + 16384*h}")
            a(f"s_add_u32 s{sT}, s{sXo}, s{sFo+f}" if h == 0 else f"s_add_u32 s{sT}, s{sT}, 640")
            for j in range(4):
                a(f"buffer_load_dwordx4 v{vXo+j}, {R(R_A)}, s{sT} offen offset:{1024*j} lds")
    sEm = 64
    def cd(f):
        for j in range(5):
            if j == 0: a(f"s_add_u32 m0, s{sM0C}, {DSLOT*(f%3) + 32768}\ns_add_u32 s{sT}, s{sKo}, s{sFo+f}\ns_mov_b32 exec_lo, s{sEm}")
            if j == 4: a("s_add_u32 m0, m0, 4096")
            a(f"buffer_load_dwordx4 v{vCo+j}, {R(R_B)}, s{sT} offen offset:{1024*(j&3)} lds")
            if j == 0: a("s_mov_b32 exec_lo, -1")
    xd(0)
    a(f"""s_lshl_b32 s70, s{sCP}, 2
s_add_u32 s70, s70, s{sW4}
s_cmp_eq_u32 s70, 2
s_cselect_b32 s{sEm}, 0xffffff00, -1
s_cbranch_scc0 L_NOROW
v_mov_b32 v{XG}, 0xbf803f80
v_lshlrev_b32 v{XG+1}, 2, v0
v_and_b32 v{XG+1}, 127, v{XG+1}
v_add_u32 v{XG+1}, {32768+10240}, v{XG+1}
ds_write_b32 v{XG+1}, v{XG}
ds_write_b32 v{XG+1}, v{XG} offset:{DSLOT}
v_add_u32 v{XG+1}, {2*DSLOT}, v{XG+1}
ds_write_b32 v{XG+1}, v{XG}
s_waitcnt lgkmcnt(0)
L_NOROW:""")
    a(f"""s_lshr_b32 s{sKo}, s{sCP}, 1
s_mul_i32 s{sKo}, s{sKo}, 160
s_and_b32 s70, s{sCP}, 1
s_add_u32 s{sKo}, s{sKo}, s70
s_mul_i32 s{sKo}, s{sKo}, 1280
s_and_b32 s70, s{sW4}, 1
s_mul_i32 s70, s70, {40*2560}
s_add_u32 s{sKo}, s{sKo}, s70
s_mul_i32 s{sM0C}, s{sW4}, 5120
s_cmp_lt_u32 s{sW4}, 2
s_cselect_b32 s{R_B}, s{S_HRE}, s{S_HIM}
s_cselect_b32 s{R_B+1}, s{S_HRE+1}, s{S_HIM+1}
s_mov_b32 s{R_B+2}, 819200
s_mov_b32 s{R_B+3}, 0x20000
s_and_b32 s70, s{sW4}, 1
s_lshl_b32 s70, s70, 2""")
    for j in range(5):
        a(f"""v_add_u32 v{vT3}, {8*j}, v{vT}
v_mul_u32_u24 v{vCo+j}, 2560, v{vT3}
v_lshrrev_b32 v{vT3}, 1, v{vT3}
v_add_u32 v{vT3}, s70, v{vT3}
v_and_b32 v{vT3}, 7, v{vT3}
v_xor_b32 v{vT3}, v{vT3}, v{vT2}
v_lshl_add_u32 v{vCo+j}, v{vT3}, 4, v{vCo+j}""")
        if j & 3: a(f"v_subrev_u32 v{vCo+j}, {1024*(j&3)}, v{vCo+j}")
    a(f"""s_lshl_b32 s70, s{sCP}, 3
v_add_u32 v{vT3}, s70, v{vT}
v_bfe_u32 v{vT3}, v{vT3}, 1, 3
v_xor_b32 v{vT3}, v{vT3}, v{vT2}
v_lshlrev_b32 v{vGo_}, 4, v{vT3}
s_lshl_b32 s70, s{sCP}, 10
s_add_u32 s70, s70, s{sM0X}
v_lshlrev_b32 v{vGr}, 4, v0
v_add_u32 v{vGr}, s70, v{vGr}
v_mov_b32 v{vGa}, 0""")
    srd(a, R_WS, S_WS, WS_END); srd(a, R_C, S_WO, 819200); srd(a, R_D, S_GATE, 1280)
    wo_setup(a, vT, vT2, vT3)
    g_setup(a, vT, vT2, vT3)
    a(f"""s_lshl_b32 s{sT2}, s{sA}, 2
s_add_u32 s{sT2}, s{sT2}, s{sW4}
s_mul_i32 s{sT2}, s{sT2}, 25600
v_lshlrev_b32 v{vT}, 7, v0
v_mov_b32 v{vT3}, {OOB}
v_cmp_gt_u32 vcc, 50, v0
v_cndmask_b32 v{vT}, v{vT3}, v{vT}, vcc""")
    def gate(f):
        if f == 1: a(f"v_add_u32 v{vGr}, {DSLOT}, v{vGr}")
        if f == 2: a(f"v_add_u32 v{vGr}, {DSLOT}, v{vGr}")
        if f == 3: a(f"v_subrev_u32 v{vGr}, {2*DSLOT}, v{vGr}")
        if f == 4: a(f"v_add_u32 v{vGr}, {DSLOT}, v{vGr}")
        a(f"ds_read_b128 {vr(XG,4)}, v{vGr}\nds_read_b128 {vr(XG+4,4)}, v{vGr} offset:16384\ns_waitcnt lgkmcnt(0)")
        for d in range(4):
            a(f"v_dot2c_f32_bf16 v{vGa}, v{XG+d}, v{GW+4*f+d}\nv_dot2c_f32_bf16 v{vGa}, v{XG+4+d}, v{GW+20+4*f+d}")
    cd(0); xd(1)
    stamp(a, 1)
    a("s_waitcnt vmcnt(8)\ns_barrier")
    for i in range(10): a(f"buffer_load_dwordx4 {vr(GW+4*i,4)}, v{vGo_}, {R(R_D)}, s{sFo+i%5} offen offset:{640*(i//5)}")
    srd(a, R_D, S_DBG, 256)
    cd(1); xd(2)
    a("s_waitcnt vmcnt(8)")
    gate(0)
    a("s_barrier")
    cd(2); xd(3)
    gate(1)
    a("s_waitcnt vmcnt(8)\ns_barrier")
    cd(3); xd(4)
    gate(2)
    a("s_waitcnt vmcnt(8)\ns_barrier")
    cd(4)
    for q in range(NPF): a(f"buffer_load_dword v{vT3}, v{vT}, {R(R_C)}, s{sT2} offen\ns_add_u32 s{sT2}, s{sT2}, 6400")
    gate(3)
    a(f"s_waitcnt vmcnt({NPF})\ns_barrier")
    stamp(a, 2)
    gate(4)
    a(f"""v_add_f32_dpp v{vGa}, v{vGa}, v{vGa} quad_perm:[1,0,3,2] row_mask:0xf bank_mask:0xf
v_add_f32_dpp v{vGa}, v{vGa}, v{vGa} quad_perm:[2,3,0,1] row_mask:0xf bank_mask:0xf
v_add_f32_dpp v{vGa}, v{vGa}, v{vGa} row_half_mirror row_mask:0xf bank_mask:0xf
s_lshl_b32 s{sT}, s{sCP}, 6
s_and_b32 s{sT2}, s{sN2}, 31
s_lshl_b32 s{sT2}, s{sT2}, 8
s_add_u32 s{sT}, s{sT}, s{sT2}
s_lshr_b32 s{sT2}, s{sN2}, 5
s_lshl_b32 s{sT2}, s{sT2}, 2
s_add_u32 s{sT}, s{sT}, s{sT2}
s_add_u32 s{sT}, s{sT}, {WS_GATE}
s_mov_b32 exec_lo, 0x01010101
s_mov_b32 exec_hi, 0x01010101
buffer_store_dword v{vGa}, v0, {R(R_WS)}, s{sT} offen sc1
s_mov_b64 exec, -1
s_barrier""")
    clr_read(a)
    for r in range(DWE): wo_dma(a, r)
    clr_check(a, vT)
    a("s_barrier")
    tw_gen(a, 14, 15, 16, 17)
    a("s_waitcnt vmcnt(0)\ns_barrier")
    stamp(a, 3)
    a("s_cmp_lg_u32 s3, 4\ns_cbranch_scc1 L_NOPUB")
    flag_store(a, vT, '0xff')
    a("L_NOPUB:")
    for r in range(DWE, 5): wo_dma(a, r)
    a("s_branch L_P2")

def dft_compute(a):
    V = RegAlloc('v', 2, 256)
    sKo, sT, sT2 = range(58, 61)
    vM, vG, vT, vT2, vT3 = [V.alloc() for _ in range(5)]
    vXa0, vXa1, vCa0, vCa1, vSp = [V.alloc() for _ in range(5)]
    SEL = V.alloc(10, 2)
    acc = V.alloc(80, 4)
    FC = [V.alloc(40, 4), V.alloc(40, 4)]
    RW = V.alloc(16, 4); fRe = V.alloc(4, 4); fIm = V.alloc(4, 4)
    TT = V.alloc(16, 4); XF = V.alloc(16, 4)
    Sb, Sa, Nb, Na = SEL, SEL+2, SEL+4, SEL+6
    def A_(ct, rt): return acc + 8*ct + 4*rt
    dft_scalars(a)
    a(f"""s_lshr_b32 s{sKo}, s{sCP}, 1
s_mul_i32 s{sKo}, s{sKo}, 160
s_and_b32 s70, s{sCP}, 1
s_add_u32 s{sKo}, s{sKo}, s70
s_mul_i32 s{sKo}, s{sKo}, 1280
s_and_b32 s70, s{sW4}, 1
s_mul_i32 s70, s70, {40*2560}
s_add_u32 s{sKo}, s{sKo}, s70
v_mul_u32_u24 v{vT}, 52, v0
v_lshrrev_b32 v{vT}, 8, v{vT}
v_mul_u32_u24 v{vT}, {2560-640}, v{vT}
v_lshl_add_u32 v{vT}, v0, 7, v{vT}
v_mov_b32 v{vT3}, {OOB}
v_cmp_gt_u32 vcc, 25, v0
v_cndmask_b32 v{vT}, v{vT3}, v{vT}, vcc
s_mul_i32 s{sT}, s{sA}, {5*2560}
s_add_u32 s{sT}, s{sT}, s{sKo}
s_waitcnt lgkmcnt(0)
s_cmp_lt_u32 s{sW4}, 2
s_cselect_b32 s{R_B}, s{S_HRE}, s{S_HIM}
s_cselect_b32 s{R_B+1}, s{S_HRE+1}, s{S_HIM+1}
s_mov_b32 s{R_B+2}, 819200
s_mov_b32 s{R_B+3}, 0x20000
buffer_load_dword v{RW}, v{vT}, {R(R_B)}, s{sT} offen""")
    assert all((q*52) >> 8 == q//5 for q in range(25))
    if PRE:
        srd(a, R_C, S_WO, 819200)
        a(f"""s_sub_u32 s70, s2, 192
s_lshl_b32 s70, s70, 2
s_add_u32 s70, s70, s{sW4}
s_mul_i32 s70, s70, 3200
v_lshlrev_b32 v{vT}, 7, v0
v_cndmask_b32 v{vT}, v{vT3}, v{vT}, vcc
buffer_load_dword v{RW+1}, v{vT}, {R(R_C)}, s70 offen""")
    srd(a, R_C, S_SRE, 8388608); srd(a, R_D, S_SIM, 8388608); srd(a, R_WS, S_WS, WS_END)
    a(f"""v_and_b32 v{vM}, 15, v0
v_lshrrev_b32 v{vG}, 4, v0
v_lshrrev_b32 v{vT}, 1, v{vM}
s_lshl_b32 s{sT}, s{sW4}, 3
v_add_u32 v{vT}, s{sT}, v{vT}
v_lshlrev_b32 v{vT}, 18, v{vT}
v_lshl_add_u32 v{vT}, v{vG}, 3, v{vT}
buffer_load_dwordx2 {vr(fRe,2)}, v{vT}, {R(R_C)}, 0 offen
buffer_load_dwordx2 {vr(fRe+2,2)}, v{vT}, {R(R_C)}, 0 offen offset:32
buffer_load_dwordx2 {vr(fIm,2)}, v{vT}, {R(R_D)}, 0 offen
buffer_load_dwordx2 {vr(fIm+2,2)}, v{vT}, {R(R_D)}, 0 offen offset:32""")
    if PXD:
        srd(a, R_A, S_X, 2621440)
        a(f"""v_and_b32 v{vT}, 31, v0
v_mul_u32_u24 v{vT}, {64*1280}, v{vT}
v_lshrrev_b32 v{vT2}, 5, v0
v_mul_u32_u24 v{vT2}, 640, v{vT2}
v_add_u32 v{vT}, v{vT}, v{vT2}
s_mul_i32 s{sT}, s{sN2}, 1280""")
        for i in range(1, 1+PXD):
            a(f"s_add_u32 s70, s{sRot}, {i}\ns_sub_u32 s71, s70, 5\ns_min_u32 s70, s70, s71\ns_lshl_b32 s70, s70, 7\ns_add_u32 s70, s70, s{sT}")
            a(f"buffer_load_dword v{RW+2}, v{vT}, {R(R_A)}, s70 offen")
    for i in range(0, 80, 2): a(f"v_pk_mov_b32 {vr(acc+i,2)}, 0, 0")
    a(f"""s_lshl_b32 s70, s3, 8
s_add_u32 s70, s70, s{sSL}
s_cmp_lg_u32 s70, 31
s_cbranch_scc1 L_NOCLR
v_lshlrev_b32 v{vT}, 7, v0
s_and_b32 s70, s2, 7
s_lshl_b32 s70, s70, 13
s_add_u32 s70, s70, {WS_FLAG}
buffer_store_dwordx4 {vr(acc,4)}, v{vT}, {R(R_WS)}, s70 offen sc1
L_NOCLR:
v_bfe_u32 v{vT}, v{vM}, 1, 3
v_xor_b32 v{vT}, v{vT}, v{vG}
v_lshlrev_b32 v{vT}, 4, v{vT}
v_lshl_add_u32 v{vT}, v{vM}, 7, v{vT}
s_lshl_b32 s{sT}, s{sW4}, 12
v_add_u32 v{vXa0}, s{sT}, v{vT}
v_xor_b32 v{vXa1}, 64, v{vXa0}
v_add_u32 v{vCa0}, 32768, v{vT}
v_xor_b32 v{vCa1}, 64, v{vCa0}
s_cmp_eq_u32 s{sCP}, 0
s_cselect_b32 s66, 0x00010001, 0
s_mov_b32 s67, s66
v_lshlrev_b32 v{vT}, 2, v{vG}
v_sub_u32 v{vT}, v{vM}, v{vT}
s_bitcmp1_b32 s{sCP}, 0
s_cselect_b32 s70, 0x80008000, 0""")
    for z in (0, 4, 8): a(f"v_pk_mov_b32 {vr(SEL+z,2)}, 0, 0")
    for pr in range(2):
        a(f"""v_mov_b32 v{vT2}, 0x3f80
v_cmp_eq_u32 vcc, {2*pr}, v{vT}
v_cndmask_b32 v{SEL+2+pr}, 0, v{vT2}, vcc
v_mov_b32 v{vT2}, 0x3f800000
v_cmp_eq_u32 vcc, {2*pr+1}, v{vT}
v_cndmask_b32 v{SEL+2+pr}, v{SEL+2+pr}, v{vT2}, vcc
v_xor_b32 v{SEL+6+pr}, s70, v{SEL+2+pr}""")
    a("s_waitcnt vmcnt(0)")
    srd(a, R_D, S_DBG, 256)
    a(f"""s_lshl_b32 s70, s3, 8
s_add_u32 s70, s70, s{sSL}
s_cmp_lg_u32 s70, 31
s_cbranch_scc1 L_NOCLR2
s_and_b32 s70, s2, 7
s_lshl_b32 s70, s70, 2
v_mov_b32 v{vT}, 1
s_mov_b64 exec, 1
buffer_store_dword v{vT}, v{acc}, {R(R_D)}, s70 offen sc1
s_mov_b64 exec, -1
L_NOCLR2:""")
    def rreads(s): return [f"ds_read_b128 {vr(RW+8*rt+4*h,4)}, v{vXa1 if s else vXa0} offset:{16384*h+2048*rt}" for rt in range(2) for h in range(2)]
    def creads(s): return [f"ds_read_b128 {vr(FC[s]+4*ct,4)}, v{vCa1 if s else vCa0} offset:{2048*ct}" for ct in range(10)]
    def foldm():
        m = []
        for rt in range(2):
            for t, S_ in enumerate((Sa, Sb)): m.append(f"{MF} {vr(TT+8*rt+4*t,4)}, {vr(S_,4)}, {vr(RW+8*rt,4)}, 0")
        for rt in range(2):
            for t, N_ in enumerate((Na, Nb)): m.append(f"{MF} {vr(TT+8*rt+4*t,4)}, {vr(N_,4)}, {vr(RW+8*rt+4,4)}, {vr(TT+8*rt+4*t,4)}")
        return m
    def packx(s): return sum((pkl(XF+8*s+4*rt+2*t, TT+8*rt+4*t) for rt in range(2) for t in range(2)), [])
    def mainm(s):
        m = []
        for ct in range(10):
            for rt in range(2):
                c = vr(A_(ct, rt), 4)
                m.append(f"{MF} {c}, {vr(XF+8*s+4*rt,4)}, {vr(FC[s]+4*ct,4)}, {c}")
        return m
    def step(s, nxt):
        m = mainm(s)
        if not nxt:
            for x in m: a(x)
            return
        cr = creads(1-s)
        interleave(a, m[:9], rreads(1-s) + cr[:5])
        a("s_waitcnt lgkmcnt(5)")
        interleave(a, foldm(), cr[5:])
        interleave(a, m[9:], packx(1-s), start=3, per=2)
        a("s_waitcnt lgkmcnt(0)")
    def adv(f):
        d = DSLOT if (f+1) % 3 else -2*DSLOT
        op = 'v_add_u32' if d > 0 else 'v_subrev_u32'
        for r_ in (vXa0, vXa1, vCa0, vCa1): a(f"{op} v{r_}, {abs(d)}, v{r_}")
    stamp(a, 1)
    a("s_barrier")
    stamp(a, 2)
    for x in rreads(0) + creads(0): a(x)
    a("s_waitcnt lgkmcnt(10)")
    for x in foldm(): a(x)
    for x in packx(0): a(x)
    a("s_waitcnt lgkmcnt(0)")
    for f in range(5):
        step(0, True)
        if f < 4: adv(f)
        a("s_barrier")
        step(1, f < 4)
    stamp(a, 3)
    A1, A2 = RW, RW + 4
    a(f"""v_and_b32 v{vT}, 1, v0
v_cmp_eq_u32 vcc, 1, v{vT}
s_mul_i32 s{sT}, s{sW4}, {10*1024}
v_lshlrev_b32 v{vT2}, 4, v0
v_add_u32 v{vT2}, {L_U}, v{vT2}
v_add_u32 v{vT3}, s{sT}, v{vT2}""")
    for q in range(4):
        a(f"""v_cndmask_b32 v{A1+q}, v{fRe+q}, v{fIm+q}, vcc
v_xor_b32 v{fIm+q}, 0x80008000, v{fIm+q}
v_cndmask_b32 v{A2+q}, v{fIm+q}, v{fRe+q}, vcc""")
    U = FC[0]
    for ct in range(10):
        a(pk(U+4*ct, A_(ct, 0))); a(pk(U+4*ct+2, A_(ct, 1)))
        a(f"ds_write_b128 v{vT3}, {vr(U+4*ct,4)} offset:{1024*ct}")
    vGo, vGe = vXa1, vCa0
    a(f"""s_lshl_b32 s{sT}, s{sW4}, 7
s_lshl_b32 s{sT2}, s{sA}, 1
s_add_u32 s{sT}, s{sT}, s{sT2}
s_add_u32 s{sT}, s{sT}, s{sP}
s_mul_i32 s{sT}, s{sT}, {GP*16}
s_add_u32 s{sT}, s{sT}, {WS_G}
v_mul_u32_u24 v{vGe}, {32*GP*16}, v{vG}
v_add_u32 v{vGe}, s{sT}, v{vGe}
s_and_b32 s{sT}, s{sCP}, 1
s_mul_i32 s{sT}, s{sT}, {168*16}
s_lshr_b32 s{sT2}, s{sCP}, 1
s_mul_i32 s{sT2}, s{sT2}, 1280
s_add_u32 s{sT2}, s{sT2}, s{sT}
v_lshl_add_u32 v{vGo}, v{vM}, 4, v{vGe}
v_add_u32 v{vGo}, s{sT2}, v{vGo}
v_add_u32 v{vGe}, {160*16}, v{vGe}
v_mov_b32 v{vXa0}, {OOB}
v_cndmask_b32 v{vGe}, v{vXa0}, v{vGe}, s[66:67]
s_mov_b32 s{sT}, 0
s_mov_b32 s{sT2}, {16*GP*16}
s_waitcnt lgkmcnt(0)
s_barrier""")
    UB = [FC[0], FC[1]]
    order = (1, 2, 3, 4, 0)
    def rd(i):
        ct = order[i]; b = UB[i & 1]; r = []
        for w in range(4):
            r.append(f"ds_read_b128 {vr(b+8*w,4)}, v{vT2} offset:{w*10240+1024*ct}")
            r.append(f"ds_read_b128 {vr(b+8*w+4,4)}, v{vT2} offset:{w*10240+1024*(ct+5)}")
        return r
    def fin(i, vo, off):
        d = acc + 24*(i % 3); o = d + 16; r = []
        for w in range(4): r.append(f"v_cvt_pk_bf16_f32 v{o+w}, v{d+4*w}, v{d+4*w+1}")
        r.append(f"buffer_store_dwordx4 {vr(o,4)}, v{vo}, {R(R_WS)}, s{sT} offen offset:{off} sc1")
        for w in range(4): r.append(f"v_cvt_pk_bf16_f32 v{o+4+w}, v{d+4*w+2}, v{d+4*w+3}")
        r.append(f"buffer_store_dwordx4 {vr(o+4,4)}, v{vo}, {R(R_WS)}, s{sT2} offen offset:{off} sc1")
        return r
    for x in rd(0): a(x)
    for i in range(5):
        a("s_waitcnt lgkmcnt(0)")
        if i < 4:
            for x in rd(i+1): a(x)
        b = UB[i & 1]; d = acc + 24*(i % 3)
        m1 = [f"{MF} {vr(d+4*w,4)}, {vr(A1,4)}, {vr(b+8*w,4)}, 0" for w in range(4)]
        m2 = [f"{MF} {vr(d+4*w,4)}, {vr(A2,4)}, {vr(b+8*w+4,4)}, {vr(d+4*w,4)}" for w in range(4)]
        fl = fin(i-1, vGo, 256*order[i-1]) if i else []
        if i < 4:
            interleave(a, m1 + m2, fl, per=2, start=1)
        else:
            d5 = acc + 24*(5 % 3)
            m0 = [f"{MF} {vr(d5+4*w,4)}, {vr(A1,4)}, {vr(b+8*w+4,4)}, 0" for w in range(4)]
            interleave(a, m0 + m1, fl, per=2, start=1)
            a("s_mov_b64 exec, s[66:67]")
            for w in range(4): a(f"v_pk_mov_b32 {vr(b+8*w+4,2)}, 0, 0\nv_pk_mov_b32 {vr(b+8*w+6,2)}, 0, 0")
            a("s_mov_b64 exec, -1")
            interleave(a, m2, fin(5, vGe, 0), per=2)
    for x in fin(4, vGo, 0): a(x)
    a("s_waitcnt vmcnt(0)\ns_barrier")
    a("s_branch L_P2")

def phase2(a):
    V = RegAlloc('v', 2, 256)
    sHH, sT, sT2, sT3, sSg, sOB, sQ0, sQ1, sFl, sEx = range(56, 66)
    vM, vG, vT, vT2, vT3, vRow, vWa, vWs = [V.alloc() for _ in range(8)]
    V.alloc(10)
    vOa, vPo, vEx, vGa = [V.alloc() for _ in range(4)]
    vGl = V.alloc(2, 2); vOut = V.alloc(2)
    WR = V.alloc(20*NREG, 4)
    accB = V.alloc(20, 4); fO = V.alloc(20, 4); FW = V.alloc(20, 4); vPl = V.alloc(4, 4); fT = V.alloc(16, 4)
    vG1 = V.alloc(4, 2); vX = V.alloc(4)
    vOo = 10; vYa = 15
    FA = [vX, vX+1, None, vX+2, vX+3]
    assert fT == TW
    hi_v[0] = max(hi_v[0], V.hi)
    a.label('L_P2')
    stamp(a, 4)
    dpoll = f"buffer_load_dwordx4 {vr(vPl,4)}, v{vPo}, {R(R_WS)}, s{sEx} offen sc1"
    a(f"""s_and_b32 s{sEx}, s2, 7
s_lshl_b32 s{sEx}, s{sEx}, 13
s_add_u32 s{sEx}, s{sEx}, {WS_FLAG}
v_lshlrev_b32 v{vPo}, 7, v0
s_cmp_lg_u32 s3, 5
s_cbranch_scc1 L_ND0
s_mov_b32 exec_lo, 0xff000000
s_mov_b32 exec_hi, 0xff000000
{dpoll}
s_mov_b64 exec, -1
L_ND0:
""" + "\n".join(f"v_mov_b32 v{fO+8+j}, v{vGoL+j}" for j in range(5)))
    def wreads(dst, reg, j):
        return [f"ds_read_b64_tr_b16 {vr(dst+4*ct+2*h,2)}, v{reg} offset:{j*5120+h*1280+32*ct}" for ct in range(5) for h in range(2)]
    def grp(j): return wreads(WR+20*j, vWa, j) if j < NREG else wreads(FW, vWs, 0)
    a(f"""s_lshr_b32 s{sHH}, s3, 2
v_and_b32 v{vM}, 15, v0
v_lshrrev_b32 v{vG}, 4, v0
v_bfe_u32 v{vT}, v0, 2, 3
v_lshrrev_b32 v{vT2}, 5, v0
v_lshl_add_u32 v{vT}, v{vT2}, 4, v{vT}
v_mul_u32_u24 v{vT}, 160, v{vT}
v_and_b32 v{vT2}, 3, v0
v_lshl_add_u32 v{vT}, v{vT2}, 3, v{vT}
s_mul_i32 s{sT2}, s{sHH}, {NREG*5120}
v_add_u32 v{vWa}, s{sT2}, v{vT}
s_mul_i32 s{sT2}, s{sHH}, {(10-NREG)*5120}
s_add_u32 s{sT2}, s{sT2}, {14*5120}
v_add_u32 v{vWs}, s{sT2}, v{vT}""")
    fill = []
    fill.append(f"""v_and_b32 v{vT}, 1, v{vM}
v_mul_u32_u24 v{vT}, 640, v{vT}
v_lshrrev_b32 v{vT2}, 1, v{vM}
v_lshl_add_u32 v{vT}, v{vT2}, 4, v{vT}
v_mul_u32_u24 v{vT2}, 5120, v{vG}
s_mov_b32 s{sT}, {L_G}
v_add3_u32 v{vGa}, v{vT}, v{vT2}, s{sT}
s_lshl_b32 s{sT}, s{sW4}, 6
s_add_u32 s{sT}, s{sT}, {L_GT}
v_lshlrev_b32 v{vRow}, 2, v{vM}
v_add_u32 v{vRow}, s{sT}, v{vRow}
s_lshl_b32 s{sSg}, s{sP}, 12
s_add_u32 s{sSg}, s{sSg}, s{sEx}
s_mul_i32 s{sT}, s{sK1}, 1280
s_mul_i32 s{sT2}, s{sC2}, 160
s_add_u32 s{sT}, s{sT}, s{sT2}
s_lshl_b32 s{sT2}, s3, 6
s_mov_b32 s{sT3}, {L_GT}""")
    assert all((q*6554) >> 16 == q//10 for q in range(1100))
    for q in range(2):
        fill.append(f"""v_add_u32 v{vT}, s{sT2}, v0
v_add_u32 v{vT}, {512*q}, v{vT}
v_mul_u32_u24 v{vT2}, 6554, v{vT}
v_lshrrev_b32 v{vT2}, 16, v{vT2}
v_lshl_add_u32 v{vG1+2*q+1}, v{vT2}, 2, s{sT3}
v_mul_u32_u24 v{vT3}, 10, v{vT2}
v_sub_u32 v{vT}, v{vT}, v{vT3}
v_mul_u32_u24 v{vT3}, {32*1280}, v{vT2}
v_lshl_add_u32 v{vT3}, v{vT}, 4, v{vT3}
v_add_u32 v{vOut+q}, s{sT}, v{vT3}
v_mul_u32_u24 v{vT3}, {EXP}, v{vT2}
v_lshl_add_u32 v{vT}, v{vT}, 5, v{vT3}
v_lshrrev_b32 v{vT2}, 4, v{vT2}
v_mul_u32_u24 v{vT3}, {10240-16*EXP}, v{vT2}
v_add_u32 v{FA[3*q]}, v{vT}, v{vT3}
v_add_u32 v{vT2}, 1, v{vT2}
v_lshrrev_b32 v{vT2}, 2, v{vT2}
v_mul_u32_u24 v{vT2}, {L_OB7-71680}, v{vT2}
v_add_u32 v{FA[3*q+1]}, v{FA[3*q]}, v{vT2}""")
    s_ = ""
    for P in range(2):
        s_ += f"""s_lshl_b32 s{sT}, s{sHH}, 1
s_add_u32 s{sT}, s{sT}, s{sC2}
s_add_u32 s{sT}, s{sT}, {P}
s_and_b32 s{sT}, s{sT}, 3
s_lshl_b32 s{sT2}, s{sK1}, 2
s_add_u32 s{sT}, s{sT}, s{sT2}
s_lshl_b32 s{sT}, s{sT}, 3
s_add_u32 s{sT}, s{sT}, s{sW4}
s_mul_i32 s{sQ0+P}, s{sT}, 2560
"""
    fill.append(s_ + f"""s_mul_i32 s{sOB}, s3, 10240
s_cmp_eq_u32 s3, 7
s_cselect_b32 s{sOB}, {L_OB7}, s{sOB}
v_and_b32 v{vT}, 1, v{vG}
v_lshrrev_b32 v{vT2}, 1, v{vG}
v_xor_b32 v{vT2}, v{vT2}, v{vT}
v_mul_u32_u24 v{vT}, 2560, v{vT}
v_lshl_add_u32 v{vT}, v{vT2}, 4, v{vT}
v_mul_u32_u24 v{vT2}, 160, v{vM}
v_add3_u32 v{vOa}, v{vT}, v{vT2}, s{sOB}
v_mul_u32_u24 v{vEx}, {EXP}, v{vM}
v_lshl_add_u32 v{vEx}, v{vG}, 4, v{vEx}
v_add_u32 v{vEx}, s{sOB}, v{vEx}""")
    for j in range(NPRE):
        if j: a("s_waitcnt lgkmcnt(5)")
        for x in grp(j): a(x)
        if fill: a(fill.pop(0))
    for x in fill: a(x)
    a(f"""s_lshl_b32 s{sFl}, 0x55, s{sP}
s_cmp_ge_u32 s{sSL}, 24
s_cselect_b32 s{sT3}, 99, 4
s_waitcnt vmcnt(0)
s_barrier
s_cmp_lg_u32 s3, s{sT3}
s_cbranch_scc1 L_NOFLAG""")
    flag_store(a, vT, f"s{sFl}")
    a(f"""L_NOFLAG:
s_cmp_lg_u32 s3, 4
s_cbranch_scc1 L_NOEP
s_sub_u32 s70, s{sSL}, 24
s_lshl_b32 s70, 1, s70
s_cmp_ge_u32 s{sSL}, 24
s_cselect_b32 s{sFl}, s70, 0xffffff""")
    if EPOLL: a(f"""s_mov_b32 exec_hi, 0
s_mov_b32 exec_lo, s{sFl}
buffer_load_dwordx4 {vr(fO,4)}, v{vPo}, {R(R_WS)}, s{sSg} offen sc1
s_mov_b64 exec, -1""")
    a(f"s_lshl_b32 s70, s{sSL}, 2\ns_add_u32 s70, s70, s{sCP}\nv_lshlrev_b32 v{vT}, 2, v0")
    for q in range(4):
        a(f"v_cmp_eq_u32 vcc, s70, v{vT}\nv_cndmask_b32 v{fO+4+q}, 0, 1, vcc\nv_add_u32 v{vT}, 1, v{vT}")
    a("L_NOEP:")
    stamp(a, 5)
    a(f"""s_cmp_lg_u32 s3, 5
s_cbranch_scc1 L_GDONE
s_mov_b32 exec_lo, 0xff000000
s_mov_b32 exec_hi, 0xff000000
s_mov_b32 s71, 0
L_DPOLL:
v_and_b32 v{vPl}, v{vPl}, v{vPl+1}
v_and_b32 v{vPl+2}, v{vPl+2}, v{vPl+3}
v_and_b32 v{vPl}, v{vPl}, v{vPl+2}
v_cmp_ne_u32 vcc, 1, v{vPl}
s_cbranch_vccz L_GOK
s_sleep 8
{dpoll}
s_add_u32 s71, s71, 1
s_cmp_gt_u32 s71, {SPIN}
s_waitcnt vmcnt(0)
s_cbranch_scc0 L_DPOLL
L_GOK:
s_mov_b64 exec, -1""")
    for w in range(4):
        a(f"s_mov_b32 m0, {L_G + 5120*w}\ns_mov_b32 s70, {w*4*GP*16}")
        for j in range(5):
            if j == 4: a("s_add_u32 m0, m0, 4096")
            a(f"buffer_load_dwordx4 v{fO+8+j}, {R(R_WS)}, s70 offen offset:{1024*(j&3)} sc1 lds")
    a(f"""s_lshl_b32 s70, s{sK1}, 8
s_add_u32 s70, s70, {WS_GATE}
s_mov_b32 m0, {L_GT}
v_lshlrev_b32 v{vT}, 2, v0
buffer_load_dword v{vT}, {R(R_WS)}, s70 offen sc1 lds
L_GDONE:""")
    srd(a, R_A, S_OUT, 2621440)
    a(f"""v_lshlrev_b32 v{vOo}, 4, v0
v_mov_b32 v{vOo+1}, v{vOo}
v_xor_b32 v{vT}, 16, v{vOo}
v_add_u32 v{vOo+3}, {10240 + (192-160)*16 - 3072}, v{vT}
v_add_u32 v{vOo+4}, {10240 + (256-160)*16}, v{vT}
v_add_u32 v{vT}, {10240 + (128-160)*16 - 2048}, v{vT}
v_cmp_gt_u32 vcc, 32, v0
v_cndmask_b32 v{vOo+2}, v{vT}, v{vOo}, vcc""")
    for j in range(NPRE, 8):
        a("s_waitcnt lgkmcnt(5)")
        for x in grp(j): a(x)
    mpoll = f"buffer_load_dwordx4 {vr(fO,4)}, v{vPo}, {R(R_WS)}, s{sSg} offen sc1"
    a(f"""s_cmp_lg_u32 s3, 4
s_cbranch_scc1 L_GO
s_mov_b32 s71, 0
s_mov_b32 exec_hi, 0
s_mov_b32 exec_lo, s{sFl}
{'s_sleep '+str(PDL) if PDL else ''}
{'' if EPOLL else mpoll}
L_POLL:
s_waitcnt vmcnt(0)
v_or_b32 v{fO}, v{fO}, v{fO+4}
v_or_b32 v{fO+1}, v{fO+1}, v{fO+5}
v_or_b32 v{fO+2}, v{fO+2}, v{fO+6}
v_or_b32 v{fO+3}, v{fO+3}, v{fO+7}
v_and_b32 v{fO}, v{fO}, v{fO+1}
v_and_b32 v{fO+2}, v{fO+2}, v{fO+3}
v_and_b32 v{fO}, v{fO}, v{fO+2}
v_cmp_ne_u32 vcc, 1, v{fO}
s_cbranch_vccz L_POLLED
s_sleep {PSL}
L_POLL2:
{mpoll}
s_add_u32 s71, s71, 1
s_cmp_gt_u32 s71, {SPIN}
s_cbranch_scc0 L_POLL
s_mov_b32 exec_lo, 0xffffff
L_POLLED:
s_cmp_lg_u32 exec_lo, 0xffffff
s_mov_b32 exec_lo, 0xffffff
s_cbranch_scc1 L_POLL2
s_mov_b64 exec, -1
L_GO:
s_waitcnt vmcnt(0) lgkmcnt(0)
s_barrier""")
    hold(a, 2)
    stamp(a, 6)
    def odl(P):
        r = []
        for j in range(5):
            pre = f"s_add_u32 m0, s{sOB}, {5120*P}\n" if j == 0 else "s_add_u32 m0, m0, 4096\n" if j == 4 else ""
            r.append(pre + f"buffer_load_dwordx4 v{vOo+j}, {R(R_WS)}, s{sQ0+P} offen offset:{1024*(j&3)} sc1 lds")
        return r
    def odma(P, n=5):
        for x in odl(P)[:n]: a(x)
    a(f"""s_cmp_eq_u32 s{sHH}, 0
s_cbranch_scc0 L_Y""")
    odma(0); odma(1, NE)
    for i in range(0, 20, 2): a(f"v_pk_mov_b32 {vr(accB+i,2)}, 0, 0")
    a(f"s_branch L_NOY\nL_Y:\ns_setprio {YP1}\nds_read_b32 v{vGl}, v{vRow}")
    seq = [(uu, ct) for uu in range(4) for ct in range(5)]
    ring = [fO+4*k for k in range(5)] + [vPl, 16]
    def rd_(n): uu, ct = seq[n]; return f"ds_read_b128 {vr(ring[n%7],4)}, v{vGa} offset:{1280*uu+128*ct}"
    for n in range(7): a(rd_(n))
    if YORD == 1: odma(0)
    gmy = [f"v_min_f32 v{vGl}, 0x41f00000, v{vGl}", f"v_mul_f32 v{vGl}, 0x3fb8aa3b, v{vGl}", f"v_exp_f32 v{vGl}, v{vGl}"]
    for n in range(20):
        uu, ct = seq[n]
        a(f"s_waitcnt lgkmcnt({min(6, 19-n)})")
        a(f"{MF} {vr(accB+4*ct,4)}, {vr(ring[n%7],4)}, {vr(fT+4*uu,4)}, {'0' if uu == 0 else vr(accB+4*ct,4)}")
        if n + 7 < 20: a(rd_(n+7))
        elif gmy: a(gmy.pop(0))
    for i in range(0, 20, 2): a(f"v_pk_mul_f32 {vr(accB+i,2)}, {vr(accB+i,2)}, {vr(vGl,2)} op_sel_hi:[1,0]")
    if YP2: a(f's_setprio {YP2}')
    if YORD == 0: odma(0)
    odma(1, NE)
    a(f"s_setprio {YPRI}\nL_NOY:\nds_read_b32 v{vG1}, v{vG1+1}\nds_read_b32 v{vG1+2}, v{vG1+3}")
    FO = [fO, WR + 40]
    def oreads(P): return [f"ds_read_b128 {vr(FO[P]+4*q,4)}, v{vOa} offset:{5120*P+32*q}" for q in range(5)]
    Wbuf = {u: WR + 20*u for u in range(NREG)}
    Wbuf[7] = FW; Wbuf[8] = WR; Wbuf[9] = WR + 20
    def mm(u):
        B = vr(FO[u//5] + 4*(u % 5), 4)
        return [f"{MF} {vr(accB+4*ct,4)}, {vr(Wbuf[u]+4*ct,4)}, {B}, {vr(accB+4*ct,4)}" for ct in range(5)]
    if P2ST: stamp(a, 1)
    a(f"s_waitcnt vmcnt({NE})")
    if P2ST: stamp(a, 2); a("s_waitcnt lgkmcnt(0)")
    for x in oreads(0): a(x)
    for x in odl(1)[NE:]: a(x)
    a("s_waitcnt lgkmcnt(4)")
    for x in mm(0): a(x)
    a("s_waitcnt lgkmcnt(0)")
    interleave(a, mm(1), wreads(WR, vWs, 1), per=2)
    interleave(a, mm(2) + mm(3), wreads(WR+20, vWs, 2))
    a("s_waitcnt vmcnt(0) lgkmcnt(8)")
    if P2ST: stamp(a, 3)
    for x in oreads(1): a(x)
    for x in mm(4): a(x)
    a("s_waitcnt lgkmcnt(0)")
    gm = []
    for v_ in (vG1, vG1+2):
        gm += [f"v_min_f32 v{v_}, 0x41f00000, v{v_}", f"v_mul_f32 v{v_}, 0x3fb8aa3b, v{v_}", f"v_exp_f32 v{v_}, v{v_}", f"v_add_f32 v{v_}, 1.0, v{v_}", f"v_rcp_f32 v{v_}, v{v_}"]
    interleave(a, sum((mm(u) for u in range(5, 10)), []), gm)
    if P2ST: stamp(a, 4)
    for ct in range(5): a(f"ds_write_b128 v{vEx}, {vr(accB+4*ct,4)} offset:{64*ct}")
    a("s_waitcnt lgkmcnt(0)\ns_barrier")
    if P2ST: stamp(a, 5)
    def rdf(q):
        b = WR + 24*q
        a(f"""ds_read_b128 {vr(b,4)}, v{FA[3*q]}
ds_read_b128 {vr(b+4,4)}, v{FA[3*q]} offset:16
ds_read_b128 {vr(b+8,4)}, v{FA[3*q+1]} offset:40960
ds_read_b128 {vr(b+12,4)}, v{FA[3*q+1]} offset:40976""")
    def fin(q):
        b = WR + 24*q
        for i in range(0, 8, 2): a(f"v_pk_add_f32 {vr(b+i,2)}, {vr(b+i,2)}, {vr(b+8+i,2)}")
        for i in range(0, 8, 2): a(f"v_pk_mul_f32 {vr(b+i,2)}, {vr(b+i,2)}, {vr(vG1+2*q,2)} op_sel_hi:[1,0]")
        a(pk(b+8, b)); a(pk(b+10, b+4))
        a(f"buffer_store_dwordx4 {vr(b+8,4)}, v{vOut+q}, {R(R_A)}, 0 offen {OPOL}")
    rdf(0)
    a("s_cmp_ge_u32 s3, 2\ns_cbranch_scc1 L_F1")
    rdf(1)
    a("s_waitcnt lgkmcnt(4)")
    fin(0)
    a("s_waitcnt lgkmcnt(0)")
    fin(1)
    a("s_branch L_F2\nL_F1:\ns_waitcnt lgkmcnt(0)")
    fin(0)
    a("L_F2:")
    hold(a, 1)
    stamp_flush(a, vT)

a = main()
print("pads", a.pad(), "vgprs", hi_v[0], file=sys.stderr)
nv = (hi_v[0] + 7)//8*8
txt = f"""; gated mix: FNet (factored DFT) + dilated sliding-window attention.  Generated by work/gen14.py
; @launch grid=(256,1,1) block=(512,1,1) lds={LDS_BYTES}
.amdgcn_target "amdgcn-amd-amdhsa--gfx950"
.text
.globl {NAME}_kernel
.p2align 8
.type {NAME}_kernel,@function
{NAME}_kernel:
{a.text()}
.section .rodata,"a"
.p2align 6
.amdhsa_kernel {NAME}_kernel
  .amdhsa_next_free_vgpr {nv}
  .amdhsa_next_free_sgpr 100
  .amdhsa_accum_offset {nv}
  .amdhsa_group_segment_fixed_size 0
  .amdhsa_kernarg_size 96
  .amdhsa_user_sgpr_count 2
  .amdhsa_user_sgpr_kernarg_segment_ptr 1
  .amdhsa_system_sgpr_workgroup_id_x 1
.end_amdhsa_kernel
"""
open(OUT, 'w').write(txt)
```

```python
import sys, struct
from asmlib import *
NAME = "gated_mix__spectral_fnet__sliding_local_dilated__prompt"
def opt(name, default):
    for x in sys.argv[1:]:
        if x.startswith(f'--{name}='): return int(x.split('=')[1])
    return default
STAMP = '--stamp' in sys.argv
CLK = '--clk' in sys.argv
P2ST = opt('p2st', 0)
PF_W = opt('pfw', 1)
PF_XQ = opt('pfxq', 0)
KA = opt('ka', 9)
KA0 = opt('ka0', 6)
NPRE = opt('npre', 4)
GD = opt('gd', 8)
DWS = opt('dws', 1)
NPD = opt('npd', 0)
AST = opt('ast', 0)
WLATE = opt('wlate', 1)
W8 = opt('w8', 2)
DWE = opt('dwe', 0)
OPF = opt('opf', 0)
HOLD = opt('hold', 0)
HX = opt('hx', 3000)
WS3 = opt('ws3', 1)
HPRI = opt('hpri', 0)
OPOL = ['', 'sc1', 'nt', 'sc0 sc1', 'sc1 nt'][opt('opol', 0)]
PSL = opt('psl', 6)
XPF = opt('xpf', 0)
NOPO = opt('nopo', 1)
P2D = opt('p2d', 0)
EM = opt('em', 0)
WSCH = opt('wsch', 2)
OWARM = opt('owarm', 0)
OW2 = opt('ow2', -1)
YORD = opt('yord', 0)
YPRI = opt('ypri', 1)
EPOLL = opt('epoll', 0)
PDL = opt('pdl', 8)
NE = opt('ne', 5)
YP1 = opt('yp1', 0)
YP2 = opt('yp2', 0)
PXD = opt('pxd', 0)
NS = opt('ns', 12)
CPF = opt('cpf', 1)
ROT = opt('rot', 0)
ROTP = opt('rotp', 0)
PRE = opt('pre', 0)
NPF = opt('npf', 2)
PO0 = opt('po0', 3)
POM = opt('pom', 3)
N1 = opt('n1', 3)
APRE = opt('apre', 1)
OPT = opt('opt', 0)
GPT = opt('gpt', 0)
AX = opt('ax', 1)
GPOS = opt('gpos', 2)
P20 = opt('p20', 0)
P2M = opt('p2m', 1)
TRACE = opt('trace', 0)
NCE = opt('nce', 0)
OUT = [x for x in sys.argv[1:] if x.endswith('.s')]
OUT = OUT[0] if OUT else f"cdna_kernels/{NAME}.s"

WS_G = 0x280000
GP = 336
WS_GATE = 0x520000
WS_FLAG = 0x530000
WS_END = 0x540000
WS_STAMP = 0x800000
OOB = 0x80000000
SPIN = 200000
MF = 'v_mfma_f32_16x16x32_bf16'
LDS_BYTES = 163840

S_X, S_SRE, S_SIM, S_HRE, S_HIM, S_BX, S_WQKV, S_WO = 4, 6, 8, 10, 12, 14, 16, 18
S_GATE, S_OUT, S_DBG, S_WS = 20, 22, 24, 26
R_A, R_B, R_WS, R_C, R_D = 28, 32, 36, 40, 44
sP, sCP, sSL, sW4 = 48, 49, 50, 51
sC2, sK1, sKs, sRot = 52, 53, 54, 55
S_ST = 84

def srd(a, r, p, n):
    a(f"s_mov_b32 s{r}, s{p}\ns_mov_b32 s{r+1}, s{p+1}\ns_mov_b32 s{r+2}, {n}\ns_mov_b32 s{r+3}, 0x20000")
def R(r): return f"s[{r}:{r+3}]"
def hold(a, p):
    if HOLD != p: return
    l = newlab('L_HOLD')
    a(f"{l}:\ns_memrealtime s[82:83]\ns_waitcnt lgkmcnt(0)\ns_sub_u32 s82, s82, s80\ns_cmp_lt_u32 s82, {HX}\ns_cbranch_scc1 {l}")
def astamp(a, i):
    if AST: a(f"{'s_memtime' if CLK else 's_memrealtime'} s[{S_ST+2*i}:{S_ST+2*i+1}]")
def stamp(a, i):
    if AST and i in (1, 2, 3, 5, 6): return
    if STAMP: a(f"{'s_memtime' if CLK else 's_memrealtime'} s[{S_ST+2*i}:{S_ST+2*i+1}]")
def stamp_flush(a, vtmp):
    if not STAMP: return
    a(f"s_waitcnt vmcnt(0) lgkmcnt(0)")
    stamp(a, 7)
    a(f"""s_mov_b32 s{R_D}, s{S_WS}
s_mov_b32 s{R_D+1}, s{S_WS+1}
s_mov_b32 s{R_D+2}, 0x1000000
s_mov_b32 s{R_D+3}, 0x20000
s_lshl_b32 s70, s2, 3
s_add_u32 s70, s70, s3
s_lshl_b32 s70, s70, 5
s_add_u32 s70, s70, {WS_STAMP}
s_waitcnt lgkmcnt(0)
v_mov_b32 v{vtmp}, 0""")
    for i in range(8):
        a(f"v_mov_b32 v{vtmp+1}, s{S_ST+2*i}")
        a(f"buffer_store_dword v{vtmp+1}, v{vtmp}, {R(R_D)}, s70 offen offset:{4*i}")
    a("s_waitcnt vmcnt(0)")
def interleave(a, mfmas, fillers, start=0, per=1):
    f = list(fillers)
    for i, m in enumerate(mfmas):
        a(m)
        if i >= start:
            for _ in range(per):
                if f: a(f.pop(0))
    for x in f: a(x)
def pkl(d, s): return [f"v_cvt_pk_bf16_f32 v{d}, v{s}, v{s+1}", f"v_cvt_pk_bf16_f32 v{d+1}, v{s+2}, v{s+3}"]
def pk(d, s): return "\n".join(pkl(d, s))
def f32(x): return f"{struct.unpack('<I', struct.pack('<f', x))[0]:#x}"
hi_v = [0]
_lab = [0]
def newlab(p):
    _lab[0] += 1
    return f"{p}{_lab[0]}"

NREG = 7
def pos_of(hh, j): return hh*NREG + j if j < NREG else 14 + hh*(10-NREG) + (j-NREG)
def inv_pos(pos):
    for hh in range(2):
        for j in range(10):
            if pos_of(hh, j) == pos: return hh, j
L_OB7 = 102400
L_G = 112640
L_GT = 133120
L_CNT = 163832
L_Y = 133376
EXP = 336
L_OS = 141312
L_XC = 102400
QSLOT = 47104
XB = 14336
def qslot(c): return ((c + 2) % 3) * QSLOT
DSLOT = 53248; L_U = 102400

vWoL = 72
vGoL = 77

def wo_setup(a, vT, vT2, vT3, vWo=vWoL):
    assert all((q*6554) >> 16 == q//10 for q in range(320))
    for j in range(5):
        a(f"""v_add_u32 v{vT}, {64*j}, v0
v_mul_u32_u24 v{vT2}, 6554, v{vT}
v_lshrrev_b32 v{vT2}, 16, v{vT2}
v_mul_u32_u24 v{vT3}, 10, v{vT2}
v_sub_u32 v{vT}, v{vT}, v{vT3}
v_and_b32 v{vT3}, 3, v{vT2}
v_and_b32 v{vWo+j}, 4, v{vT2}
v_mul_u32_u24 v{vWo+j}, 20, v{vWo+j}
v_and_b32 v{vT2}, 24, v{vT2}
v_lshrrev_b32 v{vT2}, 1, v{vT2}
v_add3_u32 v{vT3}, v{vT3}, v{vT2}, v{vWo+j}
v_mul_u32_u24 v{vT3}, 1280, v{vT3}
v_lshl_add_u32 v{vWo+j}, v{vT}, 4, v{vT3}""")
        if j & 3: a(f"v_subrev_u32 v{vWo+j}, {1024*(j&3)}, v{vWo+j}")

def wo_dma(a, r, vWo=vWoL):
    sT, sT2 = 70, 71
    tab = [inv_pos(4*r + w) for w in range(4)]
    code = [(2*hh + j//5)*16 + j % 5 for hh, j in tab]
    packed = sum(c << (8*w) for w, c in enumerate(code))
    a(f"""s_lshl_b32 s{sT}, s{sW4}, 3
s_lshr_b32 s{sT}, {packed:#x}, s{sT}
s_and_b32 s{sT2}, s{sT}, 15
s_mul_i32 s{sT2}, s{sT2}, {16*1280}
s_lshr_b32 s{sT}, s{sT}, 4
s_add_u32 s{sT}, s{sT}, s{sC2}
s_and_b32 s{sT}, s{sT}, 3
s_mul_i32 s{sT}, s{sT}, {160*1280}
s_add_u32 s{sT2}, s{sT2}, s{sT}
s_mul_i32 s{sT}, s{sC2}, 160
s_add_u32 s{sT2}, s{sT2}, s{sT}
s_mul_i32 s{sT}, s{sW4}, 5120
s_add_u32 m0, s{sT}, {r*20480}""")
    for j in range(5):
        if j == 4: a("s_add_u32 m0, m0, 4096")
        a(f"buffer_load_dwordx4 v{vWo+j}, {R(R_C)}, s{sT2} offen offset:{1024*(j&3)} lds")

def g_setup(a, vT, vT2, vT3):
    sT, sT2, sT3, sB = 70, 71, 72, 73
    assert all((q*1639) >> 16 == q//40 for q in range(320))
    a(f"""s_mul_i32 s{sT}, s{sC2}, 40
s_sub_u32 s{sT2}, 320, s{sT}
s_cmp_lt_u32 s{sC2}, 4
s_cselect_b32 s{sT}, s{sT}, s{sT2}
s_cselect_b32 s{sT2}, 16, -16
s_cselect_b32 s{sB}, 0, -16
s_mul_i32 s{sT3}, s{sKs}, {16*GP}
s_add_u32 s{sT}, s{sT}, s{sT3}
s_lshl_b32 s{sT}, s{sT}, 4
s_add_u32 s{sT}, s{sT}, {WS_G}""")
    for j in range(5):
        a(f"""v_add_u32 v{vT}, {64*j}, v0
v_mul_u32_u24 v{vT2}, 1639, v{vT}
v_lshrrev_b32 v{vT2}, 16, v{vT2}
v_mul_u32_u24 v{vT3}, 40, v{vT2}
v_sub_u32 v{vT}, v{vT}, v{vT3}
v_mul_i32_i24 v{vT}, s{sT2}, v{vT}
v_and_b32 v{vT3}, 1, v{vT2}
v_mul_i32_i24 v{vT3}, s{sB}, v{vT3}
v_mul_u32_u24 v{vT2}, {168*16}, v{vT2}
v_add3_u32 v{vT}, v{vT}, v{vT2}, v{vT3}
v_add_u32 v{vGoL+j}, s{sT}, v{vT}""")
        if j & 3: a(f"v_subrev_u32 v{vGoL+j}, {1024*(j&3)}, v{vGoL+j}")

TW = 232
def tw_gen(a, vT, vT2, vT3, vT4, part=None):
    if part in (None, 0): a(f"""s_lshl_b32 s70, s{sW4}, 9
s_add_u32 s70, s70, s{sK1}
v_and_b32 v{vT}, 15, v0
v_lshlrev_b32 v{vT}, 5, v{vT}
v_add_u32 v{vT}, s70, v{vT}
v_and_b32 v{vT2}, 48, v0
v_mul_u32_u24 v{vT2}, v{vT2}, v{vT}
s_cmp_lt_u32 s{sC2}, 4
s_mov_b32 s73, {f32(1/2048)}
s_cselect_b32 s73, s73, {f32(-1/2048)}""")
    for n in (range(16) if part is None else range(6) if part == 0 else range(6, 16)):
        uu = ((n >> 3) << 1) | (n & 1); w = (n >> 1) & 3
        a(f"""v_and_b32 v{vT3}, 0x7ff, v{vT2}
v_cvt_f32_u32 v{vT3}, v{vT3}
v_mul_f32 v{vT3}, s73, v{vT3}
v_cos_f32 v{vT4}, v{vT3}
v_sin_f32 v{vT3}, v{vT3}
v_add_u32 v{vT2}, v{vT2}, v{vT}
v_cvt_pk_bf16_f32 v{TW+4*uu+w}, v{vT4}, v{vT3}""")

def clr_read(a):
    a(f"s_load_dwordx8 s[60:67], s[{S_DBG}:{S_DBG+1}], 0")

def clr_check(a, vT):
    ok, lp = newlab('L_COK'), newlab('L_CLP')
    b = 60
    a(f"""s_waitcnt lgkmcnt(0)
s_and_b64 s[{b}:{b+1}], s[{b}:{b+1}], s[{b+2}:{b+3}]
s_and_b64 s[{b+4}:{b+5}], s[{b+4}:{b+5}], s[{b+6}:{b+7}]
s_and_b64 s[{b}:{b+1}], s[{b}:{b+1}], s[{b+4}:{b+5}]
s_and_b32 s{b}, s{b}, s{b+1}
s_cbranch_scc1 {ok}
s_mov_b32 s71, 0
v_lshlrev_b32 v{vT}, 2, v0
s_mov_b64 exec, 0xff
{lp}:
s_sleep 16
buffer_load_dword v{vT+1}, v{vT}, {R(R_D)}, 0 offen sc1
s_waitcnt vmcnt(0)
v_cmp_eq_u32 vcc, 0, v{vT+1}
s_cbranch_vccz {lp}x
s_add_u32 s71, s71, 1
s_cmp_gt_u32 s71, {SPIN}
s_cbranch_scc0 {lp}
{lp}x:
s_mov_b64 exec, -1
{ok}:""")

def flag_store(a, vT, mask):
    a(f"""s_lshl_b32 s70, s{sP}, 5
s_add_u32 s70, s70, s{sSL}
s_lshl_b32 s70, s70, 7
s_lshl_b32 s71, s{sCP}, 2
s_add_u32 s70, s70, s71
s_add_u32 s70, s70, {WS_FLAG}
v_lshlrev_b32 v{vT}, 13, v0
v_mov_b32 v{vT+1}, 1
s_mov_b32 exec_lo, {mask}
s_mov_b32 exec_hi, 0
buffer_store_dword v{vT+1}, v{vT}, {R(R_WS)}, s70 offen sc1
s_mov_b64 exec, -1""")

def main():
    a = Asm()
    if HOLD: a("s_memrealtime s[80:81]")
    a(f"""s_cmp_ge_u32 s2, 256
s_cbranch_scc1 L_END
s_load_dwordx16 s[4:19], s[0:1], 0
s_load_dwordx8 s[20:27], s[0:1], 64""")
    if CPF:
        a(f"""s_getpc_b64 s[28:29]
L_PC:
v_lshlrev_b32 v255, 7, v0
v_cmp_gt_u32 vcc, L_END-L_PC, v255
s_and_saveexec_b64 s[30:31], vcc
s_cbranch_execz L_NOCPF
global_load_dword v255, v255, s[28:29]
L_NOCPF:
s_mov_b64 exec, -1""")
    if STAMP:
        for i in range(8): a(f"s_mov_b64 s[{S_ST+2*i}:{S_ST+2*i+1}], 0")
    stamp(a, 0)
    hold(a, 5)
    a(f"""v_lshrrev_b32 v1, 6, v0
v_and_b32 v0, 63, v0
v_readfirstlane_b32 s3, v1
s_and_b32 s{sP}, s2, 1
s_lshr_b32 s{sCP}, s2, 1
s_and_b32 s{sCP}, s{sCP}, 3
s_lshr_b32 s{sSL}, s2, 3
s_and_b32 s{sW4}, s3, 3
s_and_b32 s{sC2}, s{sSL}, 7
s_lshr_b32 s70, s{sSL}, 4
s_lshl_b32 s70, s70, 1
s_lshl_b32 s{sK1}, s{sCP}, 2
s_add_u32 s{sK1}, s{sK1}, s70
s_add_u32 s{sK1}, s{sK1}, s{sP}
s_sub_u32 s70, 32, s{sK1}
s_cmp_eq_u32 s{sK1}, 0
s_cselect_b32 s70, 16, s70
s_bitcmp1_b32 s{sSL}, 3
s_cselect_b32 s{sK1}, s70, s{sK1}
s_sub_u32 s{sKs}, 32, s{sK1}
s_and_b32 s{sKs}, s{sKs}, 31
s_cmp_lt_u32 s{sC2}, 4
s_cselect_b32 s{sKs}, s{sK1}, s{sKs}
s_mul_i32 s{sRot}, s{sP}, {ROTP}
s_add_u32 s{sRot}, s{sRot}, s{sCP}
s_mul_i32 s{sRot}, s{sRot}, {ROT}
s_sub_u32 s70, s{sRot}, 5
s_min_u32 s{sRot}, s{sRot}, s70
s_cmp_ge_u32 s{sSL}, 24
s_cbranch_scc1 L_DFT
s_cmp_ge_u32 s{sSL}, 20
s_cbranch_scc1 L_AUX
s_cmp_ge_u32 s3, 4
s_cbranch_scc0 L_QCOMP""")
    qkv_loader(a)
    a.label('L_AUX'); aux_path(a)
    a.label('L_DFT')
    a("s_cmp_ge_u32 s3, 4\ns_cbranch_scc0 L_DCOMP")
    dft_loader(a)
    a.label('L_DCOMP'); dft_compute(a)
    a.label('L_QCOMP'); qkv_compute(a)
    attention(a)
    phase2(a)
    a.label('L_END')
    a('s_endpgm')
    return a

sHG, sI, sJ0 = 56, 57, 58
qM, qG, qT, qT2, qT3 = 2, 3, 4, 5, 6
qOC, qOD = 7, 8
qXb0, qXb1, qWb, qDb, qXa0, qXa1, qWa, qDa = range(10, 18)
vOS1, vOS2 = 18, 19
cI = 20; cOne = 24; cBo = 28; cBp = 32; Vp = 36
NT = 7
ACC = 52; F0 = 164; F1 = 208; FWO = 28
vO6a, vO6g = 252, 253
def A(rt, t): return ACC + 16*rt + 4*t

def qkv_scalars(a):
    a(f"""s_lshl_b32 s{sHG}, s{sCP}, 1
s_and_b32 s70, s{sSL}, 1
s_add_u32 s{sHG}, s{sHG}, s70
s_lshr_b32 s{sI}, s{sSL}, 1
s_mul_i32 s{sJ0}, s{sI}, 102""")

def attn_consts(a):
    vT, vT2, vT3 = qT, qT2, qT3
    a(f"""v_and_b32 v{qM}, 15, v0
v_lshrrev_b32 v{qG}, 4, v0
v_lshlrev_b32 v{vT}, 2, v{qG}
v_sub_u32 v{vT}, v{qM}, v{vT}
v_mov_b32 v{vT3}, 0xff800000
v_mov_b32 v{cI}, 0
v_mov_b32 v{cI+1}, 0""")
    for r in range(4):
        a(f"""v_subrev_u32 v{vT2}, {r}, v{vT}
v_cmp_gt_u32 vcc, 8, v{vT2}
v_cndmask_b32 v{cBo+r}, v{vT3}, v{cI}, vcc
v_cmp_gt_i32 vcc, -8, v{vT2}
v_cndmask_b32 v{cBp+r}, v{vT3}, v{cI}, vcc
v_mov_b32 v{cOne+r}, 0x3f803f80""")
    a(f"v_and_b32 v{vT}, 0x33, v0")
    for pr in range(2):
        a(f"""v_mov_b32 v{vT2}, 0x3f80
v_cmp_eq_u32 vcc, {48+2*pr}, v{vT}
v_cndmask_b32 v{cI+2+pr}, 0, v{vT2}, vcc
v_mov_b32 v{vT2}, 0x3f800000
v_cmp_eq_u32 vcc, {48+2*pr+1}, v{vT}
v_cndmask_b32 v{cI+2+pr}, v{cI+2+pr}, v{vT2}, vcc""")
    a(f"""v_pk_mov_b32 {vr(Vp,2)}, 0, 0
s_mul_i32 s70, s{sW4}, 40
s_add_u32 s70, s70, {L_OS}
v_mul_u32_u24 v{vT3}, 176, v{qM}
v_add_u32 v{vT3}, s70, v{vT3}
v_lshl_add_u32 v{qOC}, v{qG}, 3, v{vT3}
v_mul_u32_u24 v{qOD}, 176, v0
s_add_u32 s70, s70, 32
v_add_u32 v{qOD}, s70, v{qOD}""")

def ost_setup(a):
    sN, sT, sT2 = 70, 71, 72
    t1, t2 = qT, qT2
    a(f"""v_mul_u32_u24 v{vOS2}, 26, v0
v_lshrrev_b32 v{vOS2}, 8, v{vOS2}
s_lshl_b32 s{sT}, s{sW4}, 2
v_add_u32 v{t1}, s{sT}, v{vOS2}
v_mul_u32_u24 v{t2}, 10, v{vOS2}
v_sub_u32 v{t2}, v0, v{t2}
v_mul_u32_u24 v{vO6a}, 176, v{t1}
v_lshl_add_u32 v{vO6a}, v{t2}, 4, v{vO6a}
v_add_u32 v{vO6a}, {L_OS + 96*176}, v{vO6a}
s_cmp_eq_u32 s{sI}, 9
s_cselect_b32 s{sT}, 10, 13
v_cmp_gt_u32 s[82:83], s{sT}, v{t1}
s_add_u32 s{sT}, s{sJ0}, 96
v_add_u32 v{t1}, s{sT}, v{t1}
v_lshlrev_b32 v{t1}, 1, v{t1}
v_add_u32 v{t1}, s{sP}, v{t1}
v_and_b32 v{vO6g}, 31, v{t1}
v_lshlrev_b32 v{vO6g}, 3, v{vO6g}
v_add_u32 v{vO6g}, s{sHG}, v{vO6g}
v_lshrrev_b32 v{t1}, 5, v{t1}
v_lshl_add_u32 v{t1}, v{vO6g}, 6, v{t1}
v_mul_u32_u24 v{t1}, 160, v{t1}
v_lshl_add_u32 v{t1}, v{t2}, 4, v{t1}
s_and_b32 s83, s83, 0xff
v_mov_b32 v{t2}, {OOB}
v_cndmask_b32 v{vO6g}, v{t2}, v{t1}, s[82:83]
v_mov_b32 v{t2}, {L_OS}
v_cndmask_b32 v{vO6a}, v{t2}, v{vO6a}, s[82:83]
v_mul_u32_u24 v{vOS1}, {16*176-160}, v{vOS2}
v_lshl_add_u32 v{vOS1}, v0, 4, v{vOS1}
s_mul_i32 s{sT}, s{sW4}, {4*176}
s_add_u32 s{sT}, s{sT}, {L_OS}
v_add_u32 v{vOS1}, s{sT}, v{vOS1}
v_lshlrev_b32 v{vOS2}, 4, v0""")
    for q in range(4):
        a(f"""s_lshl_b32 s{sN}, s{sW4}, 2
s_add_u32 s{sN}, s{sN}, {q}
s_add_u32 s{sT}, s{sN}, s{sJ0}
s_lshl_b32 s{sT}, s{sT}, 1
s_add_u32 s{sT}, s{sT}, s{sP}
s_and_b32 s{sT2}, s{sT}, 31
s_lshl_b32 s{sT2}, s{sT2}, 3
s_add_u32 s{sT2}, s{sT2}, s{sHG}
s_lshl_b32 s{sT2}, s{sT2}, 6
s_lshr_b32 s{sT}, s{sT}, 5
s_add_u32 s{sT}, s{sT}, s{sT2}
s_mul_i32 s{74+q}, s{sT}, 160
s_cmp_eq_u32 s{sI}, 0
s_cselect_b32 s{sT}, 0, 7
s_cmp_ge_u32 s{sN}, s{sT}
s_cselect_b32 s{64+q}, -1, 0xfffffc00""")

def wline(a, dst, sL, n, vT, vT2, vT3, vT4):
    assert all((q*7282) >> 16 == q//9 for q in range(8000))
    assert all((q*11) >> 5 == q//3 for q in range(9))
    a(f"""v_add_u32 v{vT}, s{sL}, v0
v_cmp_gt_u32 vcc, 5760, v{vT}
v_mul_u32_u24 v{vT2}, 7282, v{vT}
v_lshrrev_b32 v{vT2}, 16, v{vT2}
v_mul_u32_u24 v{vT3}, 9, v{vT2}
v_sub_u32 v{vT}, v{vT}, v{vT3}
v_mul_u32_u24 v{vT3}, 11, v{vT}
v_lshrrev_b32 v{vT3}, 5, v{vT3}
v_mul_u32_u24 v{vT3}, {1280-384}, v{vT3}
v_lshl_add_u32 v{vT}, v{vT}, 7, v{vT3}
v_and_b32 v{vT3}, 63, v{vT2}
v_lshrrev_b32 v{dst}, 7, v{vT2}
v_add_u32 v{dst}, s{sRot}, v{dst}
v_subrev_u32 v{vT4}, 5, v{dst}
v_min_u32 v{dst}, v{dst}, v{vT4}
v_lshl_add_u32 v{vT3}, v{dst}, 6, v{vT3}
v_and_b32 v{vT2}, 64, v{vT2}
v_mul_u32_u24 v{vT2}, 5, v{vT2}
v_add_u32 v{vT2}, v{vT2}, v{vT3}
v_mul_u32_u24 v{vT2}, 3840, v{vT2}
v_add_u32 v{vT}, v{vT}, v{vT2}
v_mov_b32 v{vT2}, {OOB}""")
    if n < 64:
        m = (1 << n) - 1
        a(f"s_and_b32 vcc_lo, vcc_lo, {m & 0xffffffff:#x}\ns_and_b32 vcc_hi, vcc_hi, {m >> 32:#x}")
    a(f"v_cndmask_b32 v{dst}, v{vT2}, v{vT}, vcc")
NP1 = -(-576*N1 // 80)

def aux_path(a):
    vT, vT2, vT3, vT4, vA, vD = 2, 3, 4, 5, 6, 12
    vX, vL, vGs, vGa = 13, 8, 9, 7
    sAW, sT, sPW, sXb = 56, 57, 58, 59
    XG, GW = 100, 140
    L_GW = 102400
    nw = -(-(5760 - 80*NP1) // 2048)
    a(f"""s_sub_u32 s{sAW}, s{sSL}, 20
s_lshl_b32 s{sAW}, s{sAW}, 3
s_add_u32 s{sAW}, s{sAW}, s3
v_and_b32 v{vX}, 31, v0
v_mul_u32_u24 v{vX}, 2560, v{vX}
v_lshrrev_b32 v{vT}, 5, v0
v_mul_u32_u24 v{vT}, 640, v{vT}
v_add_u32 v{vX}, v{vX}, v{vT}
s_lshl_b32 s{sXb}, s{sAW}, 6
s_add_u32 s{sXb}, s{sXb}, s{sP}
s_mul_i32 s{sXb}, s{sXb}, 1280
v_lshlrev_b32 v{vL}, 7, v0
s_waitcnt lgkmcnt(0)""")
    srd(a, R_A, S_X, 2621440)
    def xp(i):
        a(f"s_add_u32 s70, s{sRot}, {i}\ns_sub_u32 s71, s70, 5\ns_min_u32 s70, s70, s71\ns_lshl_b32 s70, s70, 7\ns_add_u32 s70, s70, s{sXb}")
        a(f"buffer_load_dword v{vD}, v{vX}, {R(R_A)}, s70 offen\ns_barrier")
    def gate_loads():
        a(f"""s_lshl_b32 s70, s{sCP}, 5
s_add_u32 s70, s70, s{sAW}
s_lshl_b32 s70, s70, 4
s_add_u32 s70, s70, s{sP}
v_lshrrev_b32 v{vT}, 3, v0
v_lshlrev_b32 v{vT}, 1, v{vT}
v_add_u32 v{vT}, s70, v{vT}
v_and_b32 v{vT2}, 7, v0
v_lshlrev_b32 v{vT2}, 4, v{vT2}
v_mul_u32_u24 v{vT3}, 1280, v{vT}
v_add_u32 v{vT3}, v{vT3}, v{vT2}
v_and_b32 v{vGs}, 31, v{vT}
v_lshlrev_b32 v{vGs}, 8, v{vGs}
v_lshrrev_b32 v{vT}, 5, v{vT}
v_lshl_add_u32 v{vGs}, v{vT}, 2, v{vGs}
v_add_u32 v10, {L_GW}, v{vT2}""")
        for i in (2, 7, 3, 8, 4, 9, 0, 5, 1, 6):
            a(f"buffer_load_dwordx4 {vr(XG+4*i,4)}, v{vT3}, {R(R_A)}, 0 offen offset:{128*i}")
        a("s_barrier")
    xl = list(range(1, AX+1))
    if xl: xp(xl.pop(0))
    srd(a, R_B, S_GATE, 1280)
    a(f"""s_and_b32 s70, s3, 1
s_lshl_b32 s70, s70, 10
s_add_u32 m0, s70, {L_GW}
v_lshlrev_b32 v{vT}, 4, v0
buffer_load_dwordx4 v{vT}, {R(R_B)}, s70 offen lds
s_lshl_b32 s{sT}, s{sAW}, 6
s_add_u32 s{sT}, s{sT}, {80*NP1}
s_mul_i32 s{sPW}, s{sCP}, 320
s_and_b32 s{sPW}, s{sPW}, 0xffffff80""")
    srd(a, R_B, S_WQKV, 2457600); srd(a, R_WS, S_WS, WS_END); srd(a, R_D, S_DBG, 256); srd(a, R_C, S_WO, 819200)
    for q in range(nw):
        if q == GPOS: gate_loads()
        wline(a, vA, sT, 64, vT, vT2, vT3, vT4)
        a(f"buffer_load_dword v{vD}, v{vA}, {R(R_B)}, s{sPW} offen\ns_barrier\ns_add_u32 s{sT}, s{sT}, 2048")
        if xl: xp(xl.pop(0))
    if GPOS >= nw: gate_loads()
    for i in xl: xp(i)
    a(f"""s_and_b32 s{sT}, s2, 7
s_lshl_b32 s{sT}, s{sT}, 5
s_add_u32 s{sT}, s{sT}, s{sAW}""")
    nl = 0
    if APRE:
        a(f"s_mul_i32 s70, s{sT}, 3200\ns_mov_b64 exec, 0x1ffffff\nbuffer_load_dword v{vD}, v{vL}, {R(R_C)}, s70 offen\ns_mov_b64 exec, -1\ns_barrier"); nl += 1
    a(f"s_mul_i32 s70, s{sAW}, 25600\ns_add_u32 s70, s70, {6400*NPF}\ns_mov_b32 exec_hi, 0x3ffff")
    for q in range(NPF, 4): a(f"buffer_load_dword v{vD}, v{vL}, {R(R_C)}, s70 offen\ns_add_u32 s70, s70, 6400"); nl += 1
    a("s_mov_b32 exec_hi, -1")
    if OPT:
        a(f"s_mul_i32 s70, s{sT}, {80*128}\nbuffer_load_dword v{vD}, v{vL}, {R(R_WS)}, s70 offen\ns_add_u32 s70, s70, 8192\ns_mov_b64 exec, 0xffff\nbuffer_load_dword v{vD}, v{vL}, {R(R_WS)}, s70 offen\ns_mov_b64 exec, -1"); nl += 2
    wo_setup(a, vT, vT2, vT3)
    g_setup(a, vT, vT2, vT3)
    tw_gen(a, 14, 15, 16, 17)
    a(f"v_mov_b32 v{vGa}, 0\ns_waitcnt vmcnt({nl})\ns_barrier")
    for i in range(10): a(f"ds_read_b128 {vr(GW+4*i,4)}, v10 offset:{128*i}")
    a("s_waitcnt lgkmcnt(0)")
    clr_read(a)
    for i in range(40): a(f"v_dot2c_f32_bf16 v{vGa}, v{XG+i}, v{GW+i}")
    a(f"""v_add_f32_dpp v{vGa}, v{vGa}, v{vGa} quad_perm:[1,0,3,2] row_mask:0xf bank_mask:0xf
v_add_f32_dpp v{vGa}, v{vGa}, v{vGa} quad_perm:[2,3,0,1] row_mask:0xf bank_mask:0xf
v_add_f32_dpp v{vGa}, v{vGa}, v{vGa} row_half_mirror row_mask:0xf bank_mask:0xf
s_mov_b32 s72, {WS_GATE}
s_mov_b32 exec_lo, 0x01010101
s_mov_b32 exec_hi, 0x01010101
buffer_store_dword v{vGa}, v{vGs}, {R(R_WS)}, s72 offen sc1
s_mov_b64 exec, -1""")
    clr_check(a, vT)
    a("s_waitcnt vmcnt(0)\ns_barrier")
    stamp(a, 3)
    a("s_cmp_lg_u32 s3, 4\ns_cbranch_scc1 L_NOPUB2")
    flag_store(a, vT, '0xff')
    a("L_NOPUB2:\ns_cmp_ge_u32 s3, 4\ns_cbranch_scc0 L_AUXE")
    for r in range(5): wo_dma(a, r)
    a("L_AUXE:\ns_waitcnt vmcnt(0)\ns_barrier\ns_branch L_P2")

def qkv_loader(a):
    sXo, sWo, sWo2, sWr, sC, sM0X, sM0W, sT, sX0, sW0, sKc = range(59, 70)
    vT, vT2, vT3, vM = 10, 11, 12, 13
    vXo = 82; vWo = 86
    CH = 64*3840
    ND = 12
    qkv_scalars(a)
    offs = f"""s_lshl_b32 s{sXo}, s{sKc}, 7
s_add_u32 s{sXo}, s{sXo}, s{sX0}
s_mul_i32 s{sWo}, s{sKc}, {CH}
s_add_u32 s{sWo}, s{sWo}, s{sW0}
s_add_u32 s{sWo2}, s{sWo}, {32*3840}"""
    a(f"""s_lshl_b32 s{sX0}, s{sJ0}, 1
s_add_u32 s{sX0}, s{sX0}, s{sP}
s_mul_i32 s{sX0}, s{sX0}, 1280
s_mul_i32 s{sW0}, s{sHG}, 160
s_lshr_b32 s{sT}, s{sW4}, 1
s_lshl_b32 s{sT}, s{sT}, 2
s_and_b32 s70, s{sW4}, 1
s_add_u32 s{sT}, s{sT}, s70
s_mul_i32 s{sT}, s{sT}, {4*3840}
s_add_u32 s{sW0}, s{sW0}, s{sT}
s_mov_b32 s{sKc}, s{sRot}
{offs}
s_mul_i32 s{sM0X}, s{sW4}, 3584
s_lshl_b32 s{sM0W}, s{sW4}, 12
s_add_u32 s{sM0W}, s{sM0W}, {XB}
s_mul_i32 s{sT}, s{sW4}, 28
v_lshrrev_b32 v{vT}, 3, v0
v_add_u32 v{vT}, s{sT}, v{vT}
v_and_b32 v{vT2}, 7, v0""")
    for j in range(4):
        a(f"""v_add_u32 v{vT3}, {8*j}, v{vT}
v_mul_u32_u24 v{vXo+j}, 2560, v{vT3}
v_bfe_u32 v{vT3}, v{vT3}, 1, 3
v_xor_b32 v{vT3}, v{vT3}, v{vT2}
v_lshl_add_u32 v{vXo+j}, v{vT3}, 4, v{vXo+j}""")
        if j: a(f"v_subrev_u32 v{vXo+j}, {1024*j}, v{vXo+j}")
    assert all((q*2185) >> 16 == q//30 for q in range(512))
    assert all((q*26) >> 8 == q//10 for q in range(64))
    for j in range(4):
        a(f"""v_add_u32 v{vT}, {64*j}, v0
v_mul_u32_u24 v{vT2}, 2185, v{vT}
v_lshrrev_b32 v{vT2}, 16, v{vT2}
v_mul_u32_u24 v{vT3}, 30, v{vT2}
v_sub_u32 v{vT}, v{vT}, v{vT3}
v_mul_u32_u24 v{vT3}, 26, v{vT}
v_lshrrev_b32 v{vT3}, 8, v{vT3}
v_mul_u32_u24 v{vT3}, 1120, v{vT3}
v_lshl_add_u32 v{vT}, v{vT}, 4, v{vT3}
v_and_b32 v{vM}, 4, v{vT2}
v_add_u32 v{vT3}, v{vT2}, v{vM}
v_mul_u32_u24 v{vT3}, 3840, v{vT3}
v_add_u32 v{vWo+j}, v{vT}, v{vT3}""")
        if j: a(f"v_subrev_u32 v{vWo+j}, {1024*j}, v{vWo+j}")
    a(f"""v_mov_b32 v{vT}, {OOB}
v_cmp_gt_u32 vcc, 48, v0
v_cndmask_b32 v{vWo+3}, v{vT}, v{vWo+3}, vcc
s_waitcnt lgkmcnt(0)""")
    srd(a, R_A, S_X, 2621440); srd(a, R_B, S_WQKV, 2457600)
    def dma(lo, hi):
        for i in range(lo, hi):
            if i < 4:
                if i == 0 or i == lo: a(f"s_add_u32 m0, s{sWr}, s{sM0X}")
                if i == 3: a("s_mov_b32 exec_hi, 0")
                a(f"buffer_load_dwordx4 v{vXo+i}, {R(R_A)}, s{sXo} offen offset:{1024*i} lds")
                if i == 3: a("s_mov_b32 exec_hi, -1")
            else:
                j = i & 3; st = (i-4) >> 2
                if j == 0 or i == lo:
                    a(f"s_add_u32 m0, s{sWr}, s{sM0W}")
                    if st: a("s_add_u32 m0, m0, 16384")
                a(f"buffer_load_dwordx4 v{vWo+j}, {R(R_B)}, s{sWo2 if st else sWo} offen offset:{1024*j} lds")
        if hi == ND and lo < ND:
            a(f"""s_add_u32 s70, s{sKc}, 5
s_sub_u32 s71, s{sKc}, 4
s_cmp_eq_u32 s{sKc}, 9
s_cselect_b32 s71, 0, s71
s_cmp_lt_u32 s{sKc}, 5
s_cselect_b32 s{sKc}, s70, s71
{offs}
s_add_u32 s{sWr}, s{sWr}, {QSLOT}
s_cmp_eq_u32 s{sWr}, {3*QSLOT}
s_cselect_b32 s{sWr}, 0, s{sWr}""")
    a(f"s_mov_b32 s{sWr}, {qslot(0)}")
    dma(0, 8)
    srd(a, R_WS, S_WS, WS_END); srd(a, R_C, S_WO, 819200); srd(a, R_D, S_DBG, 256)
    a(f"v_mov_b32 v{vT}, {L_CNT}\nv_mov_b32 v{vT2}, 0\nds_write_b32 v{vT}, v{vT2}")
    wo_setup(a, vT, vT2, vT3)
    g_setup(a, vT, vT2, vT3)
    dma(8, ND)
    stamp(a, 1)
    _tc = [0]
    def tr():
        _tc[0] += 1
        if TRACE == 2 and _tc[0] % 3: return
        if TRACE: a(f"s_memtime s[82:83]\ns_waitcnt lgkmcnt(0)\ns_mov_b32 m0, s80\nv_writelane_b32 v60, s82, m0\ns_add_u32 s80, s80, 1")
    if TRACE: a("s_mov_b32 s80, 0\nv_mov_b32 v60, 0")
    dma(0, KA0)
    tr(); a(f"s_waitcnt vmcnt({KA0})"); tr(); a("s_barrier"); tr()
    dma(KA0, ND)
    a(f"s_mov_b32 s{sC}, 1\nQL_LOOP:")
    dma(0, KA)
    tr(); a(f"s_waitcnt vmcnt({KA})"); tr(); a("s_barrier"); tr()
    dma(KA, ND)
    a(f"s_add_u32 s{sC}, s{sC}, 1\ns_cmp_lt_u32 s{sC}, 9\ns_cbranch_scc1 QL_LOOP")
    a(f"s_lshl_b32 s70, s{sW4}, 12\ns_add_u32 s70, s70, {L_OS}\nv_lshlrev_b32 v14, 4, v0\nv_add_u32 v14, s70, v14")
    for uu in range(4): a(f"ds_read_b128 {vr(TW+4*uu,4)}, v14 offset:{1024*uu}")
    clr_read(a)
    if W8 == 3: wo_dma(a, 0)
    tr(); a(f"s_waitcnt vmcnt({4 + (5 if W8 == 3 else 0)})"); tr(); a("s_barrier"); tr()
    stamp(a, 2)
    if W8 >= 2: wo_dma(a, W8-2)
    tr(); a(f"s_waitcnt vmcnt({5*max(W8-1,0)})"); tr(); a("s_barrier"); tr()
    if W8: wo_dma(a, W8-1)
    tr(); tr(); a("s_waitcnt lgkmcnt(0)\ns_barrier"); tr()
    astamp(a, 1)
    for r in range(W8, 5): wo_dma(a, r)
    clr_check(a, 10)
    if TRACE:
        a(f"""v_lshlrev_b32 v61, 2, v0
s_lshl_b32 s80, s2, 3
s_add_u32 s80, s80, s3
s_lshl_b32 s80, s80, 8
s_add_u32 s80, s80, 0x900000
s_mov_b32 s{R_A}, s{S_WS}
s_mov_b32 s{R_A+1}, s{S_WS+1}
s_mov_b32 s{R_A+2}, 0x1000000
buffer_store_dword v60, v61, {R(R_A)}, s80 offen""")
    astamp(a, 5)
    a("s_waitcnt vmcnt(0)\ns_barrier\ns_branch L_P2")

def qkv_compute(a):
    sRd, sC, sT, sT2 = range(59, 63)
    vT, vT2, vT3 = qT, qT2, qT3
    F = [F0, F1]
    hi_v[0] = max(hi_v[0], 256)
    qkv_scalars(a)
    a(f"s_mul_i32 s{sT}, s{sW4}, 20\ns_add_u32 s{sT}, s{sT}, s{sSL}\ns_mul_i32 s{sT}, s{sT}, {NP1}")
    wline(a, 252, sT, NP1, vT, vT2, vT3, F0)
    a(f"""s_mul_i32 s{sT}, s{sCP}, 320
s_and_b32 s{sT}, s{sT}, 0xffffff80
s_waitcnt lgkmcnt(0)""")
    srd(a, R_B, S_WQKV, 2457600)
    a(f"buffer_load_dword v254, v252, {R(R_B)}, s{sT} offen")
    srd(a, R_C, S_WO, 819200); srd(a, R_WS, S_WS, WS_END); srd(a, R_D, S_DBG, 256)
    for i in range(0, 16*NT, 2): a(f"v_pk_mov_b32 {vr(ACC+i,2)}, 0, 0")
    attn_consts(a)
    a(f"""v_bfe_u32 v{vT}, v{qM}, 1, 3
v_xor_b32 v{vT}, v{vT}, v{qG}
v_lshlrev_b32 v{vT}, 4, v{vT}
v_lshl_add_u32 v{qXb0}, v{qM}, 7, v{vT}
v_xor_b32 v{qXb1}, 64, v{qXb0}
v_bfe_u32 v{vT}, v0, 2, 3
v_mul_u32_u24 v{vT}, 480, v{vT}
v_lshrrev_b32 v{vT2}, 5, v0
v_lshlrev_b32 v{vT2}, 13, v{vT2}
v_add_u32 v{vT2}, {XB}, v{vT2}
s_mul_i32 s{sT}, s{sW4}, 40
v_add3_u32 v{vT}, v{vT}, v{vT2}, s{sT}
v_add_u32 v{vT3}, 3840, v{vT2}
v_and_b32 v{vT2}, 3, v0
v_lshl_add_u32 v{qWb}, v{vT2}, 3, v{vT}
v_cmp_eq_u32 vcc, 2, v{vT2}
v_min_u32 v{vT2}, 2, v{vT2}
v_mul_u32_u24 v{vT2}, 160, v{vT2}
v_add3_u32 v{qDb}, v{vT}, v{vT2}, 32
v_cndmask_b32 v{qDb}, v{qDb}, v{vT3}, vcc
s_mov_b32 s{sRd}, {qslot(0)}
v_add_u32 v{qXa0}, s{sRd}, v{qXb0}
v_add_u32 v{qXa1}, s{sRd}, v{qXb1}
v_add_u32 v{qWa}, s{sRd}, v{qWb}
v_add_u32 v{qDa}, s{sRd}, v{qDb}""")
    tw_gen(a, vT, vT2, vT3, F0)
    a(f"s_lshl_b32 s70, s{sW4}, 12\ns_add_u32 s70, s70, {L_OS}\nv_lshlrev_b32 v{vT}, 4, v0\nv_add_u32 v{vT}, s70, v{vT}")
    for uu in range(4): a(f"ds_write_b128 v{vT}, {vr(TW+4*uu,4)} offset:{1024*uu}")
    ost_setup(a)
    a("s_waitcnt lgkmcnt(0)")
    def reads(fs, s):
        b = F[fs]; r = []
        for t, (reg, off) in enumerate(((qWa, 0), (qWa, 160), (qDa, 0), (qWa, 320))):
            for h in range(2):
                r.append(f"ds_read_b64_tr_b16 {vr(b+FWO+4*t+2*h,2)}, v{reg} offset:{s*16384+h*4096+off}")
        for rt in range(NT):
            r.append(f"ds_read_b128 {vr(b+4*rt,4)}, v{qXa1 if s else qXa0} offset:{2048*rt}")
        return r
    def mfmas(fs, order=range(NT)):
        b = F[fs]; m = []
        for rt in order:
            x = vr(b+4*rt, 4)
            for t in range(4):
                w = vr(b+FWO+4*t, 4); c = vr(A(rt, t), 4)
                m.append(f"{MF} {c}, {w}, {x}, {c}" if t < 3 else f"{MF} {c}, {x}, {w}, {c}")
        return m
    adv = [f"s_add_u32 s{sRd}, s{sRd}, {QSLOT}\ns_cmp_eq_u32 s{sRd}, {3*QSLOT}", f"s_cselect_b32 s{sRd}, 0, s{sRd}\nv_add_u32 v{qXa0}, s{sRd}, v{qXb0}",
           f"v_add_u32 v{qXa1}, s{sRd}, v{qXb1}\nv_add_u32 v{qWa}, s{sRd}, v{qWb}", f"v_add_u32 v{qDa}, s{sRd}, v{qDb}\ns_add_u32 s{sC}, s{sC}, 1"]
    stamp(a, 1)
    a(f"s_mov_b32 s{sC}, 0\ns_barrier")
    hold(a, 4)
    stamp(a, 2)
    for x in reads(0, 0): a(x)
    a("s_waitcnt lgkmcnt(0)")
    a.raw(".p2align 3")
    a.label('Q_LOOP')
    interleave(a, mfmas(0), reads(1, 1) + adv)
    a(f"s_waitcnt lgkmcnt(0)\ns_barrier")
    interleave(a, mfmas(1), reads(0, 0) + [f"s_cmp_lg_u32 s{sC}, 9\ns_nop 0"])
    a("s_waitcnt lgkmcnt(0)\ns_cbranch_scc1 Q_LOOP\ns_barrier\ns_waitcnt vmcnt(0)")
    interleave(a, mfmas(0, range(5)), reads(1, 1))
    a("s_waitcnt lgkmcnt(0)\ns_barrier")
    astamp(a, 1)
    V4 = F1 + FWO; P = F0; DD = F0 + FWO
    def So(u): return F1 + 4*u
    def Kf(u): return A(u, 1)
    def Qf(u): return A(u, 0)
    def pack(u): return pkl(Kf(u), A(u,1)) + pkl(Qf(u), A(u,0)) + pkl(Kf(u)+2, A(u,2)) + pkl(Vp+2+2*u, A(u,3)) + [f"v_pk_mov_b32 {vr(Qf(u)+2,2)}, 0, 0"]
    def tm(u): return f"{MF} {vr(A(u,3),4)}, {vr(Kf(u),4)}, {vr(cI,4)}, 0"
    def sw(u): return [f"v_permlane16_swap_b32 v{Qf(u)+2+q}, v{Kf(u)+2+q}" for q in range(2)]
    def sm_(u):
        r = [f"{MF} {vr(So(u),4)}, {vr(Kf(u),4)}, {vr(Qf(u),4)}, {vr(cBo,4)}"]
        if u: r.append(f"{MF} {vr(A(u,2),4)}, {vr(Kf(u-1),4)}, {vr(Qf(u),4)}, {vr(cBp,4)}")
        return r
    def v4(u): return pkl(V4+2+2*u, A(u,3))
    def pz(u): return f"v_pk_mov_b32 {vr(P+4*u,2)}, 0, 0"
    m = mfmas(1, range(5)) + mfmas(0, (5,)) + mfmas(1, (5,)) + mfmas(0, (6,)) + mfmas(1, (6,))
    interleave(a, m[:8], [pz(0), pz(1), pz(2), pz(3), pz(4), f"s_mov_b32 s70, {f32(20**-0.5 * 1.4426950408889634)}\ns_mov_b32 s71, s70\ns_mov_b32 s72, 0\ns_mov_b32 s73, 0x00ff00ff"])
    interleave(a, m[8:31], pack(0) + pack(1) + pack(2) + pack(3) + pack(4), per=2)
    for x in [tm(0), m[31], tm(1), m[32], sw(0)[0], tm(2), sw(0)[1], m[33], sw(1)[0], tm(3), sw(1)[1], m[34], sw(2)[0], tm(4), sw(2)[1], m[35]]: a(x)
    stamp(a, 3)
    interleave(a, sm_(0) + sm_(1) + sm_(2), pack(5) + [pz(5)], per=2)
    for x in sw(3) + sw(4): a(x)
    interleave(a, [tm(5)] + sm_(3) + sm_(4), pack(6) + [pz(6)], per=2)
    a(f"v_pk_mov_b32 {vr(V4,2)}, 0, 0")
    a(tm(6))
    for x in sw(5) + v4(0) + sw(6): a(x)
    interleave(a, sm_(5) + sm_(6), v4(1) + v4(2) + v4(3) + v4(4), per=2)
    for x in v4(5) + v4(6): a(x)
    astamp(a, 2)
    a("s_mov_b64 exec, s[72:73]")
    for u in range(1, NT):
        for q in (0, 2): a(f"v_pk_mov_b32 {vr(So(u)+q,2)}, {vr(A(u,2)+q,2)}, {vr(A(u,2)+q,2)} op_sel:[0,1]")
    a("s_mov_b64 exec, -1")
    M = [A(u, 2) for u in range(NT)] + [A(6, 2) + 2]
    order = (6, 4, 5, 0, 1, 2, 3)
    for u in order: a(f"v_max3_f32 v{M[u]}, v{So(u)}, v{So(u)+1}, v{So(u)+2}")
    a(f"v_max_f32 v{M[7]}, v{M[6]}, v{So(6)+3}")
    for u in order: a(f"v_max_f32 v{M[u]}, v{M[u]}, v{So(u)+3}")
    S32, S16 = 'v_permlane32_swap_b32', 'v_permlane16_swap_b32'
    a(f"""{S32} v{M[6]}, v{M[7]}
{S32} v{M[4]}, v{M[5]}
{S32} v{M[0]}, v{M[1]}
{S32} v{M[2]}, v{M[3]}
v_max_f32 v{M[6]}, v{M[6]}, v{M[7]}
v_max_f32 v{M[4]}, v{M[4]}, v{M[5]}
v_max_f32 v{M[0]}, v{M[0]}, v{M[1]}
v_max_f32 v{M[2]}, v{M[2]}, v{M[3]}
{S16} v{M[4]}, v{M[6]}
{S16} v{M[0]}, v{M[2]}
v_max_f32 v{M[4]}, v{M[4]}, v{M[6]}
v_max_f32 v{M[0]}, v{M[0]}, v{M[2]}
v_mul_f32 v{M[6]}, s70, v{M[4]}
v_mul_f32 v{M[4]}, s70, v{M[4]}
v_mul_f32 v{M[2]}, s70, v{M[0]}
v_mul_f32 v{M[0]}, s70, v{M[0]}
{S16} v{M[4]}, v{M[6]}
{S16} v{M[0]}, v{M[2]}
v_mov_b32 v{M[5]}, v{M[4]}
v_mov_b32 v{M[1]}, v{M[0]}
v_mov_b32 v{M[3]}, v{M[2]}""")
    def sc(u): return [f"v_pk_fma_f32 {vr(So(u)+2*q,2)}, {vr(So(u)+2*q,2)}, s[70:71], {vr(M[u],2)} op_sel_hi:[1,0,0] neg_lo:[0,0,1] neg_hi:[0,0,1]" for q in range(2)]
    def ex(u): return [f"v_exp_f32 v{So(u)+r}, v{So(u)+r}" for r in range(4)]
    def pc(u): return pkl(P+4*u+2, So(u))
    def ps(us):
        r = ["s_mov_b64 exec, s[72:73]"]
        for u in us: r.append(f"v_pk_mov_b32 {vr(P+4*u,2)}, {vr(P+4*u+2,2)}, {vr(P+4*u+2,2)} op_sel:[0,1]")
        for u in us: r.append(f"v_pk_mov_b32 {vr(P+4*u+2,2)}, 0, 0")
        return r + ["s_mov_b64 exec, -1"]
    def pv(u):
        p = vr(P+4*u, 4)
        return [f"{MF} {vr(A(u,2),4)}, {vr(cOne,4)}, {p}, 0", f"{MF} {vr(A(u,0),4)}, {vr(Vp+2*u,4)}, {p}, 0", f"{MF} {vr(A(u,1),4)}, {vr(V4+2*u,4)}, {p}, 0"]
    def rc(u): return [f"v_rcp_f32 v{A(u,2)}, v{A(u,2)}"]
    def nm(u): return [f"v_pk_mul_f32 {vr(A(u,0)+2*q,2)}, {vr(A(u,0)+2*q,2)}, {vr(A(u,2),2)} op_sel_hi:[1,0]" for q in range(2)]
    def oc(u): return pkl(A(u,3), A(u,0)) + [f"ds_write_b64 v{qOC}, {vr(A(u,3),2)} offset:{u*16*176}"]
    def dd(k, us):
        r = ["s_mov_b64 exec, 0xffff"]
        for n, u in enumerate(us):
            if n: r.append("s_lshl_b64 exec, exec, 16")
            r += [f"v_pk_mul_f32 {vr(DD+4*k+2*q,2)}, {vr(A(u,1)+2*q,2)}, {vr(A(u,2),2)} op_sel_hi:[1,0]" for q in range(2)]
        r.append("s_mov_b64 exec, -1")
        if len(us) < 4: r.append("s_mov_b32 exec_hi, 0xffff")
        r += pkl(DD+4*k, DD+4*k) + [f"ds_write_b64 v{qOD}, {vr(DD+4*k,2)} offset:{k*64*176}"]
        if len(us) < 4: r.append("s_mov_b32 exec_hi, -1")
        return r
    for x in sc(6): a(x)
    a(f"{S32} v{M[4]}, v{M[5]}\n{S32} v{M[0]}, v{M[1]}\n{S32} v{M[2]}, v{M[3]}")
    for x in ex(6) + sc(4) + sc(5) + ex(4) + ex(5) + sc(0) + sc(1) + sc(2) + sc(3) + pc(6) + pc(4) + pc(5) + ps((4, 5, 6)): a(x)
    astamp(a, 3)
    e = ex(0) + ex(1) + ex(2) + ex(3)
    interleave(a, pv(6) + pv(4) + pv(5), e[:9])
    for x in e[9:] + rc(6) + rc(4) + pc(0) + pc(1) + pc(2) + pc(3) + rc(5) + ps((1, 2, 3)): a(x)
    interleave(a, pv(0) + pv(1) + pv(2) + pv(3), nm(6) + nm(4) + nm(5) + oc(6) + oc(4) + oc(5), per=2)
    for x in dd(1, (4, 5, 6)) + rc(0) + rc(1) + rc(2) + rc(3) + nm(0) + nm(1) + nm(2) + nm(3) + oc(0) + oc(1) + oc(2) + oc(3) + dd(0, (0, 1, 2, 3)): a(x)

def attention(a):
    vd = 168
    astamp(a, 5)
    a("s_waitcnt lgkmcnt(0)\ns_barrier")
    if AST: a(f"s_memtime s[{S_ST+12}:{S_ST+13}]")
    for q in range(4): a(f"ds_read_b128 {vr(vd+4*q,4)}, v{vOS1} offset:{176*q}")
    a(f"ds_read_b128 {vr(vd+16,4)}, v{vO6a}\ns_mov_b32 exec_hi, 0x0fffffff")
    for q in range(4):
        a(f"s_mov_b32 exec_lo, s{64+q}\ns_waitcnt lgkmcnt({0 if AST else 4-q})\nbuffer_store_dwordx4 {vr(vd+4*q,4)}, v{vOS2}, {R(R_WS)}, s{74+q} offen sc1")
    a(f"s_mov_b64 exec, -1\ns_waitcnt lgkmcnt(0)\nbuffer_store_dwordx4 {vr(vd+16,4)}, v{vO6g}, {R(R_WS)}, 0 offen sc1")

sA, sN2 = 56, 57
def dft_scalars(a):
    a(f"""s_sub_u32 s{sA}, s{sSL}, 24
s_lshl_b32 s{sN2}, s{sA}, 3
s_lshl_b32 s70, s{sW4}, 1
s_add_u32 s{sN2}, s{sN2}, s70
s_add_u32 s{sN2}, s{sN2}, s{sP}""")

def dft_loader(a):
    sT, sT2, sXo, sKo, sM0X, sM0C = range(58, 64)
    vT, vT2, vT3, vGa, vGr, vGo_ = 2, 3, 4, 5, 6, 7
    vXo = 8; vCo = 12; XG = 20; GW = 28
    dft_scalars(a)
    a(f"""v_lshrrev_b32 v{vT}, 3, v0
v_and_b32 v{vT2}, 7, v0
s_mul_i32 s{sXo}, s{sN2}, 1280
s_lshl_b32 s{sM0X}, s{sW4}, 12""")
    for j in range(4):
        a(f"""v_add_u32 v{vT3}, {8*j}, v{vT}
v_mul_u32_u24 v{vXo+j}, {64*1280}, v{vT3}
v_bfe_u32 v{vT3}, v{vT3}, 1, 3
v_xor_b32 v{vT3}, v{vT3}, v{vT2}
v_lshl_add_u32 v{vXo+j}, v{vT3}, 4, v{vXo+j}""")
        if j: a(f"v_subrev_u32 v{vXo+j}, {1024*j}, v{vXo+j}")
    sFo = 65
    for i in range(5):
        a(f"s_add_u32 s70, s{sRot}, {i}\ns_sub_u32 s71, s70, 5\ns_min_u32 s70, s70, s71\ns_lshl_b32 s{sFo+i}, s70, 7")
    a("s_waitcnt lgkmcnt(0)")
    srd(a, R_A, S_X, 2621440)
    def xd(f):
        for h in range(2):
            a(f"s_add_u32 m0, s{sM0X}, {DSLOT*((f+1)%3) + 16384*h}")
            a(f"s_add_u32 s{sT}, s{sXo}, s{sFo+f}" if h == 0 else f"s_add_u32 s{sT}, s{sT}, 640")
            for j in range(4):
                a(f"buffer_load_dwordx4 v{vXo+j}, {R(R_A)}, s{sT} offen offset:{1024*j} lds")
    sEm = 64
    def cd(f):
        for j in range(5):
            if j == 0: a(f"s_add_u32 m0, s{sM0C}, {DSLOT*((f+1)%3) + 32768}\ns_add_u32 s{sT}, s{sKo}, s{sFo+f}\ns_mov_b32 exec_lo, s{sEm}")
            if j == 4: a("s_add_u32 m0, m0, 4096")
            a(f"buffer_load_dwordx4 v{vCo+j}, {R(R_B)}, s{sT} offen offset:{1024*(j&3)} lds")
            if j == 0: a("s_mov_b32 exec_lo, -1")
    xd(0)
    a(f"""s_lshl_b32 s70, s{sCP}, 2
s_add_u32 s70, s70, s{sW4}
s_cmp_eq_u32 s70, 2
s_cselect_b32 s{sEm}, 0xffffff00, -1
s_cbranch_scc0 L_NOROW
v_mov_b32 v{XG}, 0xbf803f80
v_lshlrev_b32 v{XG+1}, 2, v0
v_and_b32 v{XG+1}, 127, v{XG+1}
v_add_u32 v{XG+1}, {32768+10240}, v{XG+1}
ds_write_b32 v{XG+1}, v{XG}
ds_write_b32 v{XG+1}, v{XG} offset:{DSLOT}
v_add_u32 v{XG+1}, {2*DSLOT}, v{XG+1}
ds_write_b32 v{XG+1}, v{XG}
s_waitcnt lgkmcnt(0)
L_NOROW:""")
    a(f"""s_lshr_b32 s{sKo}, s{sCP}, 1
s_mul_i32 s{sKo}, s{sKo}, 160
s_and_b32 s70, s{sCP}, 1
s_add_u32 s{sKo}, s{sKo}, s70
s_mul_i32 s{sKo}, s{sKo}, 1280
s_and_b32 s70, s{sW4}, 1
s_mul_i32 s70, s70, {40*2560}
s_add_u32 s{sKo}, s{sKo}, s70
s_mul_i32 s{sM0C}, s{sW4}, 5120
s_cmp_lt_u32 s{sW4}, 2
s_cselect_b32 s{R_B}, s{S_HRE}, s{S_HIM}
s_cselect_b32 s{R_B+1}, s{S_HRE+1}, s{S_HIM+1}
s_mov_b32 s{R_B+2}, 819200
s_mov_b32 s{R_B+3}, 0x20000
s_and_b32 s70, s{sW4}, 1
s_lshl_b32 s70, s70, 2""")
    for j in range(5):
        a(f"""v_add_u32 v{vT3}, {8*j}, v{vT}
v_mul_u32_u24 v{vCo+j}, 2560, v{vT3}
v_lshrrev_b32 v{vT3}, 1, v{vT3}
v_add_u32 v{vT3}, s70, v{vT3}
v_and_b32 v{vT3}, 7, v{vT3}
v_xor_b32 v{vT3}, v{vT3}, v{vT2}
v_lshl_add_u32 v{vCo+j}, v{vT3}, 4, v{vCo+j}""")
        if j & 3: a(f"v_subrev_u32 v{vCo+j}, {1024*(j&3)}, v{vCo+j}")
    srd(a, R_WS, S_WS, WS_END); srd(a, R_C, S_WO, 819200); srd(a, R_D, S_DBG, 256)
    wo_setup(a, vT, vT2, vT3)
    g_setup(a, vT, vT2, vT3)
    a(f"""s_lshl_b32 s{sT2}, s{sA}, 2
s_add_u32 s{sT2}, s{sT2}, s{sW4}
s_mul_i32 s{sT2}, s{sT2}, 25600
v_lshlrev_b32 v{vT}, 7, v0
v_mov_b32 v{vT3}, {OOB}
v_cmp_gt_u32 vcc, 50, v0
v_cndmask_b32 v{vT}, v{vT3}, v{vT}, vcc""")
    cd(0); xd(1)
    stamp(a, 1)
    a("s_waitcnt vmcnt(8)\ns_barrier")
    cd(1); xd(2)
    a("s_waitcnt vmcnt(8)\ns_barrier")
    cd(2); xd(3)
    a("s_waitcnt vmcnt(8)\ns_barrier")
    cd(3); xd(4)
    a("s_waitcnt vmcnt(8)\ns_barrier")
    cd(4)
    for q in range(NPD): a(f"buffer_load_dword v{vT3}, v{vT}, {R(R_C)}, s{sT2} offen\ns_add_u32 s{sT2}, s{sT2}, 6400")
    sched = {0: (0,0,0,0), 1: (1,1,1,2), 2: (2,1,1,1), 3: (0,1,1,1), 4: (1,1,1,0)}[DWS]
    nr = [0]
    def rounds(n):
        for _ in range(n): wo_dma(a, nr[0]); nr[0] += 1
    rounds(sched[0])
    a(f"s_waitcnt vmcnt({NPD + 5*sched[0]})\ns_barrier")
    stamp(a, 2)
    clr_read(a)
    rounds(sched[1])
    a("s_barrier")
    rounds(sched[2])
    clr_check(a, 20)
    a("s_barrier")
    rounds(sched[3])
    a("s_barrier")
    stamp(a, 3)
    a("s_cmp_lg_u32 s3, 4\ns_cbranch_scc1 L_NOPUB")
    flag_store(a, 20, '0xff')
    a("L_NOPUB:")
    rounds(5 - nr[0])
    tw_gen(a, 20, 21, 22, 23)
    a("s_waitcnt vmcnt(0)\ns_barrier\ns_branch L_P2")

def dft_compute(a):
    V = RegAlloc('v', 2, 256)
    sKo, sT, sT2 = range(58, 61)
    vM, vG, vT, vT2, vT3 = [V.alloc() for _ in range(5)]
    vXa0, vXa1, vCa0, vCa1, vSp = [V.alloc() for _ in range(5)]
    SEL = V.alloc(10, 2)
    acc = V.alloc(80, 4)
    FC = [V.alloc(40, 4), V.alloc(40, 4)]
    RW = V.alloc(16, 4); fRe = V.alloc(4, 4); fIm = V.alloc(4, 4)
    TT = V.alloc(16, 4); XF = V.alloc(16, 4)
    Sb, Sa, Nb, Na = SEL, SEL+2, SEL+4, SEL+6
    def A_(ct, rt): return acc + 8*ct + 4*rt
    dft_scalars(a)
    a(f"""s_lshr_b32 s{sKo}, s{sCP}, 1
s_mul_i32 s{sKo}, s{sKo}, 160
s_and_b32 s70, s{sCP}, 1
s_add_u32 s{sKo}, s{sKo}, s70
s_mul_i32 s{sKo}, s{sKo}, 1280
s_and_b32 s70, s{sW4}, 1
s_mul_i32 s70, s70, {40*2560}
s_add_u32 s{sKo}, s{sKo}, s70
v_mul_u32_u24 v{vT}, 52, v0
v_lshrrev_b32 v{vT}, 8, v{vT}
v_mul_u32_u24 v{vT}, {2560-640}, v{vT}
v_lshl_add_u32 v{vT}, v0, 7, v{vT}
v_mov_b32 v{vT3}, {OOB}
v_cmp_gt_u32 vcc, 25, v0
v_cndmask_b32 v{vT}, v{vT3}, v{vT}, vcc
s_mul_i32 s{sT}, s{sA}, {5*2560}
s_add_u32 s{sT}, s{sT}, s{sKo}
s_waitcnt lgkmcnt(0)
s_cmp_lt_u32 s{sW4}, 2
s_cselect_b32 s{R_B}, s{S_HRE}, s{S_HIM}
s_cselect_b32 s{R_B+1}, s{S_HRE+1}, s{S_HIM+1}
s_mov_b32 s{R_B+2}, 819200
s_mov_b32 s{R_B+3}, 0x20000
buffer_load_dword v{RW}, v{vT}, {R(R_B)}, s{sT} offen""")
    assert all((q*52) >> 8 == q//5 for q in range(25))
    if PRE:
        srd(a, R_C, S_WO, 819200)
        a(f"""s_sub_u32 s70, s2, 192
s_lshl_b32 s70, s70, 2
s_add_u32 s70, s70, s{sW4}
s_mul_i32 s70, s70, 3200
v_lshlrev_b32 v{vT}, 7, v0
v_cndmask_b32 v{vT}, v{vT3}, v{vT}, vcc
buffer_load_dword v{RW+1}, v{vT}, {R(R_C)}, s70 offen""")
    srd(a, R_C, S_SRE, 8388608); srd(a, R_D, S_SIM, 8388608); srd(a, R_WS, S_WS, WS_END)
    a(f"""v_and_b32 v{vM}, 15, v0
v_lshrrev_b32 v{vG}, 4, v0
v_lshrrev_b32 v{vT}, 1, v{vM}
s_lshl_b32 s{sT}, s{sW4}, 3
v_add_u32 v{vT}, s{sT}, v{vT}
v_lshlrev_b32 v{vT}, 18, v{vT}
v_lshl_add_u32 v{vT}, v{vG}, 3, v{vT}
buffer_load_dwordx2 {vr(fRe,2)}, v{vT}, {R(R_C)}, 0 offen
buffer_load_dwordx2 {vr(fRe+2,2)}, v{vT}, {R(R_C)}, 0 offen offset:32
buffer_load_dwordx2 {vr(fIm,2)}, v{vT}, {R(R_D)}, 0 offen
buffer_load_dwordx2 {vr(fIm+2,2)}, v{vT}, {R(R_D)}, 0 offen offset:32""")
    if PXD:
        srd(a, R_A, S_X, 2621440)
        a(f"""v_and_b32 v{vT}, 31, v0
v_mul_u32_u24 v{vT}, {64*1280}, v{vT}
v_lshrrev_b32 v{vT2}, 5, v0
v_mul_u32_u24 v{vT2}, 640, v{vT2}
v_add_u32 v{vT}, v{vT}, v{vT2}
s_mul_i32 s{sT}, s{sN2}, 1280""")
        for i in range(1, 1+PXD):
            a(f"s_add_u32 s70, s{sRot}, {i}\ns_sub_u32 s71, s70, 5\ns_min_u32 s70, s70, s71\ns_lshl_b32 s70, s70, 7\ns_add_u32 s70, s70, s{sT}")
            a(f"buffer_load_dword v{RW+2}, v{vT}, {R(R_A)}, s70 offen")
    for i in range(0, 80, 2): a(f"v_pk_mov_b32 {vr(acc+i,2)}, 0, 0")
    a(f"""s_lshl_b32 s70, s3, 8
s_add_u32 s70, s70, s{sSL}
s_cmp_lg_u32 s70, 31
s_cbranch_scc1 L_NOCLR
v_lshlrev_b32 v{vT}, 7, v0
s_and_b32 s70, s2, 7
s_lshl_b32 s70, s70, 13
s_add_u32 s70, s70, {WS_FLAG}
buffer_store_dwordx4 {vr(acc,4)}, v{vT}, {R(R_WS)}, s70 offen sc1
L_NOCLR:""")
    a(f"""v_bfe_u32 v{vT}, v{vM}, 1, 3
v_xor_b32 v{vT}, v{vT}, v{vG}
v_lshlrev_b32 v{vT}, 4, v{vT}
v_lshl_add_u32 v{vT}, v{vM}, 7, v{vT}
s_lshl_b32 s{sT}, s{sW4}, 12
s_add_u32 s{sT}, s{sT}, {DSLOT}
v_add_u32 v{vXa0}, s{sT}, v{vT}
v_xor_b32 v{vXa1}, 64, v{vXa0}
v_add_u32 v{vCa0}, {DSLOT+32768}, v{vT}
v_xor_b32 v{vCa1}, 64, v{vCa0}
s_cmp_eq_u32 s{sCP}, 0
s_cselect_b32 s66, 0x00010001, 0
s_mov_b32 s67, s66
v_lshlrev_b32 v{vT}, 2, v{vG}
v_sub_u32 v{vT}, v{vM}, v{vT}
s_bitcmp1_b32 s{sCP}, 0
s_cselect_b32 s70, 0x80008000, 0""")
    for z in (0, 4, 8): a(f"v_pk_mov_b32 {vr(SEL+z,2)}, 0, 0")
    for pr in range(2):
        a(f"""v_mov_b32 v{vT2}, 0x3f80
v_cmp_eq_u32 vcc, {2*pr}, v{vT}
v_cndmask_b32 v{SEL+2+pr}, 0, v{vT2}, vcc
v_mov_b32 v{vT2}, 0x3f800000
v_cmp_eq_u32 vcc, {2*pr+1}, v{vT}
v_cndmask_b32 v{SEL+2+pr}, v{SEL+2+pr}, v{vT2}, vcc
v_xor_b32 v{SEL+6+pr}, s70, v{SEL+2+pr}""")
    a("s_waitcnt vmcnt(0)")
    srd(a, R_D, S_DBG, 256)
    a(f"""s_lshl_b32 s70, s3, 8
s_add_u32 s70, s70, s{sSL}
s_cmp_lg_u32 s70, 31
s_cbranch_scc1 L_NOCLR2
s_and_b32 s70, s2, 7
s_lshl_b32 s70, s70, 2
v_mov_b32 v{vT}, 1
s_mov_b64 exec, 1
buffer_store_dword v{vT}, v{acc}, {R(R_D)}, s70 offen sc1
s_mov_b64 exec, -1
L_NOCLR2:""")
    def rreads(s): return [f"ds_read_b128 {vr(RW+8*rt+4*h,4)}, v{vXa1 if s else vXa0} offset:{16384*h+2048*rt}" for rt in range(2) for h in range(2)]
    def creads(s): return [f"ds_read_b128 {vr(FC[s]+4*ct,4)}, v{vCa1 if s else vCa0} offset:{2048*ct}" for ct in range(10)]
    def foldm():
        m = []
        for rt in range(2):
            for t, S_ in enumerate((Sa, Sb)): m.append(f"{MF} {vr(TT+8*rt+4*t,4)}, {vr(S_,4)}, {vr(RW+8*rt,4)}, 0")
        for rt in range(2):
            for t, N_ in enumerate((Na, Nb)): m.append(f"{MF} {vr(TT+8*rt+4*t,4)}, {vr(N_,4)}, {vr(RW+8*rt+4,4)}, {vr(TT+8*rt+4*t,4)}")
        return m
    def packx(s): return sum((pkl(XF+8*s+4*rt+2*t, TT+8*rt+4*t) for rt in range(2) for t in range(2)), [])
    def mainm(s):
        m = []
        for ct in range(10):
            for rt in range(2):
                c = vr(A_(ct, rt), 4)
                m.append(f"{MF} {c}, {vr(XF+8*s+4*rt,4)}, {vr(FC[s]+4*ct,4)}, {c}")
        return m
    def step(s, nxt):
        m = mainm(s)
        if not nxt:
            for x in m: a(x)
            return
        cr = creads(1-s)
        interleave(a, m[:9], rreads(1-s) + cr[:5])
        a("s_waitcnt lgkmcnt(5)")
        interleave(a, foldm(), cr[5:])
        interleave(a, m[9:], packx(1-s), start=3, per=2)
        a("s_waitcnt lgkmcnt(0)")
    def adv(f):
        d = DSLOT if (f+2) % 3 else -2*DSLOT
        op = 'v_add_u32' if d > 0 else 'v_subrev_u32'
        for r_ in (vXa0, vXa1, vCa0, vCa1): a(f"{op} v{r_}, {abs(d)}, v{r_}")
    stamp(a, 1)
    a("s_barrier")
    stamp(a, 2)
    for x in rreads(0) + creads(0): a(x)
    a("s_waitcnt lgkmcnt(10)")
    for x in foldm(): a(x)
    for x in packx(0): a(x)
    a("s_waitcnt lgkmcnt(0)")
    for f in range(5):
        step(0, True)
        if f < 4: adv(f)
        a("s_barrier")
        step(1, f < 4)
    stamp(a, 3)
    A1, A2 = RW, RW + 4
    a(f"""v_and_b32 v{vT}, 1, v0
v_cmp_eq_u32 vcc, 1, v{vT}
s_mul_i32 s{sT}, s{sW4}, {10*1024}
v_lshlrev_b32 v{vT2}, 4, v0
v_add_u32 v{vT2}, {L_U}, v{vT2}
v_add_u32 v{vT3}, s{sT}, v{vT2}""")
    for q in range(4):
        a(f"""v_cndmask_b32 v{A1+q}, v{fRe+q}, v{fIm+q}, vcc
v_xor_b32 v{fIm+q}, 0x80008000, v{fIm+q}
v_cndmask_b32 v{A2+q}, v{fIm+q}, v{fRe+q}, vcc""")
    U = FC[0]
    for ct in range(10):
        a(pk(U+4*ct, A_(ct, 0))); a(pk(U+4*ct+2, A_(ct, 1)))
        a(f"ds_write_b128 v{vT3}, {vr(U+4*ct,4)} offset:{1024*ct}")
    vGo, vGe = vXa1, vCa0
    a(f"""s_lshl_b32 s{sT}, s{sW4}, 7
s_lshl_b32 s{sT2}, s{sA}, 1
s_add_u32 s{sT}, s{sT}, s{sT2}
s_add_u32 s{sT}, s{sT}, s{sP}
s_mul_i32 s{sT}, s{sT}, {GP*16}
s_add_u32 s{sT}, s{sT}, {WS_G}
v_mul_u32_u24 v{vGe}, {32*GP*16}, v{vG}
v_add_u32 v{vGe}, s{sT}, v{vGe}
s_and_b32 s{sT}, s{sCP}, 1
s_mul_i32 s{sT}, s{sT}, {168*16}
s_lshr_b32 s{sT2}, s{sCP}, 1
s_mul_i32 s{sT2}, s{sT2}, 1280
s_add_u32 s{sT2}, s{sT2}, s{sT}
v_lshl_add_u32 v{vGo}, v{vM}, 4, v{vGe}
v_add_u32 v{vGo}, s{sT2}, v{vGo}
v_add_u32 v{vGe}, {160*16}, v{vGe}
v_mov_b32 v{vXa0}, {OOB}
v_cndmask_b32 v{vGe}, v{vXa0}, v{vGe}, s[66:67]
s_mov_b32 s{sT}, 0
s_mov_b32 s{sT2}, {16*GP*16}
s_waitcnt lgkmcnt(0)
s_barrier""")
    UB = [FC[0], FC[1]]
    order = (1, 2, 3, 4, 0)
    def rd(i):
        ct = order[i]; b = UB[i & 1]; r = []
        for w in range(4):
            r.append(f"ds_read_b128 {vr(b+8*w,4)}, v{vT2} offset:{w*10240+1024*ct}")
            r.append(f"ds_read_b128 {vr(b+8*w+4,4)}, v{vT2} offset:{w*10240+1024*(ct+5)}")
        return r
    def fin(i, vo, off):
        d = acc + 24*(i % 3); o = d + 16; r = []
        for w in range(4): r.append(f"v_cvt_pk_bf16_f32 v{o+w}, v{d+4*w}, v{d+4*w+1}")
        r.append(f"buffer_store_dwordx4 {vr(o,4)}, v{vo}, {R(R_WS)}, s{sT} offen offset:{off} sc1")
        for w in range(4): r.append(f"v_cvt_pk_bf16_f32 v{o+4+w}, v{d+4*w+2}, v{d+4*w+3}")
        r.append(f"buffer_store_dwordx4 {vr(o+4,4)}, v{vo}, {R(R_WS)}, s{sT2} offen offset:{off} sc1")
        return r
    for x in rd(0): a(x)
    for i in range(5):
        a("s_waitcnt lgkmcnt(0)")
        if i < 4:
            for x in rd(i+1): a(x)
        b = UB[i & 1]; d = acc + 24*(i % 3)
        m1 = [f"{MF} {vr(d+4*w,4)}, {vr(A1,4)}, {vr(b+8*w,4)}, 0" for w in range(4)]
        m2 = [f"{MF} {vr(d+4*w,4)}, {vr(A2,4)}, {vr(b+8*w+4,4)}, {vr(d+4*w,4)}" for w in range(4)]
        fl = fin(i-1, vGo, 256*order[i-1]) if i else []
        if i < 4:
            interleave(a, m1 + m2, fl, per=2, start=1)
        else:
            d5 = acc + 24*(5 % 3)
            m0 = [f"{MF} {vr(d5+4*w,4)}, {vr(A1,4)}, {vr(b+8*w+4,4)}, 0" for w in range(4)]
            interleave(a, m0 + m1, fl, per=2, start=1)
            a("s_mov_b64 exec, s[66:67]")
            for w in range(4): a(f"v_pk_mov_b32 {vr(b+8*w+4,2)}, 0, 0\nv_pk_mov_b32 {vr(b+8*w+6,2)}, 0, 0")
            a("s_mov_b64 exec, -1")
            interleave(a, m2, fin(5, vGe, 0), per=2)
    for x in fin(4, vGo, 0): a(x)
    a("s_waitcnt vmcnt(0)\ns_barrier")
    a("s_barrier\ns_branch L_P2")

def phase2(a):
    V = RegAlloc('v', 2, 256)
    sHH, sT, sT2, sT3, sSg, sOB, sQ0, sQ1, sFl, sEx = range(56, 66)
    vM, vG, vT, vT2, vT3, vRow, vWa, vWs = [V.alloc() for _ in range(8)]
    V.alloc(10)
    vOa, vPo, vEx, vGa = [V.alloc() for _ in range(4)]
    vGl = V.alloc(2, 2); vOut = V.alloc(2)
    WR = V.alloc(20*NREG, 4)
    accB = V.alloc(20, 4); fO = V.alloc(20, 4); FW = V.alloc(20, 4); vPl = V.alloc(4, 4); fT = V.alloc(16, 4)
    vG1 = V.alloc(4, 2); vX = V.alloc(4)
    vOo = 10; vYa = 15
    FA = [vX, vX+1, None, vX+2, vX+3]
    assert fT == TW
    hi_v[0] = max(hi_v[0], V.hi)
    a.label('L_P2')
    stamp(a, 4)
    dpoll = f"buffer_load_dwordx4 {vr(vPl,4)}, v{vPo}, {R(R_WS)}, s{sEx} offen sc1"
    a(f"""s_and_b32 s{sEx}, s2, 7
s_lshl_b32 s{sEx}, s{sEx}, 13
s_add_u32 s{sEx}, s{sEx}, {WS_FLAG}
v_lshlrev_b32 v{vPo}, 7, v0
""" + "\n".join(f"v_mov_b32 v{fO+8+j}, v{vGoL+j}" for j in range(5)))
    def wreads(dst, reg, j):
        return [f"ds_read_b64_tr_b16 {vr(dst+4*ct+2*h,2)}, v{reg} offset:{j*5120+h*1280+32*ct}" for ct in range(5) for h in range(2)]
    def grp(j): return wreads(WR+20*j, vWa, j) if j < NREG else wreads(FW, vWs, 0)
    a(f"""s_lshr_b32 s{sHH}, s3, 2
v_and_b32 v{vM}, 15, v0
v_lshrrev_b32 v{vG}, 4, v0
v_bfe_u32 v{vT}, v0, 2, 3
v_lshrrev_b32 v{vT2}, 5, v0
v_lshl_add_u32 v{vT}, v{vT2}, 4, v{vT}
v_mul_u32_u24 v{vT}, 160, v{vT}
v_and_b32 v{vT2}, 3, v0
v_lshl_add_u32 v{vT}, v{vT2}, 3, v{vT}
s_mul_i32 s{sT2}, s{sHH}, {NREG*5120}
v_add_u32 v{vWa}, s{sT2}, v{vT}
s_mul_i32 s{sT2}, s{sHH}, {(10-NREG)*5120}
s_add_u32 s{sT2}, s{sT2}, {14*5120}
v_add_u32 v{vWs}, s{sT2}, v{vT}""")
    fill = []
    fill.append(f"""v_and_b32 v{vT}, 1, v{vM}
v_mul_u32_u24 v{vT}, 640, v{vT}
v_lshrrev_b32 v{vT2}, 1, v{vM}
v_lshl_add_u32 v{vT}, v{vT2}, 4, v{vT}
v_mul_u32_u24 v{vT2}, 5120, v{vG}
s_mov_b32 s{sT}, {L_G}
v_add3_u32 v{vGa}, v{vT}, v{vT2}, s{sT}
s_lshl_b32 s{sT}, s{sW4}, 6
s_add_u32 s{sT}, s{sT}, {L_GT}
v_lshlrev_b32 v{vRow}, 2, v{vM}
v_add_u32 v{vRow}, s{sT}, v{vRow}
s_lshl_b32 s{sSg}, s{sP}, 12
s_add_u32 s{sSg}, s{sSg}, s{sEx}
s_mul_i32 s{sT}, s{sK1}, 1280
s_mul_i32 s{sT2}, s{sC2}, 160
s_add_u32 s{sT}, s{sT}, s{sT2}
s_lshl_b32 s{sT2}, s3, 6
s_mov_b32 s{sT3}, {L_GT}""")
    assert all((q*6554) >> 16 == q//10 for q in range(1100))
    for q in range(2):
        fill.append(f"""v_add_u32 v{vT}, s{sT2}, v0
v_add_u32 v{vT}, {512*q}, v{vT}
v_mul_u32_u24 v{vT2}, 6554, v{vT}
v_lshrrev_b32 v{vT2}, 16, v{vT2}
v_lshl_add_u32 v{vG1+2*q+1}, v{vT2}, 2, s{sT3}
v_mul_u32_u24 v{vT3}, 10, v{vT2}
v_sub_u32 v{vT}, v{vT}, v{vT3}
v_mul_u32_u24 v{vT3}, {32*1280}, v{vT2}
v_lshl_add_u32 v{vT3}, v{vT}, 4, v{vT3}
v_add_u32 v{vOut+q}, s{sT}, v{vT3}
v_mul_u32_u24 v{vT3}, {EXP}, v{vT2}
v_lshl_add_u32 v{vT}, v{vT}, 5, v{vT3}
v_lshrrev_b32 v{vT2}, 4, v{vT2}
v_mul_u32_u24 v{vT3}, {10240-16*EXP}, v{vT2}
v_add_u32 v{FA[3*q]}, v{vT}, v{vT3}
v_add_u32 v{vT2}, 1, v{vT2}
v_lshrrev_b32 v{vT2}, 2, v{vT2}
v_mul_u32_u24 v{vT2}, {L_OB7-71680}, v{vT2}
v_add_u32 v{FA[3*q+1]}, v{FA[3*q]}, v{vT2}""")
    s_ = ""
    for P in range(2):
        s_ += f"""s_lshl_b32 s{sT}, s{sHH}, 1
s_add_u32 s{sT}, s{sT}, s{sC2}
s_add_u32 s{sT}, s{sT}, {P}
s_and_b32 s{sT}, s{sT}, 3
s_lshl_b32 s{sT2}, s{sK1}, 2
s_add_u32 s{sT}, s{sT}, s{sT2}
s_lshl_b32 s{sT}, s{sT}, 3
s_add_u32 s{sT}, s{sT}, s{sW4}
s_mul_i32 s{sQ0+P}, s{sT}, 2560
"""
    fill.append(s_ + f"""s_mul_i32 s{sOB}, s3, 10240
s_cmp_eq_u32 s3, 7
s_cselect_b32 s{sOB}, {L_OB7}, s{sOB}
v_and_b32 v{vT}, 1, v{vG}
v_lshrrev_b32 v{vT2}, 1, v{vG}
v_xor_b32 v{vT2}, v{vT2}, v{vT}
v_mul_u32_u24 v{vT}, 2560, v{vT}
v_lshl_add_u32 v{vT}, v{vT2}, 4, v{vT}
v_mul_u32_u24 v{vT2}, 160, v{vM}
v_add3_u32 v{vOa}, v{vT}, v{vT2}, s{sOB}
v_mul_u32_u24 v{vEx}, {EXP}, v{vM}
v_lshl_add_u32 v{vEx}, v{vG}, 4, v{vEx}
v_add_u32 v{vEx}, s{sOB}, v{vEx}""")
    for j in range(NPRE):
        if j: a("s_waitcnt lgkmcnt(5)")
        for x in grp(j): a(x)
        if fill: a(fill.pop(0))
    for x in fill: a(x)
    a(f"""s_cmp_ge_u32 s{sSL}, 20
s_cselect_b32 s{sT3}, 0, 4
s_cmp_ge_u32 s3, s{sT3}
s_cbranch_scc1 L_NOFLAG
s_lshl_b32 s{sFl}, 0x55, s{sP}
v_mov_b32 v{vT}, {L_CNT}
v_mov_b32 v{vT2}, 1
s_mov_b64 exec, 1
{f"s_memrealtime s[{S_ST+4}:{S_ST+5}]" if DST == 1 else ""}
s_waitcnt vmcnt(0)
{f"s_memrealtime s[{S_ST+2}:{S_ST+3}]" if DST == 1 else ""}
ds_add_rtn_u32 v{vT2}, v{vT}, v{vT2}
s_waitcnt lgkmcnt(0)
v_readfirstlane_b32 s70, v{vT2}
s_mov_b64 exec, -1
s_cmp_lg_u32 s70, 3
s_cbranch_scc1 L_NOFLAG""")
    flag_store(a, vT, f"s{sFl}")
    a(f"""L_NOFLAG:
s_cmp_lg_u32 s3, 4
s_cbranch_scc1 L_NOEP
s_sub_u32 s70, s{sSL}, 20
s_lshl_b32 s70, 1, s70
s_cmp_ge_u32 s{sSL}, 20
s_cselect_b32 s{sFl}, s70, 0xfffff""")
    if EPOLL: a(f"""s_mov_b32 exec_hi, 0
s_mov_b32 exec_lo, s{sFl}
buffer_load_dwordx4 {vr(fO,4)}, v{vPo}, {R(R_WS)}, s{sSg} offen sc1
s_mov_b64 exec, -1""")
    a(f"s_lshl_b32 s70, s{sSL}, 2\ns_add_u32 s70, s70, s{sCP}\nv_lshlrev_b32 v{vT}, 2, v0")
    for q in range(4):
        a(f"v_cmp_eq_u32 vcc, s70, v{vT}\nv_cndmask_b32 v{fO+4+q}, 0, 1, vcc\nv_add_u32 v{vT}, 1, v{vT}")
    a("L_NOEP:")
    stamp(a, 5)
    srd(a, R_A, S_OUT, 2621440)
    a(f"""v_lshlrev_b32 v{vOo}, 4, v0
v_mov_b32 v{vOo+1}, v{vOo}
v_xor_b32 v{vT}, 16, v{vOo}
v_add_u32 v{vOo+3}, {10240 + (192-160)*16 - 3072}, v{vT}
v_add_u32 v{vOo+4}, {10240 + (256-160)*16}, v{vT}
v_add_u32 v{vT}, {10240 + (128-160)*16 - 2048}, v{vT}
v_cmp_gt_u32 vcc, 32, v0
v_cndmask_b32 v{vOo+2}, v{vT}, v{vOo}, vcc""")
    for j in range(NPRE, GD):
        a("s_waitcnt lgkmcnt(5)")
        for x in grp(j): a(x)
    a(f"""s_cmp_lg_u32 s3, 5
s_cbranch_scc1 L_GDONE
s_mov_b32 exec_lo, 0xfff00000
s_mov_b32 exec_hi, 0xfff00000
s_mov_b32 s71, 0
{f"s_memrealtime s[{S_ST+2}:{S_ST+3}]" if DST == 2 else ""}
{dpoll}
s_waitcnt vmcnt(0)
L_DPOLL:
v_and_b32 v{vPl}, v{vPl}, v{vPl+1}
v_and_b32 v{vPl+2}, v{vPl+2}, v{vPl+3}
v_and_b32 v{vPl}, v{vPl}, v{vPl+2}
v_cmp_ne_u32 vcc, 1, v{vPl}
s_cbranch_vccz L_GOK
s_sleep 16
{dpoll}
s_add_u32 s71, s71, 1
s_cmp_gt_u32 s71, {SPIN}
s_waitcnt vmcnt(0)
s_cbranch_scc0 L_DPOLL
L_GOK:
{f"s_memrealtime s[{S_ST+4}:{S_ST+5}]" if DST == 2 else ""}
{f"s_mov_b32 s{S_ST+6}, s71" if DST == 2 else ""}
s_mov_b64 exec, -1""")
    for w in range(4):
        a(f"s_mov_b32 m0, {L_G + 5120*w}\ns_mov_b32 s70, {w*4*GP*16}")
        for j in range(5):
            if j == 4: a("s_add_u32 m0, m0, 4096")
            a(f"buffer_load_dwordx4 v{fO+8+j}, {R(R_WS)}, s70 offen offset:{1024*(j&3)} sc1 lds")
    a(f"""s_lshl_b32 s70, s{sK1}, 8
s_add_u32 s70, s70, {WS_GATE}
s_mov_b32 m0, {L_GT}
v_lshlrev_b32 v{vT}, 2, v0
buffer_load_dword v{vT}, {R(R_WS)}, s70 offen sc1 lds
L_GDONE:""")
    for j in range(GD, 8):
        a("s_waitcnt lgkmcnt(5)")
        for x in grp(j): a(x)
    mpoll = f"buffer_load_dwordx4 {vr(fO,4)}, v{vPo}, {R(R_WS)}, s{sSg} offen sc1"
    a(f"""s_cmp_lg_u32 s3, 4
s_cbranch_scc1 L_GO
s_mov_b32 s71, 0
s_mov_b32 exec_hi, 0
s_mov_b32 exec_lo, s{sFl}
{'s_sleep '+str(PDL) if PDL else ''}
{f"s_memrealtime s[{S_ST+2}:{S_ST+3}]" if DST == 2 else ""}
{'' if EPOLL else mpoll}
L_POLL:
s_waitcnt vmcnt(0)
v_or_b32 v{fO}, v{fO}, v{fO+4}
v_or_b32 v{fO+1}, v{fO+1}, v{fO+5}
v_or_b32 v{fO+2}, v{fO+2}, v{fO+6}
v_or_b32 v{fO+3}, v{fO+3}, v{fO+7}
v_and_b32 v{fO}, v{fO}, v{fO+1}
v_and_b32 v{fO+2}, v{fO+2}, v{fO+3}
v_and_b32 v{fO}, v{fO}, v{fO+2}
v_cmp_ne_u32 vcc, 1, v{fO}
s_cbranch_vccz L_POLLED
s_sleep {PSL}
L_POLL2:
{mpoll}
s_add_u32 s71, s71, 1
s_cmp_gt_u32 s71, {SPIN}
s_cbranch_scc0 L_POLL
s_mov_b32 exec_lo, 0xfffff
L_POLLED:
s_cmp_lg_u32 exec_lo, 0xfffff
s_mov_b32 exec_lo, 0xfffff
s_cbranch_scc1 L_POLL2
{f"s_memrealtime s[{S_ST+4}:{S_ST+5}]" if DST == 2 else ""}
{f"s_mov_b32 s{S_ST+6}, s71" if DST == 2 else ""}
s_mov_b64 exec, -1
L_GO:
s_waitcnt vmcnt(0) lgkmcnt(0)
s_barrier""")
    hold(a, 2)
    stamp(a, 6)
    def odl(P):
        r = []
        for j in range(5):
            pre = f"s_add_u32 m0, s{sOB}, {5120*P}\n" if j == 0 else "s_add_u32 m0, m0, 4096\n" if j == 4 else ""
            r.append(pre + f"buffer_load_dwordx4 v{vOo+j}, {R(R_WS)}, s{sQ0+P} offen offset:{1024*(j&3)} sc1 lds")
        return r
    def odma(P, n=5):
        for x in odl(P)[:n]: a(x)
    a(f"""s_cmp_eq_u32 s{sHH}, 0
s_cbranch_scc0 L_Y""")
    odma(0); odma(1, NE)
    for i in range(0, 20, 2): a(f"v_pk_mov_b32 {vr(accB+i,2)}, 0, 0")
    a(f"s_branch L_NOY\nL_Y:\ns_setprio {YP1}\nds_read_b32 v{vGl}, v{vRow}")
    seq = [(uu, ct) for uu in range(4) for ct in range(5)]
    ring = [fO+4*k for k in range(5)] + [vPl, 16]
    def rd_(n): uu, ct = seq[n]; return f"ds_read_b128 {vr(ring[n%7],4)}, v{vGa} offset:{1280*uu+128*ct}"
    for n in range(7): a(rd_(n))
    if YORD == 1: odma(0)
    gmy = [f"v_min_f32 v{vGl}, 0x41f00000, v{vGl}", f"v_mul_f32 v{vGl}, 0x3fb8aa3b, v{vGl}", f"v_exp_f32 v{vGl}, v{vGl}"]
    for n in range(20):
        uu, ct = seq[n]
        a(f"s_waitcnt lgkmcnt({min(6, 19-n)})")
        a(f"{MF} {vr(accB+4*ct,4)}, {vr(ring[n%7],4)}, {vr(fT+4*uu,4)}, {'0' if uu == 0 else vr(accB+4*ct,4)}")
        if n + 7 < 20: a(rd_(n+7))
        elif gmy: a(gmy.pop(0))
    for i in range(0, 20, 2): a(f"v_pk_mul_f32 {vr(accB+i,2)}, {vr(accB+i,2)}, {vr(vGl,2)} op_sel_hi:[1,0]")
    if YP2: a(f's_setprio {YP2}')
    if YORD == 0: odma(0)
    odma(1, NE)
    a(f"s_setprio {YPRI}\nL_NOY:\nds_read_b32 v{vG1}, v{vG1+1}\nds_read_b32 v{vG1+2}, v{vG1+3}")
    FO = [fO, WR + 40]
    def oreads(P): return [f"ds_read_b128 {vr(FO[P]+4*q,4)}, v{vOa} offset:{5120*P+32*q}" for q in range(5)]
    Wbuf = {u: WR + 20*u for u in range(NREG)}
    Wbuf[7] = FW; Wbuf[8] = WR; Wbuf[9] = WR + 20
    def mm(u):
        B = vr(FO[u//5] + 4*(u % 5), 4)
        return [f"{MF} {vr(accB+4*ct,4)}, {vr(Wbuf[u]+4*ct,4)}, {B}, {vr(accB+4*ct,4)}" for ct in range(5)]
    if P2ST: stamp(a, 1)
    a(f"s_waitcnt vmcnt({NE})")
    if P2ST: stamp(a, 2); a("s_waitcnt lgkmcnt(0)")
    for x in oreads(0): a(x)
    for x in odl(1)[NE:]: a(x)
    a("s_waitcnt lgkmcnt(4)")
    for x in mm(0): a(x)
    a("s_waitcnt lgkmcnt(0)")
    interleave(a, mm(1), wreads(WR, vWs, 1), per=2)
    interleave(a, mm(2) + mm(3), wreads(WR+20, vWs, 2))
    a("s_waitcnt vmcnt(0) lgkmcnt(8)")
    if P2ST: stamp(a, 3)
    for x in oreads(1): a(x)
    for x in mm(4): a(x)
    a("s_waitcnt lgkmcnt(0)")
    gm = []
    for v_ in (vG1, vG1+2):
        gm += [f"v_min_f32 v{v_}, 0x41f00000, v{v_}", f"v_mul_f32 v{v_}, 0x3fb8aa3b, v{v_}", f"v_exp_f32 v{v_}, v{v_}", f"v_add_f32 v{v_}, 1.0, v{v_}", f"v_rcp_f32 v{v_}, v{v_}"]
    interleave(a, sum((mm(u) for u in range(5, 10)), []), gm)
    if P2ST: stamp(a, 4)
    for ct in range(5): a(f"ds_write_b128 v{vEx}, {vr(accB+4*ct,4)} offset:{64*ct}")
    a("s_waitcnt lgkmcnt(0)\ns_barrier")
    if P2ST: stamp(a, 5)
    def rdf(q):
        b = WR + 24*q
        a(f"""ds_read_b128 {vr(b,4)}, v{FA[3*q]}
ds_read_b128 {vr(b+4,4)}, v{FA[3*q]} offset:16
ds_read_b128 {vr(b+8,4)}, v{FA[3*q+1]} offset:40960
ds_read_b128 {vr(b+12,4)}, v{FA[3*q+1]} offset:40976""")
    def fin(q):
        b = WR + 24*q
        for i in range(0, 8, 2): a(f"v_pk_add_f32 {vr(b+i,2)}, {vr(b+i,2)}, {vr(b+8+i,2)}")
        for i in range(0, 8, 2): a(f"v_pk_mul_f32 {vr(b+i,2)}, {vr(b+i,2)}, {vr(vG1+2*q,2)} op_sel_hi:[1,0]")
        a(pk(b+8, b)); a(pk(b+10, b+4))
        a(f"buffer_store_dwordx4 {vr(b+8,4)}, v{vOut+q}, {R(R_A)}, 0 offen {OPOL}")
    rdf(0)
    a("s_cmp_ge_u32 s3, 2\ns_cbranch_scc1 L_F1")
    rdf(1)
    a("s_waitcnt lgkmcnt(4)")
    fin(0)
    a("s_waitcnt lgkmcnt(0)")
    fin(1)
    a("s_branch L_F2\nL_F1:\ns_waitcnt lgkmcnt(0)")
    fin(0)
    a("L_F2:")
    hold(a, 1)
    stamp_flush(a, vT)

a = main()
print("pads", a.pad(), "vgprs", hi_v[0], file=sys.stderr)
nv = (hi_v[0] + 7)//8*8
txt = f"""; gated mix: FNet (factored DFT) + dilated sliding-window attention.  Generated by work/gen16.py
; @launch grid=(256,1,1) block=(512,1,1) lds={LDS_BYTES}
.amdgcn_target "amdgcn-amd-amdhsa--gfx950"
.text
.globl {NAME}_kernel
.p2align 8
.type {NAME}_kernel,@function
{NAME}_kernel:
{a.text()}
.section .rodata,"a"
.p2align 6
.amdhsa_kernel {NAME}_kernel
  .amdhsa_next_free_vgpr {nv}
  .amdhsa_next_free_sgpr 100
  .amdhsa_accum_offset {nv}
  .amdhsa_group_segment_fixed_size 0
  .amdhsa_kernarg_size 96
  .amdhsa_user_sgpr_count 2
  .amdhsa_user_sgpr_kernarg_segment_ptr 1
  .amdhsa_system_sgpr_workgroup_id_x 1
.end_amdhsa_kernel
"""
open(OUT, 'w').write(txt)
```

```python
import sys, struct
from asmlib import *
NAME = "gated_mix__spectral_fnet__sliding_local_dilated__prompt"
def opt(name, default):
    for x in sys.argv[1:]:
        if x.startswith(f'--{name}='): return int(x.split('=')[1])
    return default
STAMP = '--stamp' in sys.argv
CLK = '--clk' in sys.argv
P2ST = opt('p2st', 0)
PF_W = opt('pfw', 1)
PF_XQ = opt('pfxq', 0)
KA = opt('ka', 9)
KA0 = opt('ka0', 6)
NPRE = opt('npre', 2)
DSL = opt('dsl', 8)
SPL = opt('spl', 1)
HC = opt('hc', 0)
FW0 = opt('fw0', 0)
P1F = opt('p1f', 1)
GD = opt('gd', 8)
BPT = opt('bpt', 1)
PEND = opt('pend', 1)
PSA = opt('psa', 6)
DWS = opt('dws', 4)
NPD = opt('npd', 0)
AST = opt('ast', 0)
WLATE = opt('wlate', 1)
W8 = opt('w8', 2)
DWE = opt('dwe', 0)
OPF = opt('opf', 0)
HOLD = opt('hold', 0)
HX = opt('hx', 3000)
WS3 = opt('ws3', 1)
HPRI = opt('hpri', 0)
OPOL = ['', 'sc1', 'nt', 'sc0 sc1', 'sc1 nt'][opt('opol', 0)]
PSL = opt('psl', 1)
XPF = opt('xpf', 0)
NOPO = opt('nopo', 1)
P2D = opt('p2d', 0)
EM = opt('em', 0)
WSCH = opt('wsch', 2)
OWARM = opt('owarm', 0)
OW2 = opt('ow2', -1)
YORD = opt('yord', 0)
YPRI = opt('ypri', 1)
EPOLL = opt('epoll', 0)
PDL = opt('pdl', 26)
DA = opt('da', 8)
DDL = opt('ddl', 8)
NE = opt('ne', 5)
YP1 = opt('yp1', 0)
YP2 = opt('yp2', 0)
PXD = opt('pxd', 0)
NS = opt('ns', 12)
CPF = opt('cpf', 1)
ROT = opt('rot', 0)
ROTP = opt('rotp', 0)
PRE = opt('pre', 0)
NPF = opt('npf', 2)
PO0 = opt('po0', 3)
POM = opt('pom', 3)
N1 = opt('n1', 3)
APRE = opt('apre', 1)
OPT = opt('opt', 0)
GPT = opt('gpt', 0)
AX = opt('ax', 1)
GPOS = opt('gpos', 2)
P20 = opt('p20', 0)
P2M = opt('p2m', 1)
TRACE = opt('trace', 0)
NCE = opt('nce', 0)
OUT = [x for x in sys.argv[1:] if x.endswith('.s')]
OUT = OUT[0] if OUT else f"cdna_kernels/{NAME}.s"

WS_G = 0x280000
GP = 336
WS_GATE = 0x520000
WS_FLAG = 0x530000
WS_END = 0x540000
WS_STAMP = 0x800000
OOB = 0x80000000
SPIN = 200000
MF = 'v_mfma_f32_16x16x32_bf16'
LDS_BYTES = 163840

S_X, S_SRE, S_SIM, S_HRE, S_HIM, S_BX, S_WQKV, S_WO = 4, 6, 8, 10, 12, 14, 16, 18
S_GATE, S_OUT, S_DBG, S_WS = 20, 22, 24, 26
R_A, R_B, R_WS, R_C, R_D = 28, 32, 36, 40, 44
sP, sCP, sSL, sW4 = 48, 49, 50, 51
sC2, sK1, sKs, sRot = 52, 53, 54, 55
S_ST = 84

def srd(a, r, p, n):
    a(f"s_mov_b32 s{r}, s{p}\ns_mov_b32 s{r+1}, s{p+1}\ns_mov_b32 s{r+2}, {n}\ns_mov_b32 s{r+3}, 0x20000")
def R(r): return f"s[{r}:{r+3}]"
def hold(a, p):
    if HOLD != p: return
    l = newlab('L_HOLD')
    a(f"{l}:\ns_memrealtime s[82:83]\ns_waitcnt lgkmcnt(0)\ns_sub_u32 s82, s82, s80\ns_cmp_lt_u32 s82, {HX}\ns_cbranch_scc1 {l}")
def astamp(a, i):
    if AST: a(f"{'s_memtime' if CLK else 's_memrealtime'} s[{S_ST+2*i}:{S_ST+2*i+1}]")
def stamp(a, i):
    if AST and i in (1, 2, 3, 5, 6): return
    if STAMP: a(f"{'s_memtime' if CLK else 's_memrealtime'} s[{S_ST+2*i}:{S_ST+2*i+1}]")
def stamp_flush(a, vtmp):
    if not STAMP: return
    a(f"s_waitcnt vmcnt(0) lgkmcnt(0)")
    stamp(a, 7)
    a(f"""s_mov_b32 s{R_D}, s{S_WS}
s_mov_b32 s{R_D+1}, s{S_WS+1}
s_mov_b32 s{R_D+2}, 0x1000000
s_mov_b32 s{R_D+3}, 0x20000
s_lshl_b32 s70, s2, 3
s_add_u32 s70, s70, s3
s_lshl_b32 s70, s70, 5
s_add_u32 s70, s70, {WS_STAMP}
s_waitcnt lgkmcnt(0)
v_mov_b32 v{vtmp}, 0""")
    for i in range(8):
        a(f"v_mov_b32 v{vtmp+1}, s{S_ST+2*i}")
        a(f"buffer_store_dword v{vtmp+1}, v{vtmp}, {R(R_D)}, s70 offen offset:{4*i}")
    a("s_waitcnt vmcnt(0)")
def interleave(a, mfmas, fillers, start=0, per=1):
    f = list(fillers)
    for i, m in enumerate(mfmas):
        a(m)
        if i >= start:
            for _ in range(per):
                if f: a(f.pop(0))
    for x in f: a(x)
def pkl(d, s): return [f"v_cvt_pk_bf16_f32 v{d}, v{s}, v{s+1}", f"v_cvt_pk_bf16_f32 v{d+1}, v{s+2}, v{s+3}"]
def pk(d, s): return "\n".join(pkl(d, s))
def f32(x): return f"{struct.unpack('<I', struct.pack('<f', x))[0]:#x}"
hi_v = [0]
_lab = [0]
def newlab(p):
    _lab[0] += 1
    return f"{p}{_lab[0]}"

NREG = 7
def pos_of(hh, j): return hh*NREG + j if j < NREG else 14 + hh*(10-NREG) + (j-NREG)
def inv_pos(pos):
    for hh in range(2):
        for j in range(10):
            if pos_of(hh, j) == pos: return hh, j
L_OB7 = 102400
L_G = 112640
L_GT = 133120
L_CNT = 163832
L_Y = 133376
EXP = 336
L_OS = 141312
L_XC = 102400
QSLOT = 47104
XB = 14336
def qslot(c): return ((c + 2) % 3) * QSLOT
DSLOT = 53248; L_U = 102400

vWoL = 72
vGoL = 77

def wo_setup(a, vT, vT2, vT3, vWo=vWoL):
    assert all((q*6554) >> 16 == q//10 for q in range(320))
    for j in range(5):
        a(f"""v_add_u32 v{vT}, {64*j}, v0
v_mul_u32_u24 v{vT2}, 6554, v{vT}
v_lshrrev_b32 v{vT2}, 16, v{vT2}
v_mul_u32_u24 v{vT3}, 10, v{vT2}
v_sub_u32 v{vT}, v{vT}, v{vT3}
v_and_b32 v{vT3}, 3, v{vT2}
v_and_b32 v{vWo+j}, 4, v{vT2}
v_mul_u32_u24 v{vWo+j}, 20, v{vWo+j}
v_and_b32 v{vT2}, 24, v{vT2}
v_lshrrev_b32 v{vT2}, 1, v{vT2}
v_add3_u32 v{vT3}, v{vT3}, v{vT2}, v{vWo+j}
v_mul_u32_u24 v{vT3}, 1280, v{vT3}
v_lshl_add_u32 v{vWo+j}, v{vT}, 4, v{vT3}""")
        if j & 3: a(f"v_subrev_u32 v{vWo+j}, {1024*(j&3)}, v{vWo+j}")

def wo_dma(a, r, vWo=vWoL):
    sT, sT2 = 70, 71
    tab = [inv_pos(4*r + w) for w in range(4)]
    code = [(2*hh + j//5)*16 + j % 5 for hh, j in tab]
    packed = sum(c << (8*w) for w, c in enumerate(code))
    a(f"""s_lshl_b32 s{sT}, s{sW4}, 3
s_lshr_b32 s{sT}, {packed:#x}, s{sT}
s_and_b32 s{sT2}, s{sT}, 15
s_mul_i32 s{sT2}, s{sT2}, {16*1280}
s_lshr_b32 s{sT}, s{sT}, 4
s_add_u32 s{sT}, s{sT}, s{sC2}
s_and_b32 s{sT}, s{sT}, 3
s_mul_i32 s{sT}, s{sT}, {160*1280}
s_add_u32 s{sT2}, s{sT2}, s{sT}
s_mul_i32 s{sT}, s{sC2}, 160
s_add_u32 s{sT2}, s{sT2}, s{sT}
s_mul_i32 s{sT}, s{sW4}, 5120
s_add_u32 m0, s{sT}, {r*20480}""")
    for j in range(5):
        if j == 4: a("s_add_u32 m0, m0, 4096")
        a(f"buffer_load_dwordx4 v{vWo+j}, {R(R_C)}, s{sT2} offen offset:{1024*(j&3)} lds")

def g_setup(a, vT, vT2, vT3):
    sT, sT2, sT3, sB = 70, 71, 72, 73
    assert all((q*1639) >> 16 == q//40 for q in range(320))
    a(f"""s_mul_i32 s{sT}, s{sC2}, 40
s_sub_u32 s{sT2}, 320, s{sT}
s_cmp_lt_u32 s{sC2}, 4
s_cselect_b32 s{sT}, s{sT}, s{sT2}
s_cselect_b32 s{sT2}, 16, -16
s_cselect_b32 s{sB}, 0, -16
s_mul_i32 s{sT3}, s{sKs}, {16*GP}
s_add_u32 s{sT}, s{sT}, s{sT3}
s_lshl_b32 s{sT}, s{sT}, 4
s_add_u32 s{sT}, s{sT}, {WS_G}""")
    for j in range(5):
        a(f"""v_add_u32 v{vT}, {64*j}, v0
v_mul_u32_u24 v{vT2}, 1639, v{vT}
v_lshrrev_b32 v{vT2}, 16, v{vT2}
v_mul_u32_u24 v{vT3}, 40, v{vT2}
v_sub_u32 v{vT}, v{vT}, v{vT3}
v_mul_i32_i24 v{vT}, s{sT2}, v{vT}
v_and_b32 v{vT3}, 1, v{vT2}
v_mul_i32_i24 v{vT3}, s{sB}, v{vT3}
v_mul_u32_u24 v{vT2}, {168*16}, v{vT2}
v_add3_u32 v{vT}, v{vT}, v{vT2}, v{vT3}
v_add_u32 v{vGoL+j}, s{sT}, v{vT}""")
        if j & 3: a(f"v_subrev_u32 v{vGoL+j}, {1024*(j&3)}, v{vGoL+j}")

TW = 232
def tw_gen(a, vT, vT2, vT3, vT4, part=None):
    if part in (None, 0): a(f"""s_lshl_b32 s70, s{sW4}, 9
s_add_u32 s70, s70, s{sK1}
v_and_b32 v{vT}, 15, v0
v_lshlrev_b32 v{vT}, 5, v{vT}
v_add_u32 v{vT}, s70, v{vT}
v_and_b32 v{vT2}, 48, v0
v_mul_u32_u24 v{vT2}, v{vT2}, v{vT}
s_cmp_lt_u32 s{sC2}, 4
s_mov_b32 s73, {f32(1/2048)}
s_cselect_b32 s73, s73, {f32(-1/2048)}""")
    for n in (range(16) if part is None else range(6) if part == 0 else range(6, 16)):
        uu = ((n >> 3) << 1) | (n & 1); w = (n >> 1) & 3
        a(f"""v_and_b32 v{vT3}, 0x7ff, v{vT2}
v_cvt_f32_u32 v{vT3}, v{vT3}
v_mul_f32 v{vT3}, s73, v{vT3}
v_cos_f32 v{vT4}, v{vT3}
v_sin_f32 v{vT3}, v{vT3}
v_add_u32 v{vT2}, v{vT2}, v{vT}
v_cvt_pk_bf16_f32 v{TW+4*uu+w}, v{vT4}, v{vT3}""")

def clr_read(a):
    a(f"s_load_dwordx8 s[76:83], s[{S_DBG}:{S_DBG+1}], 0")

def clr_check(a, vT):
    ok, lp = newlab('L_COK'), newlab('L_CLP')
    b = 76
    a(f"""s_waitcnt lgkmcnt(0)
s_and_b64 s[{b}:{b+1}], s[{b}:{b+1}], s[{b+2}:{b+3}]
s_and_b64 s[{b+4}:{b+5}], s[{b+4}:{b+5}], s[{b+6}:{b+7}]
s_and_b64 s[{b}:{b+1}], s[{b}:{b+1}], s[{b+4}:{b+5}]
s_and_b32 s{b}, s{b}, s{b+1}
s_cbranch_scc1 {ok}
s_mov_b32 s71, 0
v_lshlrev_b32 v{vT}, 2, v0
s_mov_b64 exec, 0xff
{lp}:
s_sleep 16
buffer_load_dword v{vT+1}, v{vT}, {R(R_D)}, 0 offen sc1
s_waitcnt vmcnt(0)
v_cmp_eq_u32 vcc, 0, v{vT+1}
s_cbranch_vccz {lp}x
s_add_u32 s71, s71, 1
s_cmp_gt_u32 s71, {SPIN}
s_cbranch_scc0 {lp}
{lp}x:
s_mov_b64 exec, -1
{ok}:""")

def flag_store(a, vT, mask):
    a(f"""s_lshl_b32 s70, s{sP}, 5
s_add_u32 s70, s70, s{sSL}
s_lshl_b32 s70, s70, 7
s_lshl_b32 s71, s{sCP}, 2
s_add_u32 s70, s70, s71
s_add_u32 s70, s70, {WS_FLAG}
v_lshlrev_b32 v{vT}, 13, v0
v_mov_b32 v{vT+1}, 1
s_mov_b32 exec_lo, {mask}
s_mov_b32 exec_hi, 0
buffer_store_dword v{vT+1}, v{vT}, {R(R_WS)}, s70 offen sc1
s_mov_b64 exec, -1""")

def main():
    a = Asm()
    if HOLD: a("s_memrealtime s[80:81]")
    a(f"""s_cmp_ge_u32 s2, 256
s_cbranch_scc1 L_END
s_load_dwordx16 s[4:19], s[0:1], 0
s_load_dwordx8 s[20:27], s[0:1], 64""")
    if CPF:
        a(f"""s_getpc_b64 s[28:29]
L_PC:
v_lshlrev_b32 v255, 7, v0
v_cmp_gt_u32 vcc, L_END-L_PC, v255
s_and_saveexec_b64 s[30:31], vcc
s_cbranch_execz L_NOCPF
global_load_dword v255, v255, s[28:29]
L_NOCPF:
s_mov_b64 exec, -1""")
    if STAMP:
        for i in range(8): a(f"s_mov_b64 s[{S_ST+2*i}:{S_ST+2*i+1}], 0")
    stamp(a, 0)
    hold(a, 5)
    a(f"""v_lshrrev_b32 v1, 6, v0
v_and_b32 v0, 63, v0
v_readfirstlane_b32 s3, v1
s_and_b32 s{sP}, s2, 1
s_lshr_b32 s{sCP}, s2, 1
s_and_b32 s{sCP}, s{sCP}, 3
s_lshr_b32 s{sSL}, s2, 3
s_and_b32 s{sW4}, s3, 3
s_and_b32 s{sC2}, s{sSL}, 7
s_lshr_b32 s70, s{sSL}, 4
s_lshl_b32 s70, s70, 1
s_lshl_b32 s{sK1}, s{sCP}, 2
s_add_u32 s{sK1}, s{sK1}, s70
s_add_u32 s{sK1}, s{sK1}, s{sP}
s_sub_u32 s70, 32, s{sK1}
s_cmp_eq_u32 s{sK1}, 0
s_cselect_b32 s70, 16, s70
s_bitcmp1_b32 s{sSL}, 3
s_cselect_b32 s{sK1}, s70, s{sK1}
s_sub_u32 s{sKs}, 32, s{sK1}
s_and_b32 s{sKs}, s{sKs}, 31
s_cmp_lt_u32 s{sC2}, 4
s_cselect_b32 s{sKs}, s{sK1}, s{sKs}
s_mul_i32 s{sRot}, s{sP}, {ROTP}
s_add_u32 s{sRot}, s{sRot}, s{sCP}
s_mul_i32 s{sRot}, s{sRot}, {ROT}
s_sub_u32 s70, s{sRot}, 5
s_min_u32 s{sRot}, s{sRot}, s70
s_cmp_ge_u32 s{sSL}, 24
s_cbranch_scc1 L_DFT
s_cmp_ge_u32 s{sSL}, 20
s_cbranch_scc1 L_AUX
s_cmp_ge_u32 s3, 4
s_cbranch_scc0 L_QCOMP""")
    qkv_loader(a)
    a.label('L_AUX'); aux_path(a)
    a.label('L_DFT')
    a("s_cmp_ge_u32 s3, 4\ns_cbranch_scc0 L_DCOMP")
    dft_loader(a)
    a.label('L_DCOMP'); dft_compute(a)
    a.label('L_QCOMP'); qkv_compute(a)
    attention(a)
    phase2(a)
    a.label('L_END')
    a('s_endpgm')
    return a

sHG, sI, sJ0 = 56, 57, 58
qM, qG, qT, qT2, qT3 = 2, 3, 4, 5, 6
qOC, qOD = 7, 8
qXb0, qXb1, qWb, qDb, qXa0, qXa1, qWa, qDa = range(10, 18)
vOS1, vOS2 = 18, 19
cI = 20; cOne = 24; cBo = 28; cBp = 32; Vp = 36
NT = 7
ACC = 52; F0 = 164; F1 = 208; FWO = 28
vO6a, vO6g = 252, 253
OM = 28
def A(rt, t): return ACC + 16*rt + 4*t

def qkv_scalars(a):
    a(f"""s_lshl_b32 s{sHG}, s{sCP}, 1
s_and_b32 s70, s{sSL}, 1
s_add_u32 s{sHG}, s{sHG}, s70
s_lshr_b32 s{sI}, s{sSL}, 1
s_mul_i32 s{sJ0}, s{sI}, 102""")

def attn_consts(a):
    vT, vT2, vT3 = qT, qT2, qT3
    a(f"""v_and_b32 v{qM}, 15, v0
v_lshrrev_b32 v{qG}, 4, v0
v_lshlrev_b32 v{vT}, 2, v{qG}
v_sub_u32 v{vT}, v{qM}, v{vT}
v_mov_b32 v{vT3}, 0xff800000
v_mov_b32 v{cI}, 0
v_mov_b32 v{cI+1}, 0""")
    for r in range(4):
        a(f"""v_subrev_u32 v{vT2}, {r}, v{vT}
v_cmp_gt_u32 vcc, 8, v{vT2}
v_cndmask_b32 v{cBo+r}, v{vT3}, v{cI}, vcc
v_cmp_gt_i32 vcc, -8, v{vT2}
v_cndmask_b32 v{cBp+r}, v{vT3}, v{cI}, vcc
v_mov_b32 v{cOne+r}, 0x3f803f80""")
    a(f"v_and_b32 v{vT}, 0x33, v0")
    for pr in range(2):
        a(f"""v_mov_b32 v{vT2}, 0x3f80
v_cmp_eq_u32 vcc, {48+2*pr}, v{vT}
v_cndmask_b32 v{cI+2+pr}, 0, v{vT2}, vcc
v_mov_b32 v{vT2}, 0x3f800000
v_cmp_eq_u32 vcc, {48+2*pr+1}, v{vT}
v_cndmask_b32 v{cI+2+pr}, v{cI+2+pr}, v{vT2}, vcc""")
    a(f"""v_pk_mov_b32 {vr(Vp,2)}, 0, 0
s_mul_i32 s70, s{sW4}, 40
s_add_u32 s70, s70, {L_OS}
v_mul_u32_u24 v{vT3}, 176, v{qM}
v_add_u32 v{vT3}, s70, v{vT3}
v_lshl_add_u32 v{qOC}, v{qG}, 3, v{vT3}
v_mul_u32_u24 v{qOD}, 176, v0
s_add_u32 s70, s70, 32
v_add_u32 v{qOD}, s70, v{qOD}""")

def ost_setup(a):
    sN, sT, sT2, sLo, sHi = 70, 71, 72, 73, 63
    t1, t2, t3 = qT, qT2, qT3
    a(f"""s_cmp_eq_u32 s{sI}, 0
s_cselect_b32 s{sLo}, 0, 7
s_cmp_eq_u32 s{sI}, 9
s_cselect_b32 s{sHi}, 10, 13
v_mul_u32_u24 v{vOS2}, 26, v0
v_lshrrev_b32 v{vOS2}, 8, v{vOS2}
s_lshl_b32 s{sT}, s{sW4}, 2
v_add_u32 v{t1}, s{sT}, v{vOS2}
v_mul_u32_u24 v{t2}, 10, v{vOS2}
v_sub_u32 v{t2}, v0, v{t2}
v_mul_u32_u24 v{vO6a}, 176, v{t1}
v_lshl_add_u32 v{vO6a}, v{t2}, 4, v{vO6a}
v_cmp_gt_u32 s[82:83], s{sHi}, v{t1}
v_cmp_le_u32 s[80:81], s{sLo}, v{t1}
v_add_u32 v{t1}, s{sJ0}, v{t1}
v_lshlrev_b32 v{t1}, 1, v{t1}
v_add_u32 v{t1}, s{sP}, v{t1}
v_and_b32 v{vO6g}, 31, v{t1}
v_lshlrev_b32 v{vO6g}, 3, v{vO6g}
v_add_u32 v{vO6g}, s{sHG}, v{vO6g}
v_lshrrev_b32 v{t1}, 5, v{t1}
v_and_b32 v{t3}, 1, v{t1}
v_cmp_eq_u32 vcc, 1, v{t3}
v_xor_b32 v{t3}, 1, v{t3}
v_mul_u32_u24 v{t3}, 6, v{t3}
v_add_u32 v{t1}, v{t1}, v{t3}
v_mul_u32_u24 v{t3}, {16*176}, v{t3}
s_mov_b32 s{sT}, {L_OS}
v_add3_u32 v{vO6a}, v{vO6a}, v{t3}, s{sT}
v_lshl_add_u32 v{t1}, v{vO6g}, 6, v{t1}
v_mul_u32_u24 v{t1}, 160, v{t1}
v_lshl_add_u32 v{t1}, v{t2}, 4, v{t1}
s_and_b64 s[80:81], s[80:81], vcc
s_andn2_b64 s[82:83], s[82:83], vcc
s_or_b64 s[82:83], s[82:83], s[80:81]
s_and_b32 s83, s83, 0xff
v_mov_b32 v{t2}, {OOB}
v_cndmask_b32 v{vO6g}, v{t2}, v{t1}, s[82:83]
v_mov_b32 v{t2}, {L_OS}
v_cndmask_b32 v{vO6a}, v{t2}, v{vO6a}, s[82:83]
v_min_u32 v{vOS2}, 5, v{vOS2}
v_mul_u32_u24 v{vOS1}, {16*176-160}, v{vOS2}
v_lshl_add_u32 v{vOS1}, v0, 4, v{vOS1}
v_lshlrev_b32 v{vOS2}, 4, v0""")
    for q in range(4):
        a(f"""s_lshl_b32 s{sN}, s{sW4}, 2
s_add_u32 s{sN}, s{sN}, {q}
s_add_u32 s{sT}, s{sN}, s{sJ0}
s_lshl_b32 s{sT}, s{sT}, 1
s_add_u32 s{sT}, s{sT}, s{sP}
s_and_b32 s{sT2}, s{sT}, 31
s_lshl_b32 s{sT2}, s{sT2}, 3
s_add_u32 s{sT2}, s{sT2}, s{sHG}
s_lshl_b32 s{sT2}, s{sT2}, 6
s_lshr_b32 s{sT}, s{sT}, 5
s_add_u32 s{sT}, s{sT}, s{sT2}
s_and_b32 s{sT2}, s{sT}, 1
s_add_u32 s{sT}, s{sT}, s{sT2}
s_mul_i32 s{74+q}, s{sT}, 160
s_mul_i32 s{sT}, s{sT2}, 16
s_add_u32 s{sT}, s{sT}, s{sN}
s_mul_i32 s{78+q}, s{sT}, 176
s_add_u32 s{78+q}, s{78+q}, {L_OS}
s_cmp_ge_u32 s{sT}, s{sLo}
s_cselect_b32 s{OM+2*q}, -1, 0xfffffc00
s_add_u32 s{sT2}, s{sHi}, 16
s_cmp_lt_u32 s{sT}, s{sT2}
s_mov_b32 s{sT}, 0x0fffffff
s_cselect_b32 s{OM+2*q+1}, s{sT}, 0x3ffff""")

def wline(a, dst, sL, n, vT, vT2, vT3, vT4):
    assert all((q*7282) >> 16 == q//9 for q in range(8000))
    assert all((q*11) >> 5 == q//3 for q in range(9))
    a(f"""v_add_u32 v{vT}, s{sL}, v0
v_cmp_gt_u32 vcc, 5760, v{vT}
v_mul_u32_u24 v{vT2}, 7282, v{vT}
v_lshrrev_b32 v{vT2}, 16, v{vT2}
v_mul_u32_u24 v{vT3}, 9, v{vT2}
v_sub_u32 v{vT}, v{vT}, v{vT3}
v_mul_u32_u24 v{vT3}, 11, v{vT}
v_lshrrev_b32 v{vT3}, 5, v{vT3}
v_mul_u32_u24 v{vT3}, {1280-384}, v{vT3}
v_lshl_add_u32 v{vT}, v{vT}, 7, v{vT3}
v_and_b32 v{vT3}, 63, v{vT2}
v_lshrrev_b32 v{dst}, 7, v{vT2}
v_add_u32 v{dst}, s{sRot}, v{dst}
v_subrev_u32 v{vT4}, 5, v{dst}
v_min_u32 v{dst}, v{dst}, v{vT4}
v_lshl_add_u32 v{vT3}, v{dst}, 6, v{vT3}
v_and_b32 v{vT2}, 64, v{vT2}
v_mul_u32_u24 v{vT2}, 5, v{vT2}
v_add_u32 v{vT2}, v{vT2}, v{vT3}
v_mul_u32_u24 v{vT2}, 3840, v{vT2}
v_add_u32 v{vT}, v{vT}, v{vT2}
v_mov_b32 v{vT2}, {OOB}""")
    if n < 64:
        m = (1 << n) - 1
        a(f"s_and_b32 vcc_lo, vcc_lo, {m & 0xffffffff:#x}\ns_and_b32 vcc_hi, vcc_hi, {m >> 32:#x}")
    a(f"v_cndmask_b32 v{dst}, v{vT2}, v{vT}, vcc")
NP1 = -(-576*N1 // 80)

def aux_path(a):
    vT, vT2, vT3, vT4, vA, vD = 2, 3, 4, 5, 6, 12
    vX, vL, vGs, vGa = 13, 8, 9, 7
    sAW, sT, sPW, sXb = 56, 57, 58, 59
    XG, GW = 100, 140
    L_GW = 102400
    nw = -(-(5760 - 80*NP1) // 2048)
    a(f"""s_sub_u32 s{sAW}, s{sSL}, 20
s_lshl_b32 s{sAW}, s{sAW}, 3
s_add_u32 s{sAW}, s{sAW}, s3
v_and_b32 v{vX}, 31, v0
v_mul_u32_u24 v{vX}, 2560, v{vX}
v_lshrrev_b32 v{vT}, 5, v0
v_mul_u32_u24 v{vT}, 640, v{vT}
v_add_u32 v{vX}, v{vX}, v{vT}
s_lshl_b32 s{sXb}, s{sAW}, 6
s_add_u32 s{sXb}, s{sXb}, s{sP}
s_mul_i32 s{sXb}, s{sXb}, 1280
v_lshlrev_b32 v{vL}, 7, v0
s_waitcnt lgkmcnt(0)""")
    srd(a, R_A, S_X, 2621440)
    def xp(i):
        a(f"s_add_u32 s70, s{sRot}, {i}\ns_sub_u32 s71, s70, 5\ns_min_u32 s70, s70, s71\ns_lshl_b32 s70, s70, 7\ns_add_u32 s70, s70, s{sXb}")
        a(f"buffer_load_dword v{vD}, v{vX}, {R(R_A)}, s70 offen\ns_barrier")
    def gate_loads():
        a(f"""s_lshl_b32 s70, s{sCP}, 5
s_add_u32 s70, s70, s{sAW}
s_lshl_b32 s70, s70, 4
s_add_u32 s70, s70, s{sP}
v_lshrrev_b32 v{vT}, 3, v0
v_lshlrev_b32 v{vT}, 1, v{vT}
v_add_u32 v{vT}, s70, v{vT}
v_and_b32 v{vT2}, 7, v0
v_lshlrev_b32 v{vT2}, 4, v{vT2}
v_mul_u32_u24 v{vT3}, 1280, v{vT}
v_add_u32 v{vT3}, v{vT3}, v{vT2}
v_and_b32 v{vGs}, 31, v{vT}
v_lshlrev_b32 v{vGs}, 8, v{vGs}
v_lshrrev_b32 v{vT}, 5, v{vT}
v_lshl_add_u32 v{vGs}, v{vT}, 2, v{vGs}
v_add_u32 v10, {L_GW}, v{vT2}
s_mov_b32 s70, {WS_GATE}
buffer_load_dword v{vD}, v{vGs}, {R(R_WS)}, s70 offen sc1""")
        for i in (2, 7, 3, 8, 4, 9, 0, 5, 1, 6):
            a(f"buffer_load_dwordx4 {vr(XG+4*i,4)}, v{vT3}, {R(R_A)}, 0 offen offset:{128*i}")
        a("s_barrier")
    xl = list(range(1, AX+1))
    if xl: xp(xl.pop(0))
    srd(a, R_B, S_GATE, 1280)
    a(f"""s_and_b32 s70, s3, 1
s_lshl_b32 s70, s70, 10
s_add_u32 m0, s70, {L_GW}
v_lshlrev_b32 v{vT}, 4, v0
buffer_load_dwordx4 v{vT}, {R(R_B)}, s70 offen lds
s_lshl_b32 s{sT}, s{sAW}, 6
s_add_u32 s{sT}, s{sT}, {80*NP1}
s_mul_i32 s{sPW}, s{sCP}, 320
s_and_b32 s{sPW}, s{sPW}, 0xffffff80""")
    srd(a, R_B, S_WQKV, 2457600); srd(a, R_WS, S_WS, WS_END); srd(a, R_D, S_DBG, 256); srd(a, R_C, S_WO, 819200)
    for q in range(nw):
        if q == GPOS: gate_loads()
        wline(a, vA, sT, 64, vT, vT2, vT3, vT4)
        a(f"buffer_load_dword v{vD}, v{vA}, {R(R_B)}, s{sPW} offen\ns_barrier\ns_add_u32 s{sT}, s{sT}, 2048")
        if xl: xp(xl.pop(0))
    if GPOS >= nw: gate_loads()
    for i in xl: xp(i)
    a(f"""s_and_b32 s{sT}, s2, 7
s_lshl_b32 s{sT}, s{sT}, 5
s_add_u32 s{sT}, s{sT}, s{sAW}""")
    nl = 0
    if APRE:
        a(f"s_mul_i32 s70, s{sT}, 3200\ns_mov_b64 exec, 0x1ffffff\nbuffer_load_dword v{vD}, v{vL}, {R(R_C)}, s70 offen\ns_mov_b64 exec, -1\ns_barrier"); nl += 1
    a(f"s_mul_i32 s70, s{sAW}, 25600\ns_add_u32 s70, s70, {6400*NPF}\ns_mov_b32 exec_hi, 0x3ffff")
    for q in range(NPF, 4): a(f"buffer_load_dword v{vD}, v{vL}, {R(R_C)}, s70 offen\ns_add_u32 s70, s70, 6400"); nl += 1
    a("s_mov_b32 exec_hi, -1")
    if OPT:
        a(f"s_mul_i32 s70, s{sT}, {80*128}\nbuffer_load_dword v{vD}, v{vL}, {R(R_WS)}, s70 offen\ns_add_u32 s70, s70, 8192\ns_mov_b64 exec, 0xffff\nbuffer_load_dword v{vD}, v{vL}, {R(R_WS)}, s70 offen\ns_mov_b64 exec, -1"); nl += 2
    wo_setup(a, vT, vT2, vT3)
    g_setup(a, vT, vT2, vT3)
    tw_gen(a, 14, 15, 16, 17)
    a(f"v_mov_b32 v{vGa}, 0\ns_waitcnt vmcnt({nl})\ns_barrier")
    for i in range(10): a(f"ds_read_b128 {vr(GW+4*i,4)}, v10 offset:{128*i}")
    a("s_waitcnt lgkmcnt(0)")
    clr_read(a)
    for i in range(40): a(f"v_dot2c_f32_bf16 v{vGa}, v{XG+i}, v{GW+i}")
    a(f"""v_add_f32_dpp v{vGa}, v{vGa}, v{vGa} quad_perm:[1,0,3,2] row_mask:0xf bank_mask:0xf
v_add_f32_dpp v{vGa}, v{vGa}, v{vGa} quad_perm:[2,3,0,1] row_mask:0xf bank_mask:0xf
v_add_f32_dpp v{vGa}, v{vGa}, v{vGa} row_half_mirror row_mask:0xf bank_mask:0xf
s_mov_b32 s72, {WS_GATE}
s_mov_b32 exec_lo, 0x01010101
s_mov_b32 exec_hi, 0x01010101
buffer_store_dword v{vGa}, v{vGs}, {R(R_WS)}, s72 offen sc1
s_mov_b64 exec, -1""")
    clr_check(a, vT)
    a("s_waitcnt vmcnt(0)\ns_barrier")
    stamp(a, 3)
    a("s_cmp_lg_u32 s3, 4\ns_cbranch_scc1 L_NOPUB2")
    flag_store(a, vT, '0xff')
    a("L_NOPUB2:\ns_cmp_ge_u32 s3, 4\ns_cbranch_scc0 L_AUXE")
    for r in range(5): wo_dma(a, r)
    a("s_branch L_P2H\nL_AUXE:\ns_barrier\ns_branch L_P2")

def qkv_loader(a):
    sXo, sWo, sWo2, sWr, sC, sM0X, sM0W, sT, sX0, sW0, sKc = range(59, 70)
    vT, vT2, vT3, vM = 10, 11, 12, 13
    vXo = 82; vWo = 86
    CH = 64*3840
    ND = 12
    qkv_scalars(a)
    offs = f"""s_lshl_b32 s{sXo}, s{sKc}, 7
s_add_u32 s{sXo}, s{sXo}, s{sX0}
s_mul_i32 s{sWo}, s{sKc}, {CH}
s_add_u32 s{sWo}, s{sWo}, s{sW0}
s_add_u32 s{sWo2}, s{sWo}, {32*3840}"""
    a(f"""s_lshl_b32 s{sX0}, s{sJ0}, 1
s_add_u32 s{sX0}, s{sX0}, s{sP}
s_mul_i32 s{sX0}, s{sX0}, 1280
s_mul_i32 s{sW0}, s{sHG}, 160
s_lshr_b32 s{sT}, s{sW4}, 1
s_lshl_b32 s{sT}, s{sT}, 2
s_and_b32 s70, s{sW4}, 1
s_add_u32 s{sT}, s{sT}, s70
s_mul_i32 s{sT}, s{sT}, {4*3840}
s_add_u32 s{sW0}, s{sW0}, s{sT}
s_mov_b32 s{sKc}, s{sRot}
{offs}
s_mul_i32 s{sM0X}, s{sW4}, 3584
s_lshl_b32 s{sM0W}, s{sW4}, 12
s_add_u32 s{sM0W}, s{sM0W}, {XB}
s_mul_i32 s{sT}, s{sW4}, 28
v_lshrrev_b32 v{vT}, 3, v0
v_add_u32 v{vT}, s{sT}, v{vT}
v_and_b32 v{vT2}, 7, v0""")
    for j in range(4):
        a(f"""v_add_u32 v{vT3}, {8*j}, v{vT}
v_mul_u32_u24 v{vXo+j}, 2560, v{vT3}
v_bfe_u32 v{vT3}, v{vT3}, 1, 3
v_xor_b32 v{vT3}, v{vT3}, v{vT2}
v_lshl_add_u32 v{vXo+j}, v{vT3}, 4, v{vXo+j}""")
        if j: a(f"v_subrev_u32 v{vXo+j}, {1024*j}, v{vXo+j}")
    assert all((q*2185) >> 16 == q//30 for q in range(512))
    assert all((q*26) >> 8 == q//10 for q in range(64))
    for j in range(4):
        a(f"""v_add_u32 v{vT}, {64*j}, v0
v_mul_u32_u24 v{vT2}, 2185, v{vT}
v_lshrrev_b32 v{vT2}, 16, v{vT2}
v_mul_u32_u24 v{vT3}, 30, v{vT2}
v_sub_u32 v{vT}, v{vT}, v{vT3}
v_mul_u32_u24 v{vT3}, 26, v{vT}
v_lshrrev_b32 v{vT3}, 8, v{vT3}
v_mul_u32_u24 v{vT3}, 1120, v{vT3}
v_lshl_add_u32 v{vT}, v{vT}, 4, v{vT3}
v_and_b32 v{vM}, 4, v{vT2}
v_add_u32 v{vT3}, v{vT2}, v{vM}
v_mul_u32_u24 v{vT3}, 3840, v{vT3}
v_add_u32 v{vWo+j}, v{vT}, v{vT3}""")
        if j: a(f"v_subrev_u32 v{vWo+j}, {1024*j}, v{vWo+j}")
    a(f"""v_mov_b32 v{vT}, {OOB}
v_cmp_gt_u32 vcc, 48, v0
v_cndmask_b32 v{vWo+3}, v{vT}, v{vWo+3}, vcc
s_waitcnt lgkmcnt(0)""")
    srd(a, R_A, S_X, 2621440); srd(a, R_B, S_WQKV, 2457600)
    def dma(lo, hi):
        for i in range(lo, hi):
            if i < 4:
                if i == 0 or i == lo: a(f"s_add_u32 m0, s{sWr}, s{sM0X}")
                if i == 3: a("s_mov_b32 exec_hi, 0")
                a(f"buffer_load_dwordx4 v{vXo+i}, {R(R_A)}, s{sXo} offen offset:{1024*i} lds")
                if i == 3: a("s_mov_b32 exec_hi, -1")
            else:
                j = i & 3; st = (i-4) >> 2
                if j == 0 or i == lo:
                    a(f"s_add_u32 m0, s{sWr}, s{sM0W}")
                    if st: a("s_add_u32 m0, m0, 16384")
                a(f"buffer_load_dwordx4 v{vWo+j}, {R(R_B)}, s{sWo2 if st else sWo} offen offset:{1024*j} lds")
        if hi == ND and lo < ND:
            a(f"""s_add_u32 s70, s{sKc}, 5
s_sub_u32 s71, s{sKc}, 4
s_cmp_eq_u32 s{sKc}, 9
s_cselect_b32 s71, 0, s71
s_cmp_lt_u32 s{sKc}, 5
s_cselect_b32 s{sKc}, s70, s71
{offs}
s_add_u32 s{sWr}, s{sWr}, {QSLOT}
s_cmp_eq_u32 s{sWr}, {3*QSLOT}
s_cselect_b32 s{sWr}, 0, s{sWr}""")
    a(f"s_mov_b32 s{sWr}, {qslot(0)}")
    dma(0, 8)
    srd(a, R_WS, S_WS, WS_END); srd(a, R_C, S_WO, 819200); srd(a, R_D, S_DBG, 256)
    a(f"v_mov_b32 v{vT}, {L_CNT}\nv_mov_b32 v{vT2}, 0\nds_write_b32 v{vT}, v{vT2}")
    wo_setup(a, vT, vT2, vT3)
    g_setup(a, vT, vT2, vT3)
    dma(8, ND)
    stamp(a, 1)
    _tc = [0]
    def tr():
        _tc[0] += 1
        if TRACE == 2 and _tc[0] % 3: return
        if TRACE: a(f"s_memtime s[82:83]\ns_waitcnt lgkmcnt(0)\ns_mov_b32 m0, s80\nv_writelane_b32 v60, s82, m0\ns_add_u32 s80, s80, 1")
    if TRACE: a("s_mov_b32 s80, 0\nv_mov_b32 v60, 0")
    if SPL: a("s_waitcnt vmcnt(4)\ns_barrier")
    dma(0, KA0)
    tr(); a(f"s_waitcnt vmcnt({KA0})"); tr(); a("s_barrier"); tr()
    dma(KA0, ND)
    a(f"s_mov_b32 s{sC}, 1\nQL_LOOP:")
    dma(0, KA)
    tr(); a(f"s_waitcnt vmcnt({KA})"); tr(); a("s_barrier"); tr()
    dma(KA, ND)
    a(f"s_add_u32 s{sC}, s{sC}, 1\ns_cmp_lt_u32 s{sC}, 9\ns_cbranch_scc1 QL_LOOP")
    a(f"s_lshl_b32 s70, s{sW4}, 12\ns_add_u32 s70, s70, {L_OS}\nv_lshlrev_b32 v14, 4, v0\nv_add_u32 v14, s70, v14")
    for uu in range(4): a(f"ds_read_b128 {vr(TW+4*uu,4)}, v14 offset:{1024*uu}")
    clr_read(a)
    if HC:
        fill, hp = p2_calc()
        for x in fill: a(x)
        a(hp)
    if FW0:
        assert not HC
        a(f"""s_lshr_b32 s70, s{sHG}, 2
s_and_b32 s71, s{sHG}, 1
s_cmp_eq_u32 s70, s71
s_cbranch_scc1 QL_SLOW
s_waitcnt vmcnt(4)
s_barrier
s_waitcnt vmcnt(0)
s_barrier""")
        if FW0 == 2: wo_dma(a, 0)
        a("s_waitcnt lgkmcnt(0)\ns_barrier")
        for r in range(FW0-1, W8): wo_dma(a, r)
        a("s_branch QL_JOIN\nQL_SLOW:")
    if W8 == 3: wo_dma(a, 0)
    tr(); a(f"s_waitcnt vmcnt({4 + (5 if W8 == 3 else 0)})"); tr(); a("s_barrier"); tr()
    stamp(a, 2)
    if W8 >= 2: wo_dma(a, W8-2)
    tr(); a(f"s_waitcnt vmcnt({5*max(W8-1,0)})"); tr(); a("s_barrier"); tr()
    if W8: wo_dma(a, W8-1)
    tr(); tr(); a("s_waitcnt lgkmcnt(0)\ns_barrier"); tr()
    astamp(a, 1)
    if FW0: a("QL_JOIN:")
    for r in range(W8, 5): wo_dma(a, r)
    clr_check(a, 16)
    if TRACE:
        a(f"""v_lshlrev_b32 v61, 2, v0
s_lshl_b32 s80, s2, 3
s_add_u32 s80, s80, s3
s_lshl_b32 s80, s80, 8
s_add_u32 s80, s80, 0x900000
s_mov_b32 s{R_A}, s{S_WS}
s_mov_b32 s{R_A+1}, s{S_WS+1}
s_mov_b32 s{R_A+2}, 0x1000000
buffer_store_dword v60, v61, {R(R_A)}, s80 offen""")
    astamp(a, 5)
    a("s_branch L_P2H2" if HC else "s_branch L_P2H")

def qkv_compute(a):
    sRd, sC, sT, sT2 = range(59, 63)
    vT, vT2, vT3 = qT, qT2, qT3
    F = [F0, F1]
    hi_v[0] = max(hi_v[0], 256)
    qkv_scalars(a)
    if P1F:
        a(f"""s_mul_i32 s{sT}, s{sW4}, 10
s_add_u32 s{sT}, s{sT}, s{sI}
s_mul_i32 s{sT}, s{sT}, {2*NP1}
s_lshr_b32 s70, s{sHG}, 2
s_and_b32 s71, s{sHG}, 1
s_cmp_eq_u32 s70, s71
s_cselect_b32 s{sT}, 6000, s{sT}""")
        wline(a, 252, sT, 2*NP1, vT, vT2, vT3, F0)
    else:
        a(f"s_mul_i32 s{sT}, s{sW4}, 20\ns_add_u32 s{sT}, s{sT}, s{sSL}\ns_mul_i32 s{sT}, s{sT}, {NP1}")
        wline(a, 252, sT, NP1, vT, vT2, vT3, F0)
    a(f"""s_mul_i32 s{sT}, s{sCP}, 320
s_and_b32 s{sT}, s{sT}, 0xffffff80
s_waitcnt lgkmcnt(0)""")
    srd(a, R_B, S_WQKV, 2457600)
    a(f"buffer_load_dword v254, v252, {R(R_B)}, s{sT} offen")
    srd(a, R_C, S_WO, 819200); srd(a, R_WS, S_WS, WS_END); srd(a, R_D, S_DBG, 256)
    for i in range(0, 16*NT, 2): a(f"v_pk_mov_b32 {vr(ACC+i,2)}, 0, 0")
    attn_consts(a)
    a(f"""v_bfe_u32 v{vT}, v{qM}, 1, 3
v_xor_b32 v{vT}, v{vT}, v{qG}
v_lshlrev_b32 v{vT}, 4, v{vT}
v_lshl_add_u32 v{qXb0}, v{qM}, 7, v{vT}
v_xor_b32 v{qXb1}, 64, v{qXb0}
v_bfe_u32 v{vT}, v0, 2, 3
v_mul_u32_u24 v{vT}, 480, v{vT}
v_lshrrev_b32 v{vT2}, 5, v0
v_lshlrev_b32 v{vT2}, 13, v{vT2}
v_add_u32 v{vT2}, {XB}, v{vT2}
s_mul_i32 s{sT}, s{sW4}, 40
v_add3_u32 v{vT}, v{vT}, v{vT2}, s{sT}
v_add_u32 v{vT3}, 3840, v{vT2}
v_and_b32 v{vT2}, 3, v0
v_lshl_add_u32 v{qWb}, v{vT2}, 3, v{vT}
v_cmp_eq_u32 vcc, 2, v{vT2}
v_min_u32 v{vT2}, 2, v{vT2}
v_mul_u32_u24 v{vT2}, 160, v{vT2}
v_add3_u32 v{qDb}, v{vT}, v{vT2}, 32
v_cndmask_b32 v{qDb}, v{qDb}, v{vT3}, vcc
s_mov_b32 s{sRd}, {qslot(0)}
v_add_u32 v{qXa0}, s{sRd}, v{qXb0}
v_add_u32 v{qXa1}, s{sRd}, v{qXb1}
v_add_u32 v{qWa}, s{sRd}, v{qWb}
v_add_u32 v{qDa}, s{sRd}, v{qDb}""")
    tw_gen(a, vT, vT2, vT3, F0)
    a(f"s_lshl_b32 s70, s{sW4}, 12\ns_add_u32 s70, s70, {L_OS}\nv_lshlrev_b32 v{vT}, 4, v0\nv_add_u32 v{vT}, s70, v{vT}")
    for uu in range(4): a(f"ds_write_b128 v{vT}, {vr(TW+4*uu,4)} offset:{1024*uu}")
    ost_setup(a)
    a("s_waitcnt lgkmcnt(0)")
    def reads(fs, s):
        b = F[fs]; r = []
        for t, (reg, off) in enumerate(((qWa, 0), (qWa, 160), (qDa, 0), (qWa, 320))):
            for h in range(2):
                r.append(f"ds_read_b64_tr_b16 {vr(b+FWO+4*t+2*h,2)}, v{reg} offset:{s*16384+h*4096+off}")
        for rt in range(NT):
            r.append(f"ds_read_b128 {vr(b+4*rt,4)}, v{qXa1 if s else qXa0} offset:{2048*rt}")
        return r
    def mfmas(fs, order=range(NT)):
        b = F[fs]; m = []
        for rt in order:
            x = vr(b+4*rt, 4)
            for t in range(4):
                w = vr(b+FWO+4*t, 4); c = vr(A(rt, t), 4)
                m.append(f"{MF} {c}, {w}, {x}, {c}" if t < 3 else f"{MF} {c}, {x}, {w}, {c}")
        return m
    adv = [f"s_add_u32 s{sRd}, s{sRd}, {QSLOT}\ns_cmp_eq_u32 s{sRd}, {3*QSLOT}", f"s_cselect_b32 s{sRd}, 0, s{sRd}\nv_add_u32 v{qXa0}, s{sRd}, v{qXb0}",
           f"v_add_u32 v{qXa1}, s{sRd}, v{qXb1}\nv_add_u32 v{qWa}, s{sRd}, v{qWb}", f"v_add_u32 v{qDa}, s{sRd}, v{qDb}\ns_add_u32 s{sC}, s{sC}, 1"]
    stamp(a, 1)
    a(f"s_mov_b32 s{sC}, 0\ns_barrier")
    hold(a, 4)
    stamp(a, 2)
    for x in reads(0, 0): a(x)
    a("s_waitcnt lgkmcnt(0)")
    if SPL:
        m0 = mfmas(0)
        for x in m0[:16]: a(x)
        a("s_barrier")
        interleave(a, m0[16:], reads(1, 1) + adv, per=2)
        a("s_branch Q_MID")
    a.raw(".p2align 3")
    a.label('Q_LOOP')
    interleave(a, mfmas(0), reads(1, 1) + adv)
    a.label('Q_MID')
    a(f"s_waitcnt lgkmcnt(0)\ns_barrier")
    interleave(a, mfmas(1), reads(0, 0) + [f"s_cmp_lg_u32 s{sC}, 9\ns_nop 0"])
    a("s_waitcnt lgkmcnt(0)\ns_cbranch_scc1 Q_LOOP\ns_barrier\ns_waitcnt vmcnt(0)")
    interleave(a, mfmas(0, range(5)), reads(1, 1))
    a("s_waitcnt lgkmcnt(0)\ns_barrier")
    astamp(a, 1)
    V4 = F1 + FWO; P = F0; DD = F0 + FWO
    def So(u): return F1 + 4*u
    def Kf(u): return A(u, 1)
    def Qf(u): return A(u, 0)
    def pack(u): return pkl(Kf(u), A(u,1)) + pkl(Qf(u), A(u,0)) + pkl(Kf(u)+2, A(u,2)) + pkl(Vp+2+2*u, A(u,3)) + [f"v_pk_mov_b32 {vr(Qf(u)+2,2)}, 0, 0"]
    def tm(u): return f"{MF} {vr(A(u,3),4)}, {vr(Kf(u),4)}, {vr(cI,4)}, 0"
    def sw(u): return [f"v_permlane16_swap_b32 v{Qf(u)+2+q}, v{Kf(u)+2+q}" for q in range(2)]
    def sm_(u):
        r = [f"{MF} {vr(So(u),4)}, {vr(Kf(u),4)}, {vr(Qf(u),4)}, {vr(cBo,4)}"]
        if u: r.append(f"{MF} {vr(A(u,2),4)}, {vr(Kf(u-1),4)}, {vr(Qf(u),4)}, {vr(cBp,4)}")
        return r
    def v4(u): return pkl(V4+2+2*u, A(u,3))
    def pz(u): return f"v_pk_mov_b32 {vr(P+4*u,2)}, 0, 0"
    m = mfmas(1, range(5)) + mfmas(0, (5,)) + mfmas(1, (5,)) + mfmas(0, (6,)) + mfmas(1, (6,))
    interleave(a, m[:8], [pz(0), pz(1), pz(2), pz(3), pz(4), f"v_add_u32 v10, s78, v{vOS1}\nv_add_u32 v11, s79, v{vOS1}", f"v_add_u32 v12, s80, v{vOS1}\nv_add_u32 v13, s81, v{vOS1}", f"s_mov_b32 s70, {f32(20**-0.5 * 1.4426950408889634)}\ns_mov_b32 s71, s70\ns_mov_b32 s72, 0\ns_mov_b32 s73, 0x00ff00ff"])
    interleave(a, m[8:31], pack(0) + pack(1) + pack(2) + pack(3) + pack(4), per=2)
    for x in [tm(0), m[31], tm(1), m[32], sw(0)[0], tm(2), sw(0)[1], m[33], sw(1)[0], tm(3), sw(1)[1], m[34], sw(2)[0], tm(4), sw(2)[1], m[35]]: a(x)
    stamp(a, 3)
    interleave(a, sm_(0) + sm_(1) + sm_(2), pack(5) + [pz(5)], per=2)
    for x in sw(3) + sw(4): a(x)
    interleave(a, [tm(5)] + sm_(3) + sm_(4), pack(6) + [pz(6)], per=2)
    a(f"v_pk_mov_b32 {vr(V4,2)}, 0, 0")
    a(tm(6))
    for x in sw(5) + v4(0) + sw(6): a(x)
    interleave(a, sm_(5) + sm_(6), v4(1) + v4(2) + v4(3) + v4(4), per=2)
    for x in v4(5) + v4(6): a(x)
    astamp(a, 2)
    a("s_mov_b64 exec, s[72:73]")
    for u in range(1, NT):
        for q in (0, 2): a(f"v_pk_mov_b32 {vr(So(u)+q,2)}, {vr(A(u,2)+q,2)}, {vr(A(u,2)+q,2)} op_sel:[0,1]")
    a("s_mov_b64 exec, -1")
    M = [A(u, 2) for u in range(NT)] + [A(6, 2) + 2]
    order = (6, 4, 5, 0, 1, 2, 3)
    for u in order: a(f"v_max3_f32 v{M[u]}, v{So(u)}, v{So(u)+1}, v{So(u)+2}")
    a(f"v_max_f32 v{M[7]}, v{M[6]}, v{So(6)+3}")
    for u in order: a(f"v_max_f32 v{M[u]}, v{M[u]}, v{So(u)+3}")
    S32, S16 = 'v_permlane32_swap_b32', 'v_permlane16_swap_b32'
    a(f"""{S32} v{M[6]}, v{M[7]}
{S32} v{M[4]}, v{M[5]}
{S32} v{M[0]}, v{M[1]}
{S32} v{M[2]}, v{M[3]}
v_max_f32 v{M[6]}, v{M[6]}, v{M[7]}
v_max_f32 v{M[4]}, v{M[4]}, v{M[5]}
v_max_f32 v{M[0]}, v{M[0]}, v{M[1]}
v_max_f32 v{M[2]}, v{M[2]}, v{M[3]}
{S16} v{M[4]}, v{M[6]}
{S16} v{M[0]}, v{M[2]}
v_max_f32 v{M[4]}, v{M[4]}, v{M[6]}
v_max_f32 v{M[0]}, v{M[0]}, v{M[2]}
v_mul_f32 v{M[6]}, s70, v{M[4]}
v_mul_f32 v{M[4]}, s70, v{M[4]}
v_mul_f32 v{M[2]}, s70, v{M[0]}
v_mul_f32 v{M[0]}, s70, v{M[0]}
{S16} v{M[4]}, v{M[6]}
{S16} v{M[0]}, v{M[2]}
v_mov_b32 v{M[5]}, v{M[4]}
v_mov_b32 v{M[1]}, v{M[0]}
v_mov_b32 v{M[3]}, v{M[2]}""")
    def sc(u): return [f"v_pk_fma_f32 {vr(So(u)+2*q,2)}, {vr(So(u)+2*q,2)}, s[70:71], {vr(M[u],2)} op_sel_hi:[1,0,0] neg_lo:[0,0,1] neg_hi:[0,0,1]" for q in range(2)]
    def ex(u): return [f"v_exp_f32 v{So(u)+r}, v{So(u)+r}" for r in range(4)]
    def pc(u): return pkl(P+4*u+2, So(u))
    def ps(us):
        r = ["s_mov_b64 exec, s[72:73]"]
        for u in us: r.append(f"v_pk_mov_b32 {vr(P+4*u,2)}, {vr(P+4*u+2,2)}, {vr(P+4*u+2,2)} op_sel:[0,1]")
        for u in us: r.append(f"v_pk_mov_b32 {vr(P+4*u+2,2)}, 0, 0")
        return r + ["s_mov_b64 exec, -1"]
    def pv(u):
        p = vr(P+4*u, 4)
        return [f"{MF} {vr(A(u,2),4)}, {vr(cOne,4)}, {p}, 0", f"{MF} {vr(A(u,0),4)}, {vr(Vp+2*u,4)}, {p}, 0", f"{MF} {vr(A(u,1),4)}, {vr(V4+2*u,4)}, {p}, 0"]
    def rc(u): return [f"v_rcp_f32 v{A(u,2)}, v{A(u,2)}"]
    def nm(u): return [f"v_pk_mul_f32 {vr(A(u,0)+2*q,2)}, {vr(A(u,0)+2*q,2)}, {vr(A(u,2),2)} op_sel_hi:[1,0]" for q in range(2)]
    def oc(u): return pkl(A(u,3), A(u,0)) + [f"ds_write_b64 v{qOC}, {vr(A(u,3),2)} offset:{u*16*176}"]
    def dd(k, us):
        r = ["s_mov_b64 exec, 0xffff"]
        for n, u in enumerate(us):
            if n: r.append("s_lshl_b64 exec, exec, 16")
            r += [f"v_pk_mul_f32 {vr(DD+4*k+2*q,2)}, {vr(A(u,1)+2*q,2)}, {vr(A(u,2),2)} op_sel_hi:[1,0]" for q in range(2)]
        r.append("s_mov_b64 exec, -1")
        if len(us) < 4: r.append("s_mov_b32 exec_hi, 0xffff")
        r += pkl(DD+4*k, DD+4*k) + [f"ds_write_b64 v{qOD}, {vr(DD+4*k,2)} offset:{k*64*176}"]
        if len(us) < 4: r.append("s_mov_b32 exec_hi, -1")
        return r
    for x in sc(6): a(x)
    a(f"{S32} v{M[4]}, v{M[5]}\n{S32} v{M[0]}, v{M[1]}\n{S32} v{M[2]}, v{M[3]}")
    for x in ex(6) + sc(4) + sc(5) + ex(4) + ex(5) + sc(0) + sc(1) + sc(2) + sc(3) + pc(6) + pc(4) + pc(5) + ps((4, 5, 6)): a(x)
    astamp(a, 3)
    e = ex(0) + ex(1) + ex(2) + ex(3)
    interleave(a, pv(6) + pv(4) + pv(5), e[:9])
    for x in e[9:] + rc(6) + rc(4) + pc(0) + pc(1) + pc(2) + pc(3) + rc(5) + ps((1, 2, 3)): a(x)
    interleave(a, pv(0) + pv(1) + pv(2) + pv(3), nm(6) + nm(4) + nm(5) + oc(6) + oc(4) + oc(5), per=2)
    for x in dd(1, (4, 5, 6)) + rc(0) + rc(1) + rc(2) + rc(3) + nm(0) + nm(1) + nm(2) + nm(3) + oc(0) + oc(1) + oc(2) + oc(3) + dd(0, (0, 1, 2, 3)): a(x)

def attention(a):
    vd = 168
    astamp(a, 5)
    a("s_waitcnt lgkmcnt(0)\ns_barrier")
    if AST: a(f"s_memtime s[{S_ST+12}:{S_ST+13}]")
    for q in range(4): a(f"ds_read_b128 {vr(vd+4*q,4)}, v{10+q}")
    a(f"ds_read_b128 {vr(vd+16,4)}, v{vO6a}")
    for q in range(4):
        a(f"s_mov_b64 exec, s[{OM+2*q}:{OM+2*q+1}]\ns_waitcnt lgkmcnt({0 if AST else 4-q})\nbuffer_store_dwordx4 {vr(vd+4*q,4)}, v{vOS2}, {R(R_WS)}, s{74+q} offen sc1")
    a(f"s_mov_b64 exec, -1\ns_waitcnt lgkmcnt(0)\nbuffer_store_dwordx4 {vr(vd+16,4)}, v{vO6g}, {R(R_WS)}, 0 offen sc1")

sA, sN2 = 56, 57
def dft_scalars(a):
    a(f"""s_sub_u32 s{sA}, s{sSL}, 24
s_lshl_b32 s{sN2}, s{sA}, 3
s_lshl_b32 s70, s{sW4}, 1
s_add_u32 s{sN2}, s{sN2}, s70
s_add_u32 s{sN2}, s{sN2}, s{sP}""")

def dft_loader(a):
    sT, sT2, sXo, sKo, sM0X, sM0C = range(58, 64)
    vT, vT2, vT3, vGa, vGr, vGo_ = 2, 3, 4, 5, 6, 7
    vXo = 8; vCo = 12; XG = 20; GW = 28
    dft_scalars(a)
    a(f"""v_lshrrev_b32 v{vT}, 3, v0
v_and_b32 v{vT2}, 7, v0
s_mul_i32 s{sXo}, s{sN2}, 1280
s_lshl_b32 s{sM0X}, s{sW4}, 12""")
    for j in range(4):
        a(f"""v_add_u32 v{vT3}, {8*j}, v{vT}
v_mul_u32_u24 v{vXo+j}, {64*1280}, v{vT3}
v_bfe_u32 v{vT3}, v{vT3}, 1, 3
v_xor_b32 v{vT3}, v{vT3}, v{vT2}
v_lshl_add_u32 v{vXo+j}, v{vT3}, 4, v{vXo+j}""")
        if j: a(f"v_subrev_u32 v{vXo+j}, {1024*j}, v{vXo+j}")
    sFo = 65
    for i in range(5):
        a(f"s_add_u32 s70, s{sRot}, {i}\ns_sub_u32 s71, s70, 5\ns_min_u32 s70, s70, s71\ns_lshl_b32 s{sFo+i}, s70, 7")
    a("s_waitcnt lgkmcnt(0)")
    srd(a, R_A, S_X, 2621440)
    def xd(f):
        for h in range(2):
            a(f"s_add_u32 m0, s{sM0X}, {DSLOT*((f+1)%3) + 16384*h}")
            a(f"s_add_u32 s{sT}, s{sXo}, s{sFo+f}" if h == 0 else f"s_add_u32 s{sT}, s{sT}, 640")
            for j in range(4):
                a(f"buffer_load_dwordx4 v{vXo+j}, {R(R_A)}, s{sT} offen offset:{1024*j} lds")
    sEm = 64
    def cd(f):
        for j in range(5):
            if j == 0: a(f"s_add_u32 m0, s{sM0C}, {DSLOT*((f+1)%3) + 32768}\ns_add_u32 s{sT}, s{sKo}, s{sFo+f}\ns_mov_b32 exec_lo, s{sEm}")
            if j == 4: a("s_add_u32 m0, m0, 4096")
            a(f"buffer_load_dwordx4 v{vCo+j}, {R(R_B)}, s{sT} offen offset:{1024*(j&3)} lds")
            if j == 0: a("s_mov_b32 exec_lo, -1")
    xd(0)
    a(f"""s_lshl_b32 s70, s{sCP}, 2
s_add_u32 s70, s70, s{sW4}
s_cmp_eq_u32 s70, 2
s_cselect_b32 s{sEm}, 0xffffff00, -1
s_cbranch_scc0 L_NOROW
v_mov_b32 v{XG}, 0xbf803f80
v_lshlrev_b32 v{XG+1}, 2, v0
v_and_b32 v{XG+1}, 127, v{XG+1}
v_add_u32 v{XG+1}, {32768+10240}, v{XG+1}
ds_write_b32 v{XG+1}, v{XG}
ds_write_b32 v{XG+1}, v{XG} offset:{DSLOT}
v_add_u32 v{XG+1}, {2*DSLOT}, v{XG+1}
ds_write_b32 v{XG+1}, v{XG}
s_waitcnt lgkmcnt(0)
L_NOROW:""")
    a(f"""s_lshr_b32 s{sKo}, s{sCP}, 1
s_mul_i32 s{sKo}, s{sKo}, 160
s_and_b32 s70, s{sCP}, 1
s_add_u32 s{sKo}, s{sKo}, s70
s_mul_i32 s{sKo}, s{sKo}, 1280
s_and_b32 s70, s{sW4}, 1
s_mul_i32 s70, s70, {40*2560}
s_add_u32 s{sKo}, s{sKo}, s70
s_mul_i32 s{sM0C}, s{sW4}, 5120
s_cmp_lt_u32 s{sW4}, 2
s_cselect_b32 s{R_B}, s{S_HRE}, s{S_HIM}
s_cselect_b32 s{R_B+1}, s{S_HRE+1}, s{S_HIM+1}
s_mov_b32 s{R_B+2}, 819200
s_mov_b32 s{R_B+3}, 0x20000
s_and_b32 s70, s{sW4}, 1
s_lshl_b32 s70, s70, 2""")
    for j in range(5):
        a(f"""v_add_u32 v{vT3}, {8*j}, v{vT}
v_mul_u32_u24 v{vCo+j}, 2560, v{vT3}
v_lshrrev_b32 v{vT3}, 1, v{vT3}
v_add_u32 v{vT3}, s70, v{vT3}
v_and_b32 v{vT3}, 7, v{vT3}
v_xor_b32 v{vT3}, v{vT3}, v{vT2}
v_lshl_add_u32 v{vCo+j}, v{vT3}, 4, v{vCo+j}""")
        if j & 3: a(f"v_subrev_u32 v{vCo+j}, {1024*(j&3)}, v{vCo+j}")
    srd(a, R_WS, S_WS, WS_END); srd(a, R_C, S_WO, 819200); srd(a, R_D, S_DBG, 256)
    wo_setup(a, vT, vT2, vT3)
    g_setup(a, vT, vT2, vT3)
    a(f"""s_lshl_b32 s{sT2}, s{sA}, 2
s_add_u32 s{sT2}, s{sT2}, s{sW4}
s_mul_i32 s{sT2}, s{sT2}, 25600
v_lshlrev_b32 v{vT}, 7, v0
v_mov_b32 v{vT3}, {OOB}
v_cmp_gt_u32 vcc, 50, v0
v_cndmask_b32 v{vT}, v{vT3}, v{vT}, vcc""")
    cd(0); xd(1)
    stamp(a, 1)
    a("s_waitcnt vmcnt(8)\ns_barrier")
    cd(1); xd(2)
    a("s_waitcnt vmcnt(8)\ns_barrier")
    cd(2); xd(3)
    a("s_waitcnt vmcnt(8)\ns_barrier")
    cd(3); xd(4)
    a("s_waitcnt vmcnt(8)\ns_barrier")
    cd(4)
    for q in range(NPD): a(f"buffer_load_dword v{vT3}, v{vT}, {R(R_C)}, s{sT2} offen\ns_add_u32 s{sT2}, s{sT2}, 6400")
    sched = {0: (0,0,0,0), 1: (1,1,1,2), 2: (2,1,1,1), 3: (0,1,1,1), 4: (1,1,1,0)}[DWS]
    nr = [0]
    def rounds(n):
        for _ in range(n): wo_dma(a, nr[0]); nr[0] += 1
    rounds(sched[0])
    a(f"s_waitcnt vmcnt({NPD + 5*sched[0]})\ns_barrier")
    stamp(a, 2)
    clr_read(a)
    rounds(sched[1])
    a("s_barrier")
    rounds(sched[2])
    clr_check(a, 20)
    a("s_barrier")
    rounds(sched[3])
    a("s_barrier")
    stamp(a, 3)
    a("s_cmp_lg_u32 s3, 4\ns_cbranch_scc1 L_NOPUB")
    flag_store(a, 20, '0xff')
    a("L_NOPUB:")
    rounds(5 - nr[0])
    tw_gen(a, 20, 21, 22, 23)
    a("s_branch L_P2H")

def dft_compute(a):
    V = RegAlloc('v', 2, 256)
    sKo, sT, sT2 = range(58, 61)
    vM, vG, vT, vT2, vT3 = [V.alloc() for _ in range(5)]
    vXa0, vXa1, vCa0, vCa1, vSp = [V.alloc() for _ in range(5)]
    SEL = V.alloc(10, 2)
    acc = V.alloc(80, 4)
    FC = [V.alloc(40, 4), V.alloc(40, 4)]
    RW = V.alloc(16, 4); fRe = V.alloc(4, 4); fIm = V.alloc(4, 4)
    TT = V.alloc(16, 4); XF = V.alloc(16, 4)
    Sb, Sa, Nb, Na = SEL, SEL+2, SEL+4, SEL+6
    def A_(ct, rt): return acc + 8*ct + 4*rt
    dft_scalars(a)
    a(f"""s_lshr_b32 s{sKo}, s{sCP}, 1
s_mul_i32 s{sKo}, s{sKo}, 160
s_and_b32 s70, s{sCP}, 1
s_add_u32 s{sKo}, s{sKo}, s70
s_mul_i32 s{sKo}, s{sKo}, 1280
s_and_b32 s70, s{sW4}, 1
s_mul_i32 s70, s70, {40*2560}
s_add_u32 s{sKo}, s{sKo}, s70
v_mul_u32_u24 v{vT}, 52, v0
v_lshrrev_b32 v{vT}, 8, v{vT}
v_mul_u32_u24 v{vT}, {2560-640}, v{vT}
v_lshl_add_u32 v{vT}, v0, 7, v{vT}
v_mov_b32 v{vT3}, {OOB}
v_cmp_gt_u32 vcc, 25, v0
v_cndmask_b32 v{vT}, v{vT3}, v{vT}, vcc
s_mul_i32 s{sT}, s{sA}, {5*2560}
s_add_u32 s{sT}, s{sT}, s{sKo}
s_waitcnt lgkmcnt(0)
s_cmp_lt_u32 s{sW4}, 2
s_cselect_b32 s{R_B}, s{S_HRE}, s{S_HIM}
s_cselect_b32 s{R_B+1}, s{S_HRE+1}, s{S_HIM+1}
s_mov_b32 s{R_B+2}, 819200
s_mov_b32 s{R_B+3}, 0x20000
buffer_load_dword v{RW}, v{vT}, {R(R_B)}, s{sT} offen""")
    assert all((q*52) >> 8 == q//5 for q in range(25))
    if PRE:
        srd(a, R_C, S_WO, 819200)
        a(f"""s_sub_u32 s70, s2, 192
s_lshl_b32 s70, s70, 2
s_add_u32 s70, s70, s{sW4}
s_mul_i32 s70, s70, 3200
v_lshlrev_b32 v{vT}, 7, v0
v_cndmask_b32 v{vT}, v{vT3}, v{vT}, vcc
buffer_load_dword v{RW+1}, v{vT}, {R(R_C)}, s70 offen""")
    srd(a, R_C, S_SRE, 8388608); srd(a, R_D, S_SIM, 8388608); srd(a, R_WS, S_WS, WS_END)
    a(f"""v_and_b32 v{vM}, 15, v0
v_lshrrev_b32 v{vG}, 4, v0
v_lshrrev_b32 v{vT}, 1, v{vM}
s_lshl_b32 s{sT}, s{sW4}, 3
v_add_u32 v{vT}, s{sT}, v{vT}
v_lshlrev_b32 v{vT}, 18, v{vT}
v_lshl_add_u32 v{vT}, v{vG}, 3, v{vT}
buffer_load_dwordx2 {vr(fRe,2)}, v{vT}, {R(R_C)}, 0 offen
buffer_load_dwordx2 {vr(fRe+2,2)}, v{vT}, {R(R_C)}, 0 offen offset:32
buffer_load_dwordx2 {vr(fIm,2)}, v{vT}, {R(R_D)}, 0 offen
buffer_load_dwordx2 {vr(fIm+2,2)}, v{vT}, {R(R_D)}, 0 offen offset:32""")
    if PXD:
        srd(a, R_A, S_X, 2621440)
        a(f"""v_and_b32 v{vT}, 31, v0
v_mul_u32_u24 v{vT}, {64*1280}, v{vT}
v_lshrrev_b32 v{vT2}, 5, v0
v_mul_u32_u24 v{vT2}, 640, v{vT2}
v_add_u32 v{vT}, v{vT}, v{vT2}
s_mul_i32 s{sT}, s{sN2}, 1280""")
        for i in range(1, 1+PXD):
            a(f"s_add_u32 s70, s{sRot}, {i}\ns_sub_u32 s71, s70, 5\ns_min_u32 s70, s70, s71\ns_lshl_b32 s70, s70, 7\ns_add_u32 s70, s70, s{sT}")
            a(f"buffer_load_dword v{RW+2}, v{vT}, {R(R_A)}, s70 offen")
    for i in range(0, 80, 2): a(f"v_pk_mov_b32 {vr(acc+i,2)}, 0, 0")
    a(f"""s_lshl_b32 s70, s3, 8
s_add_u32 s70, s70, s{sSL}
s_cmp_lg_u32 s70, 31
s_cbranch_scc1 L_NOCLR
v_lshlrev_b32 v{vT}, 7, v0
s_and_b32 s70, s2, 7
s_lshl_b32 s70, s70, 13
s_add_u32 s70, s70, {WS_FLAG}
buffer_store_dwordx4 {vr(acc,4)}, v{vT}, {R(R_WS)}, s70 offen sc1
L_NOCLR:""")
    a(f"""v_bfe_u32 v{vT}, v{vM}, 1, 3
v_xor_b32 v{vT}, v{vT}, v{vG}
v_lshlrev_b32 v{vT}, 4, v{vT}
v_lshl_add_u32 v{vT}, v{vM}, 7, v{vT}
s_lshl_b32 s{sT}, s{sW4}, 12
s_add_u32 s{sT}, s{sT}, {DSLOT}
v_add_u32 v{vXa0}, s{sT}, v{vT}
v_xor_b32 v{vXa1}, 64, v{vXa0}
v_add_u32 v{vCa0}, {DSLOT+32768}, v{vT}
v_xor_b32 v{vCa1}, 64, v{vCa0}
s_cmp_eq_u32 s{sCP}, 0
s_cselect_b32 s66, 0x00010001, 0
s_mov_b32 s67, s66
v_lshlrev_b32 v{vT}, 2, v{vG}
v_sub_u32 v{vT}, v{vM}, v{vT}
s_bitcmp1_b32 s{sCP}, 0
s_cselect_b32 s70, 0x80008000, 0""")
    for z in (0, 4, 8): a(f"v_pk_mov_b32 {vr(SEL+z,2)}, 0, 0")
    for pr in range(2):
        a(f"""v_mov_b32 v{vT2}, 0x3f80
v_cmp_eq_u32 vcc, {2*pr}, v{vT}
v_cndmask_b32 v{SEL+2+pr}, 0, v{vT2}, vcc
v_mov_b32 v{vT2}, 0x3f800000
v_cmp_eq_u32 vcc, {2*pr+1}, v{vT}
v_cndmask_b32 v{SEL+2+pr}, v{SEL+2+pr}, v{vT2}, vcc
v_xor_b32 v{SEL+6+pr}, s70, v{SEL+2+pr}""")
    a("s_waitcnt vmcnt(0)")
    srd(a, R_D, S_DBG, 256)
    a(f"""s_lshl_b32 s70, s3, 8
s_add_u32 s70, s70, s{sSL}
s_cmp_lg_u32 s70, 31
s_cbranch_scc1 L_NOCLR2
s_and_b32 s70, s2, 7
s_lshl_b32 s70, s70, 2
v_mov_b32 v{vT}, 1
s_mov_b64 exec, 1
buffer_store_dword v{vT}, v{acc}, {R(R_D)}, s70 offen sc1
s_mov_b64 exec, -1
L_NOCLR2:""")
    def rreads(s): return [f"ds_read_b128 {vr(RW+8*rt+4*h,4)}, v{vXa1 if s else vXa0} offset:{16384*h+2048*rt}" for rt in range(2) for h in range(2)]
    def creads(s): return [f"ds_read_b128 {vr(FC[s]+4*ct,4)}, v{vCa1 if s else vCa0} offset:{2048*ct}" for ct in range(10)]
    def foldm():
        m = []
        for rt in range(2):
            for t, S_ in enumerate((Sa, Sb)): m.append(f"{MF} {vr(TT+8*rt+4*t,4)}, {vr(S_,4)}, {vr(RW+8*rt,4)}, 0")
        for rt in range(2):
            for t, N_ in enumerate((Na, Nb)): m.append(f"{MF} {vr(TT+8*rt+4*t,4)}, {vr(N_,4)}, {vr(RW+8*rt+4,4)}, {vr(TT+8*rt+4*t,4)}")
        return m
    def packx(s): return sum((pkl(XF+8*s+4*rt+2*t, TT+8*rt+4*t) for rt in range(2) for t in range(2)), [])
    def mainm(s):
        m = []
        for ct in range(10):
            for rt in range(2):
                c = vr(A_(ct, rt), 4)
                m.append(f"{MF} {c}, {vr(XF+8*s+4*rt,4)}, {vr(FC[s]+4*ct,4)}, {c}")
        return m
    def step(s, nxt):
        m = mainm(s)
        if not nxt:
            for x in m: a(x)
            return
        cr = creads(1-s)
        interleave(a, m[:9], rreads(1-s) + cr[:5])
        a("s_waitcnt lgkmcnt(5)")
        interleave(a, foldm(), cr[5:])
        interleave(a, m[9:], packx(1-s), start=3, per=2)
        a("s_waitcnt lgkmcnt(0)")
    def adv(f):
        d = DSLOT if (f+2) % 3 else -2*DSLOT
        op = 'v_add_u32' if d > 0 else 'v_subrev_u32'
        for r_ in (vXa0, vXa1, vCa0, vCa1): a(f"{op} v{r_}, {abs(d)}, v{r_}")
    stamp(a, 1)
    a("s_barrier")
    stamp(a, 2)
    for x in rreads(0) + creads(0): a(x)
    a("s_waitcnt lgkmcnt(10)")
    for x in foldm(): a(x)
    for x in packx(0): a(x)
    a("s_waitcnt lgkmcnt(0)")
    for f in range(5):
        step(0, True)
        if f < 4: adv(f)
        a("s_barrier")
        step(1, f < 4)
    stamp(a, 3)
    A1, A2 = RW, RW + 4
    a(f"""v_and_b32 v{vT}, 1, v0
v_cmp_eq_u32 vcc, 1, v{vT}
s_mul_i32 s{sT}, s{sW4}, {10*1024}
v_lshlrev_b32 v{vT2}, 4, v0
v_add_u32 v{vT2}, {L_U}, v{vT2}
v_add_u32 v{vT3}, s{sT}, v{vT2}""")
    for q in range(4):
        a(f"""v_cndmask_b32 v{A1+q}, v{fRe+q}, v{fIm+q}, vcc
v_xor_b32 v{fIm+q}, 0x80008000, v{fIm+q}
v_cndmask_b32 v{A2+q}, v{fIm+q}, v{fRe+q}, vcc""")
    U = FC[0]
    for ct in range(10):
        a(pk(U+4*ct, A_(ct, 0))); a(pk(U+4*ct+2, A_(ct, 1)))
        a(f"ds_write_b128 v{vT3}, {vr(U+4*ct,4)} offset:{1024*ct}")
    vGo, vGe = vXa1, vCa0
    a(f"""s_lshl_b32 s{sT}, s{sW4}, 7
s_lshl_b32 s{sT2}, s{sA}, 1
s_add_u32 s{sT}, s{sT}, s{sT2}
s_add_u32 s{sT}, s{sT}, s{sP}
s_mul_i32 s{sT}, s{sT}, {GP*16}
s_add_u32 s{sT}, s{sT}, {WS_G}
v_mul_u32_u24 v{vGe}, {32*GP*16}, v{vG}
v_add_u32 v{vGe}, s{sT}, v{vGe}
s_and_b32 s{sT}, s{sCP}, 1
s_mul_i32 s{sT}, s{sT}, {168*16}
s_lshr_b32 s{sT2}, s{sCP}, 1
s_mul_i32 s{sT2}, s{sT2}, 1280
s_add_u32 s{sT2}, s{sT2}, s{sT}
v_lshl_add_u32 v{vGo}, v{vM}, 4, v{vGe}
v_add_u32 v{vGo}, s{sT2}, v{vGo}
v_add_u32 v{vGe}, {160*16}, v{vGe}
v_mov_b32 v{vXa0}, {OOB}
v_cndmask_b32 v{vGe}, v{vXa0}, v{vGe}, s[66:67]
s_mov_b32 s{sT}, 0
s_mov_b32 s{sT2}, {16*GP*16}
s_waitcnt lgkmcnt(0)
s_barrier""")
    UB = [FC[0], FC[1]]
    order = (1, 2, 3, 4, 0)
    def rd(i):
        ct = order[i]; b = UB[i & 1]; r = []
        for w in range(4):
            r.append(f"ds_read_b128 {vr(b+8*w,4)}, v{vT2} offset:{w*10240+1024*ct}")
            r.append(f"ds_read_b128 {vr(b+8*w+4,4)}, v{vT2} offset:{w*10240+1024*(ct+5)}")
        return r
    def fin(i, vo, off):
        d = acc + 24*(i % 3); o = d + 16; r = []
        for w in range(4): r.append(f"v_cvt_pk_bf16_f32 v{o+w}, v{d+4*w}, v{d+4*w+1}")
        r.append(f"buffer_store_dwordx4 {vr(o,4)}, v{vo}, {R(R_WS)}, s{sT} offen offset:{off} sc1")
        for w in range(4): r.append(f"v_cvt_pk_bf16_f32 v{o+4+w}, v{d+4*w+2}, v{d+4*w+3}")
        r.append(f"buffer_store_dwordx4 {vr(o+4,4)}, v{vo}, {R(R_WS)}, s{sT2} offen offset:{off} sc1")
        return r
    for x in rd(0): a(x)
    for i in range(5):
        a("s_waitcnt lgkmcnt(0)")
        if i < 4:
            for x in rd(i+1): a(x)
        b = UB[i & 1]; d = acc + 24*(i % 3)
        m1 = [f"{MF} {vr(d+4*w,4)}, {vr(A1,4)}, {vr(b+8*w,4)}, 0" for w in range(4)]
        m2 = [f"{MF} {vr(d+4*w,4)}, {vr(A2,4)}, {vr(b+8*w+4,4)}, {vr(d+4*w,4)}" for w in range(4)]
        fl = fin(i-1, vGo, 256*order[i-1]) if i else []
        if i < 4:
            interleave(a, m1 + m2, fl, per=2, start=1)
        else:
            d5 = acc + 24*(5 % 3)
            m0 = [f"{MF} {vr(d5+4*w,4)}, {vr(A1,4)}, {vr(b+8*w+4,4)}, 0" for w in range(4)]
            interleave(a, m0 + m1, fl, per=2, start=1)
            a("s_mov_b64 exec, s[66:67]")
            for w in range(4): a(f"v_pk_mov_b32 {vr(b+8*w+4,2)}, 0, 0\nv_pk_mov_b32 {vr(b+8*w+6,2)}, 0, 0")
            a("s_mov_b64 exec, -1")
            interleave(a, m2, fin(5, vGe, 0), per=2)
    for x in fin(4, vGo, 0): a(x)
    a("s_waitcnt vmcnt(0)\ns_barrier")
    a("s_barrier\ns_branch L_P2")

class P2: pass
def p2_regs():
    V = RegAlloc('v', 2, 256)
    r = P2()
    r.vM, r.vG, r.vT, r.vT2, r.vT3, r.vRow, r.vWa, r.vWs = [V.alloc() for _ in range(8)]
    V.alloc(10)
    r.vOa, r.vPo, r.vEx, r.vGa = [V.alloc() for _ in range(4)]
    r.vGl = V.alloc(2, 2); r.vOut = V.alloc(2)
    r.WR = V.alloc(20*NREG, 4)
    r.accB = V.alloc(20, 4); r.fO = V.alloc(20, 4); r.FW = V.alloc(20, 4); r.vPl = V.alloc(4, 4); r.fT = V.alloc(16, 4)
    r.vG1 = V.alloc(4, 2); r.vX = V.alloc(4)
    assert r.fT == TW
    return r
sHH, p2T, p2T2, p2T3, sSg, sOB, sQ0, sQ1, sFl, sEx = range(56, 66)

def p2_calc():
    r = p2_regs(); globals().update({k: v for k, v in r.__dict__.items()})
    sT, sT2, sT3 = p2T, p2T2, p2T3
    vOo = 10
    FA = [vX, vX+1, None, vX+2, vX+3]
    fill = [f"""s_lshr_b32 s{sHH}, s3, 2
v_and_b32 v{vM}, 15, v0
v_lshrrev_b32 v{vG}, 4, v0
v_bfe_u32 v{vT}, v0, 2, 3
v_lshrrev_b32 v{vT2}, 5, v0
v_lshl_add_u32 v{vT}, v{vT2}, 4, v{vT}
v_mul_u32_u24 v{vT}, 160, v{vT}
v_and_b32 v{vT2}, 3, v0
v_lshl_add_u32 v{vT}, v{vT2}, 3, v{vT}
s_mul_i32 s{sT2}, s{sHH}, {NREG*5120}
v_add_u32 v{vWa}, s{sT2}, v{vT}
s_mul_i32 s{sT2}, s{sHH}, {(10-NREG)*5120}
s_add_u32 s{sT2}, s{sT2}, {14*5120}
v_add_u32 v{vWs}, s{sT2}, v{vT}"""]
    assert all((q*6554) >> 16 == q//10 for q in range(1100))
    for q in range(2):
        fill.append(f"""s_mul_i32 s{sT}, s{sK1}, 1280
s_mul_i32 s{sT2}, s{sC2}, 160
s_add_u32 s{sT}, s{sT}, s{sT2}
s_lshl_b32 s{sT2}, s3, 6
s_add_u32 s{sT2}, s{sT2}, {512*q}
s_mov_b32 s{sT3}, {L_GT}
v_add_u32 v{vT}, s{sT2}, v0
v_mul_u32_u24 v{vT2}, 6554, v{vT}
v_lshrrev_b32 v{vT2}, 16, v{vT2}
v_lshl_add_u32 v{vG1+2*q+1}, v{vT2}, 2, s{sT3}
v_mul_u32_u24 v{vT3}, 10, v{vT2}
v_sub_u32 v{vT}, v{vT}, v{vT3}
v_mul_u32_u24 v{vT3}, {32*1280}, v{vT2}
v_lshl_add_u32 v{vT3}, v{vT}, 4, v{vT3}
v_add_u32 v{vOut+q}, s{sT}, v{vT3}
v_mul_u32_u24 v{vT3}, {EXP}, v{vT2}
v_lshl_add_u32 v{vT}, v{vT}, 5, v{vT3}
v_lshrrev_b32 v{vT2}, 4, v{vT2}
v_mul_u32_u24 v{vT3}, {10240-16*EXP}, v{vT2}
v_add_u32 v{FA[3*q]}, v{vT}, v{vT3}
v_add_u32 v{vT2}, 1, v{vT2}
v_lshrrev_b32 v{vT2}, 2, v{vT2}
v_mul_u32_u24 v{vT2}, {L_OB7-71680}, v{vT2}
v_add_u32 v{FA[3*q+1]}, v{FA[3*q]}, v{vT2}""")
    s_ = ""
    for P in range(2):
        s_ += f"""s_lshl_b32 s{sT}, s{sHH}, 1
s_add_u32 s{sT}, s{sT}, s{sC2}
s_add_u32 s{sT}, s{sT}, {P}
s_and_b32 s{sT}, s{sT}, 3
s_lshl_b32 s{sT2}, s{sK1}, 2
s_add_u32 s{sT}, s{sT}, s{sT2}
s_lshl_b32 s{sT}, s{sT}, 3
s_add_u32 s{sT}, s{sT}, s{sW4}
s_mul_i32 s{sQ0+P}, s{sT}, 2560
"""
    fill.append(s_ + f"""s_mul_i32 s{sOB}, s3, 10240
s_cmp_eq_u32 s3, 7
s_cselect_b32 s{sOB}, {L_OB7}, s{sOB}
v_and_b32 v{vT}, 1, v{vG}
v_lshrrev_b32 v{vT2}, 1, v{vG}
v_xor_b32 v{vT2}, v{vT2}, v{vT}
v_mul_u32_u24 v{vT}, 2560, v{vT}
v_lshl_add_u32 v{vT}, v{vT2}, 4, v{vT}
v_mul_u32_u24 v{vT2}, 160, v{vM}
v_add3_u32 v{vOa}, v{vT}, v{vT2}, s{sOB}
v_mul_u32_u24 v{vEx}, {EXP}, v{vM}
v_lshl_add_u32 v{vEx}, v{vG}, 4, v{vEx}
v_add_u32 v{vEx}, s{sOB}, v{vEx}""")
    fill.append(f"""s_mov_b32 s{R_A}, s{S_OUT}
s_mov_b32 s{R_A+1}, s{S_OUT+1}
s_mov_b32 s{R_A+2}, 2621440
s_mov_b32 s{R_A+3}, 0x20000
v_lshlrev_b32 v{vOo}, 4, v0
v_mov_b32 v{vOo+1}, v{vOo}
v_xor_b32 v{vT}, 16, v{vOo}
v_add_u32 v{vOo+3}, {10240 + (192-160)*16 - 3072}, v{vT}
v_add_u32 v{vOo+4}, {10240 + (256-160)*16}, v{vT}
v_add_u32 v{vOo+2}, {10240 + (128-160)*16 - 2048}, v{vT}
s_mov_b32 exec_hi, 0
v_mov_b32 v{vOo+2}, v{vOo}
s_mov_b32 exec_hi, -1""")
    hp = f"""s_and_b32 s{sEx}, s2, 7
s_lshl_b32 s{sEx}, s{sEx}, 13
s_add_u32 s{sEx}, s{sEx}, {WS_FLAG}
s_lshl_b32 s{sSg}, s{sP}, 12
s_add_u32 s{sSg}, s{sSg}, s{sEx}
v_lshlrev_b32 v{vPo}, 7, v0
v_and_b32 v{vT}, 1, v{vM}
v_mul_u32_u24 v{vT}, 640, v{vT}
v_lshrrev_b32 v{vT2}, 1, v{vM}
v_lshl_add_u32 v{vT}, v{vT2}, 4, v{vT}
v_mul_u32_u24 v{vT2}, 5120, v{vG}
s_mov_b32 s{sT}, {L_G}
v_add3_u32 v{vGa}, v{vT}, v{vT2}, s{sT}
s_lshl_b32 s{sT}, s{sW4}, 6
s_add_u32 s{sT}, s{sT}, {L_GT}
v_lshlrev_b32 v{vRow}, 2, v{vM}
v_add_u32 v{vRow}, s{sT}, v{vRow}
s_sub_u32 s70, s{sSL}, 20
s_lshl_b32 s70, 1, s70
s_cmp_ge_u32 s{sSL}, 20
s_cselect_b32 s{sFl}, s70, 0xfffff
s_lshl_b32 s70, s{sSL}, 2
s_add_u32 s70, s70, s{sCP}
v_lshlrev_b32 v{vT}, 2, v0
""" + "\n".join(f"v_mov_b32 v{fO+8+j}, v{vGoL+j}" for j in range(5)) + "\n"
    for q in range(4): hp += f"v_cmp_eq_u32 vcc, s70, v{vT}\nv_cndmask_b32 v{fO+4+q}, 0, 1, vcc\nv_add_u32 v{vT}, 1, v{vT}\n"
    return fill, hp

def phase2(a):
    fill, hp = p2_calc()
    sT, sT2, sT3 = p2T, p2T2, p2T3
    vOo = 10
    FA = [vX, vX+1, None, vX+2, vX+3]
    hi_v[0] = 256
    def wreads(dst, reg, j):
        return [f"ds_read_b64_tr_b16 {vr(dst+4*ct+2*h,2)}, v{reg} offset:{j*5120+h*1280+32*ct}" for ct in range(5) for h in range(2)]
    def grp(j): return wreads(WR+20*j, vWa, j) if j < NREG else wreads(FW, vWs, 0)
    a.label('L_P2')
    stamp(a, 4)
    fl = list(fill)
    a(fl.pop(0))
    for j in range(8):
        if j == NPRE:
            a(f"""s_cmp_ge_u32 s{sSL}, 20
s_cbranch_scc1 L_NOFLAG
s_lshl_b32 s{sFl}, 0x55, s{sP}
v_mov_b32 v{vT}, {L_CNT}
v_mov_b32 v{vT2}, 1
s_mov_b64 exec, 1
s_waitcnt vmcnt(0)
ds_add_rtn_u32 v{vT2}, v{vT}, v{vT2}
s_waitcnt lgkmcnt(0)
v_readfirstlane_b32 s70, v{vT2}
s_mov_b64 exec, -1
s_cmp_lg_u32 s70, 3
s_cbranch_scc1 L_NOFLAG""")
            flag_store(a, vT, f"s{sFl}")
            a("L_NOFLAG:")
            stamp(a, 5)
        if j: a("s_waitcnt lgkmcnt(5)")
        for x in grp(j): a(x)
        if fl: a(fl.pop(0))
    a("s_branch L_GO")
    a.label('L_P2H')
    for x in fill: a(x)
    a(hp)
    a("L_P2H2:\ns_waitcnt vmcnt(0)\ns_barrier")
    stamp(a, 4)
    dpoll = f"buffer_load_dwordx4 {vr(vPl,4)}, v{vPo}, {R(R_WS)}, s{sEx} offen sc1"
    for j in range(8):
        if j == DA: a(f"""s_cmp_lg_u32 s3, 5
s_cbranch_scc1 L_ND0
s_mov_b32 exec_lo, 0xfff00000
s_mov_b32 exec_hi, 0xfff00000
{dpoll}
s_mov_b64 exec, -1
L_ND0:""")
        if j: a("s_waitcnt lgkmcnt(5)")
        for x in grp(j): a(x)
    a(f"""s_cmp_lg_u32 s3, 5
s_cbranch_scc1 L_GDONE
s_mov_b32 exec_lo, 0xfff00000
s_mov_b32 exec_hi, 0xfff00000
s_mov_b32 s71, 0
{f"s_memrealtime s[{S_ST+2}:{S_ST+3}]" if DST == 2 else ""}
{"s_sleep "+str(DDL) if DA >= 8 and DDL else ""}
{dpoll if DA >= 8 else ""}
s_waitcnt vmcnt(0)
L_DPOLL:
v_and_b32 v{vPl}, v{vPl}, v{vPl+1}
v_and_b32 v{vPl+2}, v{vPl+2}, v{vPl+3}
v_and_b32 v{vPl}, v{vPl}, v{vPl+2}
v_cmp_ne_u32 vcc, 1, v{vPl}
s_cbranch_vccz L_GOK
s_mov_b64 exec, vcc
s_sleep {DSL}
{dpoll}
s_add_u32 s71, s71, 1
s_cmp_gt_u32 s71, {SPIN}
s_waitcnt vmcnt(0)
s_cbranch_scc0 L_DPOLL
L_GOK:
{f"s_memrealtime s[{S_ST+4}:{S_ST+5}]" if DST == 2 else ""}
{f"s_mov_b32 s{S_ST+6}, s71" if DST == 2 else ""}
s_mov_b64 exec, -1""")
    for w in range(4):
        a(f"s_mov_b32 m0, {L_G + 5120*w}\ns_mov_b32 s70, {w*4*GP*16}")
        for j in range(5):
            if j == 4: a("s_add_u32 m0, m0, 4096")
            a(f"buffer_load_dwordx4 v{fO+8+j}, {R(R_WS)}, s70 offen offset:{1024*(j&3)} sc1 lds")
    mpoll = f"buffer_load_dwordx4 {vr(fO,4)}, v{vPo}, {R(R_WS)}, s{sSg} offen sc1"
    a(f"""s_lshl_b32 s70, s{sK1}, 8
s_add_u32 s70, s70, {WS_GATE}
s_mov_b32 m0, {L_GT}
v_lshlrev_b32 v{vT}, 2, v0
buffer_load_dword v{vT}, {R(R_WS)}, s70 offen sc1 lds
L_GDONE:
s_cmp_lg_u32 s3, 4
s_cbranch_scc1 L_GO
s_mov_b32 s71, 0
s_mov_b32 exec_hi, 0
s_mov_b32 exec_lo, s{sFl}
s_cmp_ge_u32 s{sSL}, 20
s_cbranch_scc1 L_NOPD
s_sleep {PDL}
L_NOPD:
{f"s_memrealtime s[{S_ST+2}:{S_ST+3}]" if DST == 2 else ""}
{mpoll}
L_POLL:
s_waitcnt vmcnt(0)
v_or_b32 v{fO}, v{fO}, v{fO+4}
v_or_b32 v{fO+1}, v{fO+1}, v{fO+5}
v_or_b32 v{fO+2}, v{fO+2}, v{fO+6}
v_or_b32 v{fO+3}, v{fO+3}, v{fO+7}
v_and_b32 v{fO}, v{fO}, v{fO+1}
v_and_b32 v{fO+2}, v{fO+2}, v{fO+3}
v_and_b32 v{fO}, v{fO}, v{fO+2}
v_cmp_ne_u32 vcc, 1, v{fO}
s_cbranch_vccz L_POLLED
s_mov_b64 exec, vcc
s_sleep {PSL}
s_cmp_eq_u32 s{sFl}, 0xfffff
s_cbranch_scc1 L_POLL2
s_sleep {PSA}
L_POLL2:
{mpoll}
s_add_u32 s71, s71, 1
s_cmp_gt_u32 s71, {SPIN}
s_cbranch_scc0 L_POLL
s_mov_b32 s{sFl}, 0xfffff
L_POLLED:
s_cmp_lg_u32 s{sFl}, 0xfffff
s_mov_b32 s{sFl}, 0xfffff
s_mov_b32 exec_lo, 0xfffff
s_cbranch_scc1 L_POLL2
{f"s_memrealtime s[{S_ST+4}:{S_ST+5}]" if DST == 2 else ""}
{f"s_mov_b32 s{S_ST+6}, s71" if DST == 2 else ""}
s_mov_b64 exec, -1
L_GO:
s_waitcnt vmcnt(0) lgkmcnt(0)
s_barrier""")
    hold(a, 2)
    stamp(a, 6)
    def odl(P):
        r = []
        for j in range(5):
            pre = f"s_add_u32 m0, s{sOB}, {5120*P}\n" if j == 0 else "s_add_u32 m0, m0, 4096\n" if j == 4 else ""
            r.append(pre + f"buffer_load_dwordx4 v{vOo+j}, {R(R_WS)}, s{sQ0+P} offen offset:{1024*(j&3)} sc1 lds")
        return r
    def odma(P, n=5):
        for x in odl(P)[:n]: a(x)
    a(f"""s_cmp_eq_u32 s{sHH}, 0
s_cbranch_scc0 L_Y""")
    odma(0); odma(1, NE)
    for i in range(0, 20, 2): a(f"v_pk_mov_b32 {vr(accB+i,2)}, 0, 0")
    a(f"s_branch L_NOY\nL_Y:\ns_setprio {YP1}\nds_read_b32 v{vGl}, v{vRow}")
    seq = [(uu, ct) for uu in range(4) for ct in range(5)]
    ring = [fO+4*k for k in range(5)] + [vPl, 16]
    def rd_(n): uu, ct = seq[n]; return f"ds_read_b128 {vr(ring[n%7],4)}, v{vGa} offset:{1280*uu+128*ct}"
    for n in range(7): a(rd_(n))
    if YORD == 1: odma(0)
    gmy = [f"v_min_f32 v{vGl}, 0x41f00000, v{vGl}", f"v_mul_f32 v{vGl}, 0x3fb8aa3b, v{vGl}", f"v_exp_f32 v{vGl}, v{vGl}"]
    for n in range(20):
        uu, ct = seq[n]
        a(f"s_waitcnt lgkmcnt({min(6, 19-n)})")
        a(f"{MF} {vr(accB+4*ct,4)}, {vr(ring[n%7],4)}, {vr(fT+4*uu,4)}, {'0' if uu == 0 else vr(accB+4*ct,4)}")
        if n + 7 < 20: a(rd_(n+7))
        elif gmy: a(gmy.pop(0))
    for i in range(0, 20, 2): a(f"v_pk_mul_f32 {vr(accB+i,2)}, {vr(accB+i,2)}, {vr(vGl,2)} op_sel_hi:[1,0]")
    if YP2: a(f's_setprio {YP2}')
    if YORD == 0: odma(0)
    odma(1, NE)
    a(f"s_setprio {YPRI}\nL_NOY:\nds_read_b32 v{vG1}, v{vG1+1}\nds_read_b32 v{vG1+2}, v{vG1+3}")
    FO = [fO, WR + 40]
    def oreads(P): return [f"ds_read_b128 {vr(FO[P]+4*q,4)}, v{vOa} offset:{5120*P+32*q}" for q in range(5)]
    Wbuf = {u: WR + 20*u for u in range(NREG)}
    Wbuf[7] = FW; Wbuf[8] = WR; Wbuf[9] = WR + 20
    def mm(u):
        B = vr(FO[u//5] + 4*(u % 5), 4)
        return [f"{MF} {vr(accB+4*ct,4)}, {vr(Wbuf[u]+4*ct,4)}, {B}, {vr(accB+4*ct,4)}" for ct in range(5)]
    if P2ST: stamp(a, 1)
    a(f"s_waitcnt vmcnt({NE})")
    if P2ST: stamp(a, 2); a("s_waitcnt lgkmcnt(0)")
    for x in oreads(0): a(x)
    for x in odl(1)[NE:]: a(x)
    a("s_waitcnt lgkmcnt(4)")
    for x in mm(0): a(x)
    a("s_waitcnt lgkmcnt(0)")
    interleave(a, mm(1), wreads(WR, vWs, 1), per=2)
    interleave(a, mm(2) + mm(3), wreads(WR+20, vWs, 2))
    a("s_waitcnt vmcnt(0) lgkmcnt(8)")
    if P2ST: stamp(a, 3)
    for x in oreads(1): a(x)
    for x in mm(4): a(x)
    a("s_waitcnt lgkmcnt(0)")
    gm = []
    for v_ in (vG1, vG1+2):
        gm += [f"v_min_f32 v{v_}, 0x41f00000, v{v_}", f"v_mul_f32 v{v_}, 0x3fb8aa3b, v{v_}", f"v_exp_f32 v{v_}, v{v_}", f"v_add_f32 v{v_}, 1.0, v{v_}", f"v_rcp_f32 v{v_}, v{v_}"]
    interleave(a, sum((mm(u) for u in range(5, 10)), []), gm)
    if P2ST: stamp(a, 4)
    for ct in range(5): a(f"ds_write_b128 v{vEx}, {vr(accB+4*ct,4)} offset:{64*ct}")
    a("s_waitcnt lgkmcnt(0)\ns_barrier")
    if P2ST: stamp(a, 5)
    def rdf(q):
        b = WR + 24*q
        a(f"""ds_read_b128 {vr(b,4)}, v{FA[3*q]}
ds_read_b128 {vr(b+4,4)}, v{FA[3*q]} offset:16
ds_read_b128 {vr(b+8,4)}, v{FA[3*q+1]} offset:40960
ds_read_b128 {vr(b+12,4)}, v{FA[3*q+1]} offset:40976""")
    def fin(q):
        b = WR + 24*q
        for i in range(0, 8, 2): a(f"v_pk_add_f32 {vr(b+i,2)}, {vr(b+i,2)}, {vr(b+8+i,2)}")
        for i in range(0, 8, 2): a(f"v_pk_mul_f32 {vr(b+i,2)}, {vr(b+i,2)}, {vr(vG1+2*q,2)} op_sel_hi:[1,0]")
        a(pk(b+8, b)); a(pk(b+10, b+4))
        a(f"buffer_store_dwordx4 {vr(b+8,4)}, v{vOut+q}, {R(R_A)}, 0 offen {OPOL}")
    rdf(0)
    a("s_cmp_ge_u32 s3, 2\ns_cbranch_scc1 L_F1")
    rdf(1)
    a("s_waitcnt lgkmcnt(4)")
    fin(0)
    a("s_waitcnt lgkmcnt(0)")
    fin(1)
    a("s_branch L_F2\nL_F1:\ns_waitcnt lgkmcnt(0)")
    fin(0)
    a("L_F2:")
    hold(a, 1)
    stamp_flush(a, vT)

a = main()
print("pads", a.pad(), "vgprs", hi_v[0], file=sys.stderr)
nv = (hi_v[0] + 7)//8*8
txt = f"""; gated mix: FNet (factored DFT) + dilated sliding-window attention.  Generated by work/gen17.py
; @launch grid=(256,1,1) block=(512,1,1) lds={LDS_BYTES}
.amdgcn_target "amdgcn-amd-amdhsa--gfx950"
.text
.globl {NAME}_kernel
.p2align 8
.type {NAME}_kernel,@function
{NAME}_kernel:
{a.text()}
.section .rodata,"a"
.p2align 6
.amdhsa_kernel {NAME}_kernel
  .amdhsa_next_free_vgpr {nv}
  .amdhsa_next_free_sgpr 100
  .amdhsa_accum_offset {nv}
  .amdhsa_group_segment_fixed_size 0
  .amdhsa_kernarg_size 96
  .amdhsa_user_sgpr_count 2
  .amdhsa_user_sgpr_kernarg_segment_ptr 1
  .amdhsa_system_sgpr_workgroup_id_x 1
.end_amdhsa_kernel
"""
open(OUT, 'w').write(txt)
```
